```python
import torch

def _softmax(x, axis=-1):
    return torch.softmax(x, dim=axis)
def _gelu(x):
    return torch.nn.functional.gelu(x, approximate="tanh")
def _silu(x):
    return torch.nn.functional.silu(x)
def _sigmoid(x):
    return torch.sigmoid(x)
def _layernorm(x, axis=-1, eps=1e-5):
    m = x.mean(dim=axis, keepdim=True)
    v = x.var(dim=axis, keepdim=True, unbiased=False)
    return (x - m) / torch.sqrt(v + eps)
def _scatter_add(tgt, idx, src, axis=0):
    return tgt.clone().index_add_(axis, idx, src)
def _segment_sum(src, seg, n):
    out = torch.zeros((n,) + src.shape[1:], dtype=src.dtype)
    return out.index_add_(0, seg, src)
def _pad(x, pw):
    flat = tuple(v for pair in reversed(pw) for v in pair)
    return torch.nn.functional.pad(x, flat)

kernel_name = 'sequential_preLN__gqa_block_cached__mixer_token_mlp__decode'

def setup_inputs():

    _w = (lambda a: (lambda t: t.to(torch.bfloat16) if t.is_floating_point() else t)(torch.as_tensor(a)))
    def _A_setup():
        B, Sq, D = 8, 1, 512
        Hq, Hkv, Sk, Dh = 32, 8, 8192, 128
        assert Hq % Hkv == 0, (Hq, Hkv)
        return {
            "x": _w((lambda *s: torch.randn(*s, dtype=torch.bfloat16) * 0.05)(B, Sq, D)),
            "k_cache": _w((lambda *s: torch.randn(*s, dtype=torch.bfloat16) * 1.6)(B, Hkv, Sk, Dh)),
            "v_cache": _w((lambda *s: torch.randn(*s, dtype=torch.bfloat16) * 0.8)(B, Hkv, Sk, Dh)),
            "wq": _w((lambda *s: torch.randn(*s, dtype=torch.bfloat16) * 1.6)(D, Hq * Dh) * (D ** -0.5)),
            "wo": _w((lambda *s: torch.randn(*s, dtype=torch.bfloat16) * 0.8)(Hq * Dh, D) * ((Hq * Dh) ** -0.5)),
        }
    _A_in = _A_setup()

    def _B_setup():
        B, S, D, F = 8, 1, 512, 1792
        return {
            "x": _w((lambda *s: torch.randn(*s, dtype=torch.bfloat16) * 0.05)(B, S, D)),
            "w1": _w((lambda *s: torch.randn(*s, dtype=torch.bfloat16) * 1.6)(S, F) * (S ** -0.5)),
            "b1": _w((lambda *s: torch.randn(*s, dtype=torch.bfloat16) * 1.6)(F) * 0.02),
            "w2": _w((lambda *s: torch.randn(*s, dtype=torch.bfloat16) * 1.6)(F, S) * (F ** -0.5)),
            "b2": _w((lambda *s: torch.randn(*s, dtype=torch.bfloat16) * 0.8)(S) * 0.02),
        }
    _B_in = _B_setup()

    return {
        "A_x": _A_in["x"],
        "A_k_cache": _A_in["k_cache"],
        "A_v_cache": _A_in["v_cache"],
        "A_wq": _A_in["wq"],
        "A_wo": _A_in["wo"],
        "B_x": _B_in["x"],
        "B_w1": _B_in["w1"],
        "B_b1": _B_in["b1"],
        "B_w2": _B_in["w2"],
        "B_b2": _B_in["b2"],
    }

def reference(A_x, A_k_cache, A_v_cache, A_wq, A_wo, B_x, B_w1, B_b1, B_w2, B_b2):
    def _A_ref(x, k_cache, v_cache, wq, wo):
        B, Sq, D = x.shape
        Hq, Dh = 32, 128
        Hkv = k_cache.shape[1]
        rep = Hq // Hkv
        q = (lambda x, *d: x.permute(*d))((x @ wq).reshape(B, Sq, Hq, Dh), 0, 2, 1, 3)
        k = (lambda x, n, axis: torch.repeat_interleave(x, n, dim=axis))(k_cache, rep, axis=1)
        v = (lambda x, n, axis: torch.repeat_interleave(x, n, dim=axis))(v_cache, rep, axis=1)
        scores = torch.einsum("bhqd,bhkd->bhqk", q, k) * (Dh ** -0.5)
        p = _softmax(scores, axis=-1)
        o = torch.einsum("bhqk,bhkd->bhqd", p, v)
        return (lambda x, *d: x.permute(*d))(o, 0, 2, 1, 3).reshape(B, Sq, Hq * Dh) @ wo

    def _B_ref(x, w1, b1, w2, b2):
        B, S, D = x.shape
        h = _layernorm(x, axis=-1)
        u = torch.einsum("bsd,sf->bdf", h, w1) + b1
        u = _gelu(u)
        y = torch.einsum("bdf,fs->bds", u, w2) + b2
        return (lambda x, *d: x.permute(*d))(y, 0, 2, 1)

    x = A_x
    h = x + _A_ref(_layernorm(x, axis=-1), A_k_cache, A_v_cache, A_wq, A_wo)
    h2 = h + _B_ref(_layernorm(h, axis=-1), B_w1, B_b1, B_w2, B_b2)
    return h2
```

```python
import sys

HEADER = open("sequential_preLN__gqa_block_cached__mixer_token_mlp__decode.s.ref").read().split("; Override launch")[0]

Q_OFF = 0x0
PO_OFF = 0x10000
PML_OFF = 0x90000
WP_OFF = 0xA0000
WS_USED = 0xE0000

LOG2E = 0x3FB8AA3B
SCALE = 0x3DB504F3
NEGBIG = 0xF149F2CA


class E:
    def __init__(self):
        self.lines = []
        self.lbl = 0

    def __call__(self, s):
        for ln in s.strip("\n").split("\n"):
            self.lines.append("    " + ln.strip())

    def label(self, name):
        self.lines.append(name + ":")

    def raw(self, s):
        self.lines.append(s)

    def newlabel(self, base):
        self.lbl += 1
        return f"L_{base}_{self.lbl}"

    def text(self):
        return "\n".join(self.lines) + "\n"


def kernel_begin(e, name):
    e.raw(f".globl {name}")
    e.raw(".p2align 8")
    e.raw(f".type {name},@function")
    e.label(name)


def kernel_desc(name, vgpr, sgpr=102):
    acc = (vgpr + 3) // 4 * 4
    return f""".amdhsa_kernel {name}
  .amdhsa_next_free_vgpr {vgpr}
  .amdhsa_next_free_sgpr {sgpr}
  .amdhsa_accum_offset {acc}
  .amdhsa_group_segment_fixed_size 0
  .amdhsa_kernarg_size 104
  .amdhsa_user_sgpr_count 2
  .amdhsa_user_sgpr_kernarg_segment_ptr 1
  .amdhsa_system_sgpr_workgroup_id_x 1
.end_amdhsa_kernel
"""


def srd(e, d, base_lo, base_hi, nbytes):
    e(f"s_mov_b32 s{d}, s{base_lo}")
    e(f"s_mov_b32 s{d+1}, s{base_hi}")
    e(f"s_mov_b32 s{d+2}, {nbytes}")
    e(f"s_mov_b32 s{d+3}, 0x00020000")


def wave_allreduce_add(e, v, t, s0):
    e(f"s_nop 1")
    e(f"v_add_f32_dpp v{v}, v{v}, v{v} quad_perm:[1,0,3,2] row_mask:0xf bank_mask:0xf")
    e(f"s_nop 1")
    e(f"v_add_f32_dpp v{v}, v{v}, v{v} quad_perm:[2,3,0,1] row_mask:0xf bank_mask:0xf")
    e(f"s_nop 1")
    e(f"v_add_f32_dpp v{v}, v{v}, v{v} row_half_mirror row_mask:0xf bank_mask:0xf")
    e(f"s_nop 1")
    e(f"v_add_f32_dpp v{v}, v{v}, v{v} row_mirror row_mask:0xf bank_mask:0xf")
    e(f"s_nop 1")
    e(f"v_readlane_b32 s{s0}, v{v}, 0")
    e(f"v_readlane_b32 s{s0+1}, v{v}, 16")
    e(f"v_readlane_b32 s{s0+2}, v{v}, 32")
    e(f"v_readlane_b32 s{s0+3}, v{v}, 48")
    e(f"s_nop 1")
    e(f"v_mov_b32 v{t}, s{s0}")
    e(f"v_add_f32 v{t}, s{s0+1}, v{t}")
    e(f"v_add_f32 v{v}, s{s0+2}, v{t}")
    e(f"v_add_f32 v{v}, s{s0+3}, v{v}")


def bf16r(e, v, t=None):
    e(f"v_cvt_pk_bf16_f32 v{v}, v{v}, v{v}")
    e(f"v_lshlrev_b32 v{v}, 16, v{v}")


def layernorm8(e, x, t, s0):
    e(f"v_add_f32 v{t}, v{x}, v{x+1}")
    for i in range(2, 8):
        e(f"v_add_f32 v{t}, v{t}, v{x+i}")
    wave_allreduce_add(e, t, t + 1, s0)
    e(f"v_mul_f32 v{t}, 0x3b000000, v{t}")
    for i in range(8):
        e(f"v_sub_f32 v{t+2+i}, v{x+i}, v{t}")
    e(f"v_mul_f32 v{t+10}, v{t+2}, v{t+2}")
    for i in range(1, 8):
        e(f"v_fmac_f32 v{t+10}, v{t+2+i}, v{t+2+i}")
    wave_allreduce_add(e, t + 10, t + 1, s0)
    e(f"v_mul_f32 v{t+10}, 0x3b000000, v{t+10}")
    bf16r(e, t + 10)
    e(f"v_add_f32 v{t+10}, 0x3727c5ac, v{t+10}")
    bf16r(e, t + 10)
    e(f"v_sqrt_f32 v{t+10}, v{t+10}")
    e(f"s_nop 0")
    bf16r(e, t + 10)
    e(f"v_rcp_f32 v{t+11}, v{t+10}")
    bf16r(e, t)
    for i in range(8):
        e(f"v_sub_f32 v{x+i}, v{x+i}, v{t}")
    for i in range(0, 8, 2):
        e(f"v_cvt_pk_bf16_f32 v{t+2}, v{x+i}, v{x+i+1}")
        e(f"v_lshlrev_b32 v{x+i}, 16, v{t+2}")
        e(f"v_and_b32 v{x+i+1}, 0xffff0000, v{t+2}")
    for i in range(8):
        e(f"v_mul_f32 v{t+2}, v{x+i}, v{t+11}")
        e(f"v_fma_f32 v{t+3}, -v{t+2}, v{t+10}, v{x+i}")
        e(f"v_fma_f32 v{x+i}, v{t+3}, v{t+11}, v{t+2}")
    for i in range(0, 8, 2):
        e(f"v_cvt_pk_bf16_f32 v{t+2}, v{x+i}, v{x+i+1}")
        e(f"v_lshlrev_b32 v{x+i}, 16, v{t+2}")
        e(f"v_and_b32 v{x+i+1}, 0xffff0000, v{t+2}")


def unpack8(e, src, dst):
    for i in range(4):
        e(f"v_lshlrev_b32 v{dst+2*i}, 16, v{src+i}")
        e(f"v_and_b32 v{dst+2*i+1}, 0xffff0000, v{src+i}")


def gen_qproj(e):
    name = "qproj_kernel"
    kernel_begin(e, name)
    e("s_cmp_ge_u32 s2, 256")
    e(f"s_cbranch_scc1 L_{name}_end")
    e("s_load_dwordx2 s[4:5], s[0:1], 0")
    e("s_load_dwordx2 s[6:7], s[0:1], 24")
    e("s_load_dwordx2 s[8:9], s[0:1], 96")
    e("v_lshrrev_b32 v1, 6, v0")
    e("v_and_b32 v2, 63, v0")
    e("s_nop 0")
    e("v_readfirstlane_b32 s3, v1")
    e("s_waitcnt lgkmcnt(0)")
    srd(e, 12, 4, 5, 8192)
    srd(e, 16, 6, 7, 4 << 20)
    srd(e, 20, 8, 9, WS_USED)
    e("v_lshrrev_b32 v3, 1, v2")
    e("v_lshlrev_b32 v3, 13, v3")
    e("v_and_b32 v4, 1, v2")
    e("v_lshl_add_u32 v3, v4, 4, v3")
    e("s_lshl_b32 s24, s2, 5")
    e("s_lshl_b32 s25, s3, 18")
    e("s_add_u32 s24, s24, s25")
    e("s_lshl_b32 s26, s3, 10")
    e("s_add_u32 s26, s26, 8192")
    for i in range(4):
        e(f"s_mov_b32 m0, s26")
        e(f"s_nop 0")
        e(f"buffer_load_dwordx4 v3, s[16:19], s24 offen lds")
        if i < 3:
            e(f"s_add_u32 s26, s26, 4096")
            e(f"s_add_u32 s24, s24, {128*8192}")
    e("s_lshl_b32 s27, s3, 11")
    e("v_lshlrev_b32 v5, 4, v2")
    e("buffer_load_dwordx4 v[8:11], v5, s[12:15], s27 offen")
    e("buffer_load_dwordx4 v[12:15], v5, s[12:15], s27 offen offset:1024")
    e("s_waitcnt vmcnt(0)")
    for r in range(2):
        unpack8(e, 8 + 4 * r, 16)
        layernorm8(e, 16, 32, 28)
        for i in range(4):
            e(f"v_cvt_pk_bf16_f32 v{24+i}, v{16+2*i}, v{16+2*i+1}")
        e(f"v_add_u32 v6, s27, v5")
        e(f"ds_write_b128 v6, v[24:27] offset:{1024*r}")
    e("s_waitcnt vmcnt(0) lgkmcnt(0)")
    e("s_barrier")
    e("s_cmp_lg_u32 s3, 0")
    e(f"s_cbranch_scc1 L_{name}_end")
    e("v_lshrrev_b32 v3, 4, v2")
    e("v_bfe_u32 v4, v2, 2, 2")
    e("v_and_b32 v5, 3, v2")
    e("v_lshl_add_u32 v6, v3, 3, v4")
    e("v_lshlrev_b32 v6, 5, v6")
    e("v_lshl_add_u32 v6, v5, 3, v6")
    e("v_and_b32 v7, 7, v2")
    e("v_lshlrev_b32 v7, 10, v7")
    e("v_lshl_add_u32 v7, v3, 4, v7")
    A0, B0 = 16, 80
    for s in range(16):
        e(f"ds_read_b64_tr_b16 v[{A0+4*s}:{A0+4*s+1}], v6 offset:{8192 + s*1024}")
        e(f"ds_read_b64_tr_b16 v[{A0+4*s+2}:{A0+4*s+3}], v6 offset:{8192 + s*1024 + 128}")
        e(f"ds_read_b128 v[{B0+4*s}:{B0+4*s+3}], v7 offset:{s*64}")
        if s % 4 == 3:
            e("s_waitcnt lgkmcnt(0)")
    for s in range(16):
        c = "0" if s == 0 else "v[8:11]"
        e(f"v_mfma_f32_16x16x32_bf16 v[8:11], v[{A0+4*s}:{A0+4*s+3}], v[{B0+4*s}:{B0+4*s+3}], {c}")
    e("s_nop 7")
    e("s_nop 3")
    e("v_cvt_pk_bf16_f32 v12, v8, v9")
    e("v_cvt_pk_bf16_f32 v13, v10, v11")
    e("v_and_b32 v4, 15, v2")
    e("v_lshlrev_b32 v5, 13, v4")
    e("v_lshl_add_u32 v5, v3, 3, v5")
    e("s_lshl_b32 s24, s2, 5")
    e(f"s_add_u32 s24, s24, {Q_OFF}")
    e("v_cmp_gt_u32 vcc, 8, v4")
    e("s_and_saveexec_b64 s[30:31], vcc")
    e("buffer_store_dwordx2 v[12:13], v5, s[20:23], s24 offen")
    e.label(f"L_{name}_end")
    e("s_endpgm")
    return kernel_desc(name, 144)


def gen_attn(e, opt):
    name = "attn_kernel"
    NT = opt.get("nt", "")
    compute = opt.get("compute", True)
    kernel_begin(e, name)
    e("s_cmp_ge_u32 s2, 256")
    e(f"s_cbranch_scc1 L_{name}_end")
    e("s_load_dwordx4 s[4:7], s[0:1], 8")
    e("s_load_dwordx2 s[8:9], s[0:1], 96")
    e("v_lshrrev_b32 v1, 6, v0")
    e("v_and_b32 v2, 63, v0")
    e("s_nop 0")
    e("v_readfirstlane_b32 s3, v1")
    e("v_lshrrev_b32 v3, 4, v2")
    e("v_and_b32 v22, 15, v2")
    e("s_lshl_b32 s10, s2, 19")
    e("s_lshl_b32 s11, s3, 17")
    e("s_add_u32 s10, s10, s11")
    e("s_waitcnt lgkmcnt(0)")
    e("s_add_u32 s16, s4, s10")
    e("s_addc_u32 s17, s5, 0")
    e("s_mov_b32 s18, 131072")
    e("s_mov_b32 s19, 0x00020000")
    e("s_add_u32 s20, s6, s10")
    e("s_addc_u32 s21, s7, 0")
    e("s_mov_b32 s22, 131072")
    e("s_mov_b32 s23, 0x00020000")
    srd(e, 24, 8, 9, WS_USED)
    QF = 24
    for i in range(16):
        e(f"v_mov_b32 v{QF+i}, 0")
    e("v_lshlrev_b32 v4, 8, v22")
    e("v_lshl_add_u32 v4, v3, 4, v4")
    e("s_lshr_b32 s12, s2, 2")
    e("s_lshl_b32 s12, s12, 10")
    e(f"s_add_u32 s12, s12, {Q_OFF}")
    e("v_cmp_gt_u32 vcc, 4, v22")
    e("s_and_saveexec_b64 s[30:31], vcc")
    for i in range(4):
        e(f"buffer_load_dwordx4 v[{QF+4*i}:{QF+4*i+3}], v4, s[24:27], s12 offen offset:{64*i}")
    e("s_mov_b64 exec, s[30:31]")
    for i in range(4):
        e(f"v_add_u32 v23, {4*i}, v3")
        e(f"v_xor_b32 v23, v23, v22")
        e(f"v_lshlrev_b32 v23, 4, v23")
        e(f"v_lshl_add_u32 v{4+i}, v3, 8, v23")
    for i in range(2):
        e(f"v_add_u32 v23, {4*i}, v3")
        e(f"v_lshlrev_b32 v23, 1, v23")
        e(f"v_xor_b32 v23, v23, v22")
        e(f"v_lshlrev_b32 v23, 4, v23")
        e(f"v_lshl_add_u32 v{8+i}, v3, 8, v23")
    e("s_lshl_b32 s13, s3, 15")

    def issue(kind, slot, soff):
        srdn = 16 if kind == "K" else 20
        ldsoff = (0 if kind == "K" else 16384) + slot * 8192
        for half in range(2):
            e(f"s_add_u32 s28, s13, {ldsoff + half*4096}")
            e(f"s_mov_b32 m0, s28")
            if half == 1:
                e(f"s_add_u32 s29, s{soff}, 4096")
            else:
                e(f"s_mov_b32 s29, s{soff}")
            for i in range(4):
                vo = (4 + i) if kind == "K" else (8 + (i & 1))
                e(f"buffer_load_dwordx4 v{vo}, s[{srdn}:{srdn+3}], s29 offen offset:{1024*i} {NT} lds")
        e(f"s_add_u32 s{soff}, s{soff}, 8192")

    e("s_mov_b32 s14, 0")
    e("s_mov_b32 s15, 0")
    issue("K", 0, 14)
    issue("V", 0, 15)
    issue("K", 1, 14)
    issue("V", 1, 15)
    for i in range(4):
        e(f"v_add_u32 v23, {4*i}, v3")
        e(f"v_xor_b32 v23, v23, v22")
        e(f"v_lshlrev_b32 v23, 4, v23")
        e(f"v_lshl_add_u32 v23, v22, 8, v23")
        e(f"v_add_u32 v{10+i}, s13, v23")
    e("v_bfe_u32 v40, v2, 2, 2")
    e("v_lshl_add_u32 v40, v3, 2, v40")
    e("v_and_b32 v41, 7, v40")
    e("v_lshlrev_b32 v41, 1, v41")
    e("v_bfe_u32 v42, v2, 1, 1")
    e("v_and_b32 v43, 1, v2")
    e("v_lshlrev_b32 v44, 8, v40")
    e("v_lshl_add_u32 v44, v43, 3, v44")
    e("v_add_u32 v44, s13, v44")
    e("v_add_u32 v44, 16384, v44")
    for j in range(8):
        e(f"v_xor_b32 v23, {2*j}, v41")
        e(f"v_add_u32 v23, v23, v42")
        e(f"v_lshl_add_u32 v{14+j}, v23, 4, v44")
    KF, VF, S0, P0, T0, OA = 40, 72, 104, 112, 116, 128
    MREF, MNEG, THR, LSUM = 124, 125, 126, 127
    for i in range(32):
        e(f"v_mov_b32 v{OA+i}, 0")
    e(f"v_mov_b32 v{MREF}, 0x{NEGBIG:08x}")
    e(f"v_mov_b32 v{THR}, 0x{NEGBIG:08x}")
    e(f"v_mov_b32 v{MNEG}, 0")
    e(f"v_mov_b32 v{LSUM}, 0")
    e(f"s_mov_b32 s32, 0x{SCALE:08x}")
    e(f"s_mov_b32 s33, 0x{LOG2E:08x}")
    e("s_mov_b32 s34, 0")
    e("v_xor_b32 v160, 16, v2")
    e("v_lshlrev_b32 v160, 2, v160")
    e("v_xor_b32 v161, 32, v2")
    e("v_lshlrev_b32 v161, 2, v161")
    e("s_waitcnt vmcnt(32)")
    e.label("L_attn_loop")
    rares = []
    for slot in range(2):
        e("s_waitcnt vmcnt(24)")
        if compute:
            for u in range(2):
                for i in range(4):
                    r = KF + (u * 4 + i) * 4
                    e(f"ds_read_b128 v[{r}:{r+3}], v{10+i} offset:{slot*8192 + u*4096}")
            e("s_waitcnt lgkmcnt(0)")
        issue("K", slot, 14)
        if compute:
            for i in range(4):
                for u in range(2):
                    r = KF + (u * 4 + i) * 4
                    c = "0" if i == 0 else f"v[{S0+4*u}:{S0+4*u+3}]"
                    e(f"v_mfma_f32_16x16x32_bf16 v[{S0+4*u}:{S0+4*u+3}], v[{r}:{r+3}], v[{QF+4*i}:{QF+4*i+3}], {c}")
            e("s_nop 7")
            for i in range(4):
                e(f"v_cvt_pk_bf16_f32 v{T0+i}, v{S0+2*i}, v{S0+2*i+1}")
            for i in range(4):
                e(f"v_lshlrev_b32 v{S0+2*i}, 16, v{T0+i}")
                e(f"v_and_b32 v{S0+2*i+1}, 0xffff0000, v{T0+i}")
            for i in range(8):
                e(f"v_mul_f32 v{S0+i}, s32, v{S0+i}")
            for i in range(4):
                e(f"v_cvt_pk_bf16_f32 v{T0+i}, v{S0+2*i}, v{S0+2*i+1}")
            for i in range(4):
                e(f"v_lshlrev_b32 v{S0+2*i}, 16, v{T0+i}")
                e(f"v_and_b32 v{S0+2*i+1}, 0xffff0000, v{T0+i}")
            e(f"v_max3_f32 v{T0}, v{S0}, v{S0+1}, v{S0+2}")
            e(f"v_max3_f32 v{T0+1}, v{S0+3}, v{S0+4}, v{S0+5}")
            e(f"v_max3_f32 v{T0}, v{T0}, v{S0+6}, v{S0+7}")
            e(f"v_max_f32 v{T0}, v{T0}, v{T0+1}")
            e(f"v_cmp_gt_f32 vcc, v{T0}, v{THR}")
            rl, bl = f"L_attn_rare{slot}", f"L_attn_back{slot}"
            e(f"s_cbranch_vccnz {rl}")
            e.label(bl)
            rares.append((rl, bl))
            for i in range(8):
                e(f"v_fma_f32 v{S0+i}, v{S0+i}, s33, v{MNEG}")
            for i in range(8):
                e(f"v_exp_f32 v{S0+i}, v{S0+i}")
            e("s_nop 0")
            for i in range(4):
                e(f"v_cvt_pk_bf16_f32 v{P0+i}, v{S0+2*i}, v{S0+2*i+1}")
            e(f"v_add_f32 v{T0}, v{S0}, v{S0+1}")
            e(f"v_add_f32 v{T0+1}, v{S0+2}, v{S0+3}")
            e(f"v_add_f32 v{T0+2}, v{S0+4}, v{S0+5}")
            e(f"v_add_f32 v{T0+3}, v{S0+6}, v{S0+7}")
            e(f"v_add_f32 v{T0}, v{T0}, v{T0+1}")
            e(f"v_add_f32 v{T0+2}, v{T0+2}, v{T0+3}")
            e(f"v_add_f32 v{T0}, v{T0}, v{T0+2}")
            e(f"v_add_f32 v{LSUM}, v{LSUM}, v{T0}")
        e("s_waitcnt vmcnt(24)")
        if compute:
            for j in range(8):
                for hb in range(2):
                    r = VF + j * 4 + hb * 2
                    e(f"ds_read_b64_tr_b16 v[{r}:{r+1}], v{14+j} offset:{slot*8192 + hb*4096}")
            e("s_waitcnt lgkmcnt(0)")
        issue("V", slot, 15)
        if compute:
            for j in range(8):
                r = VF + j * 4
                e(f"v_mfma_f32_16x16x32_bf16 v[{OA+4*j}:{OA+4*j+3}], v[{r}:{r+3}], v[{P0}:{P0+3}], v[{OA+4*j}:{OA+4*j+3}]")
    e("s_add_u32 s34, s34, 1")
    e("s_cmp_lt_u32 s34, 8")
    e("s_cbranch_scc1 L_attn_loop")
    CB = 131072
    e("s_nop 7")
    e("s_nop 7")
    e("v_lshl_add_u32 v40, v22, 0, 0")
    e("s_lshl_b32 s28, s3, 11")
    e(f"s_add_u32 s28, s28, {CB}")
    e("v_lshlrev_b32 v40, 9, v22")
    e("v_lshl_add_u32 v40, v3, 4, v40")
    e("v_add_u32 v40, s28, v40")
    e("s_lshl_b32 s29, s3, 2")
    e("v_lshlrev_b32 v41, 4, v22")
    e("v_add_u32 v41, s29, v41")
    e("v_lshlrev_b32 v42, 2, v41")
    e("v_lshl_add_u32 v42, v3, 2, v42")
    e("v_cmp_gt_u32 vcc, 4, v22")
    e("s_and_saveexec_b64 s[30:31], vcc")
    for j in range(8):
        e(f"ds_write_b128 v40, v[{OA+4*j}:{OA+4*j+3}] offset:{64*j}")
    e(f"ds_write_b32 v41, v{MREF} offset:{CB+8192-65536}") if False else None
    e(f"v_add_u32 v41, {CB+8192}, v41")
    e(f"v_add_u32 v42, {CB+8192+64}, v42")
    e(f"ds_write_b32 v41, v{MREF}")
    e(f"ds_write_b32 v42, v{LSUM}")
    e("s_mov_b64 exec, s[30:31]")
    e("s_waitcnt lgkmcnt(0)")
    e("s_barrier")
    e("s_lshl_b32 s28, s3, 4")
    e(f"s_add_u32 s28, s28, {CB+8192}")
    e("v_mov_b32 v40, s28")
    e("ds_read_b128 v[44:47], v40")
    e("s_lshl_b32 s28, s3, 6")
    e(f"s_add_u32 s28, s28, {CB+8192+64}")
    e("v_mov_b32 v41, s28")
    for w in range(4):
        e(f"ds_read_b128 v[{48+4*w}:{48+4*w+3}], v41 offset:{16*w}")
    e("s_lshl_b32 s28, s3, 9")
    e(f"s_add_u32 s28, s28, {CB}")
    e("v_lshlrev_b32 v42, 3, v2")
    e("v_add_u32 v42, s28, v42")
    for w in range(4):
        e(f"ds_read_b64 v[{64+2*w}:{64+2*w+1}], v42 offset:{2048*w}")
    e("s_waitcnt lgkmcnt(0)")
    e("v_max3_f32 v72, v44, v45, v46")
    e("v_max_f32 v72, v72, v47")
    for w in range(4):
        e(f"v_sub_f32 v{44+w}, v{44+w}, v72")
        e(f"v_mul_f32 v{44+w}, s33, v{44+w}")
        e(f"v_exp_f32 v{44+w}, v{44+w}")
    for w in range(4):
        e(f"v_add_f32 v{48+4*w}, v{48+4*w}, v{49+4*w}")
        e(f"v_add_f32 v{50+4*w}, v{50+4*w}, v{51+4*w}")
        e(f"v_add_f32 v{48+4*w}, v{48+4*w}, v{50+4*w}")
    e("v_mul_f32 v73, v44, v48")
    e("v_mul_f32 v74, v44, v64")
    e("v_mul_f32 v75, v44, v65")
    for w in range(1, 4):
        e(f"v_fmac_f32 v73, v{44+w}, v{48+4*w}")
        e(f"v_fmac_f32 v74, v{44+w}, v{64+2*w}")
        e(f"v_fmac_f32 v75, v{44+w}, v{65+2*w}")
    e("s_lshr_b32 s28, s2, 2")
    e("s_lshl_b32 s28, s28, 2")
    e("s_add_u32 s28, s28, s3")
    e("s_lshl_b32 s28, s28, 2")
    e("s_and_b32 s29, s2, 3")
    e("s_add_u32 s28, s28, s29")
    e("s_lshl_b32 s29, s28, 9")
    e(f"s_add_u32 s29, s29, {PO_OFF}")
    e("v_lshlrev_b32 v42, 3, v2")
    e("buffer_store_dwordx2 v[74:75], v42, s[24:27], s29 offen")
    e("s_lshl_b32 s29, s28, 3")
    e(f"s_add_u32 s29, s29, {PML_OFF}")
    e("v_mov_b32 v76, v72")
    e("v_mov_b32 v77, v73")
    e("v_mov_b32 v43, 0")
    e("v_cmp_eq_u32 vcc, 0, v2")
    e("s_and_saveexec_b64 s[30:31], vcc")
    e("buffer_store_dwordx2 v[76:77], v43, s[24:27], s29 offen")
    e("s_waitcnt vmcnt(0)")
    e.label(f"L_{name}_end")
    e("s_endpgm")
    for rl, bl in rares:
        e.label(rl)
        e(f"ds_bpermute_b32 v{T0+1}, v160, v{T0}")
        e("s_waitcnt lgkmcnt(0)")
        e(f"v_max_f32 v{T0}, v{T0}, v{T0+1}")
        e(f"ds_bpermute_b32 v{T0+1}, v161, v{T0}")
        e("s_waitcnt lgkmcnt(0)")
        e(f"v_max3_f32 v{T0}, v{T0}, v{T0+1}, v{MREF}")
        e(f"v_sub_f32 v{T0+1}, v{MREF}, v{T0}")
        e(f"v_mul_f32 v{T0+1}, s33, v{T0+1}")
        e(f"v_exp_f32 v{T0+1}, v{T0+1}")
        e("s_nop 0")
        for i in range(32):
            e(f"v_mul_f32 v{OA+i}, v{OA+i}, v{T0+1}")
        e(f"v_mul_f32 v{LSUM}, v{LSUM}, v{T0+1}")
        e(f"v_mov_b32 v{MREF}, v{T0}")
        e(f"v_mul_f32 v{MNEG}, s33, v{T0}")
        e(f"v_sub_f32 v{MNEG}, 0, v{MNEG}")
        e(f"v_add_f32 v{THR}, 0x40a00000, v{T0}")
        e(f"s_branch {bl}")
    return kernel_desc(name, 168)


def gen_wo(e):
    name = "wo_kernel"
    kernel_begin(e, name)
    e("s_cmp_ge_u32 s2, 256")
    e(f"s_cbranch_scc1 L_{name}_end")
    e("s_load_dwordx2 s[6:7], s[0:1], 32")
    e("s_load_dwordx2 s[8:9], s[0:1], 96")
    e("v_lshrrev_b32 v1, 6, v0")
    e("v_and_b32 v2, 63, v0")
    e("s_nop 0")
    e("v_readfirstlane_b32 s3, v1")
    e("s_lshr_b32 s10, s2, 4")
    e("s_and_b32 s11, s2, 15")
    e("s_waitcnt lgkmcnt(0)")
    srd(e, 16, 6, 7, 4 << 20)
    srd(e, 20, 8, 9, WS_USED)
    e("v_lshrrev_b32 v3, 2, v2")
    e("v_lshlrev_b32 v3, 10, v3")
    e("v_and_b32 v4, 3, v2")
    e("v_lshl_add_u32 v3, v4, 4, v3")
    e("s_lshl_b32 s24, s10, 18")
    e("s_lshl_b32 s25, s11, 6")
    e("s_add_u32 s24, s24, s25")
    e("s_lshl_b32 s25, s3, 14")
    e("s_add_u32 s24, s24, s25")
    e("s_lshl_b32 s26, s3, 10")
    e("s_add_u32 s26, s26, 4096")
    for it in range(4):
        e("s_mov_b32 m0, s26")
        e("s_nop 0")
        e("buffer_load_dwordx4 v3, s[16:19], s24 offen lds")
        if it < 3:
            e("s_add_u32 s26, s26, 4096")
            e("s_add_u32 s24, s24, 65536")
    e("v_lshrrev_b32 v5, 5, v0")
    e("v_bfe_u32 v6, v0, 4, 1")
    e("v_and_b32 v7, 15, v0")
    e("v_lshl_add_u32 v8, v5, 5, v6")
    e("s_lshl_b32 s25, s10, 1")
    e("v_add_u32 v8, s25, v8")
    e("v_lshlrev_b32 v9, 5, v8")
    e(f"s_mov_b32 s27, {PML_OFF}")
    e("buffer_load_dwordx4 v[16:19], v9, s[20:23], s27 offen")
    e("buffer_load_dwordx4 v[20:23], v9, s[20:23], s27 offen offset:16")
    e("v_lshlrev_b32 v9, 11, v8")
    e("v_lshl_add_u32 v9, v7, 5, v9")
    e(f"s_mov_b32 s27, {PO_OFF}")
    for s in range(4):
        e(f"buffer_load_dwordx4 v[{24+8*s}:{24+8*s+3}], v9, s[20:23], s27 offen offset:{512*s}")
        e(f"buffer_load_dwordx4 v[{28+8*s}:{28+8*s+3}], v9, s[20:23], s27 offen offset:{512*s+16}")
    e(f"s_mov_b32 s33, 0x{LOG2E:08x}")
    e("s_waitcnt vmcnt(8)")
    e("v_max3_f32 v60, v16, v18, v20")
    e("v_max_f32 v60, v60, v22")
    for s in range(4):
        e(f"v_sub_f32 v{16+2*s}, v{16+2*s}, v60")
        e(f"v_mul_f32 v{16+2*s}, s33, v{16+2*s}")
        e(f"v_exp_f32 v{16+2*s}, v{16+2*s}")
    e("s_nop 0")
    e("v_mul_f32 v61, v16, v17")
    for s in range(1, 4):
        e(f"v_fmac_f32 v61, v{16+2*s}, v{17+2*s}")
    e("v_rcp_f32 v61, v61")
    e("s_nop 0")
    for s in range(4):
        e(f"v_mul_f32 v{16+2*s}, v{16+2*s}, v61")
    e("s_waitcnt vmcnt(0)")
    for k in range(8):
        e(f"v_mul_f32 v{64+k}, v16, v{24+k}")
        for s in range(1, 4):
            e(f"v_fmac_f32 v{64+k}, v{16+2*s}, v{24+8*s+k}")
    for k in range(4):
        e(f"v_cvt_pk_bf16_f32 v{72+k}, v{64+2*k}, v{65+2*k}")
    e("v_lshlrev_b32 v9, 4, v0")
    e("ds_write_b128 v9, v[72:75]")
    e("s_waitcnt vmcnt(0) lgkmcnt(0)")
    e("s_barrier")
    e("s_cmp_ge_u32 s3, 2")
    e(f"s_cbranch_scc1 L_{name}_end")
    e("v_lshrrev_b32 v3, 4, v2")
    e("v_bfe_u32 v4, v2, 2, 2")
    e("v_and_b32 v5, 3, v2")
    e("v_lshl_add_u32 v6, v3, 3, v4")
    e("v_lshlrev_b32 v6, 6, v6")
    e("v_lshl_add_u32 v6, v5, 3, v6")
    e("s_lshl_b32 s25, s3, 5")
    e("v_add_u32 v6, s25, v6")
    e("v_and_b32 v7, 7, v2")
    e("v_lshlrev_b32 v7, 9, v7")
    e("v_lshl_add_u32 v7, v3, 4, v7")
    A0, B0 = 16, 48
    for s in range(8):
        e(f"ds_read_b64_tr_b16 v[{A0+4*s}:{A0+4*s+1}], v6 offset:{4096 + s*2048}")
        e(f"ds_read_b64_tr_b16 v[{A0+4*s+2}:{A0+4*s+3}], v6 offset:{4096 + s*2048 + 256}")
        e(f"ds_read_b128 v[{B0+4*s}:{B0+4*s+3}], v7 offset:{s*64}")
        if s % 4 == 3:
            e("s_waitcnt lgkmcnt(0)")
    for s in range(8):
        c = "0" if s == 0 else "v[8:11]"
        e(f"v_mfma_f32_16x16x32_bf16 v[8:11], v[{A0+4*s}:{A0+4*s+3}], v[{B0+4*s}:{B0+4*s+3}], {c}")
    e("v_and_b32 v4, 15, v2")
    e("v_lshlrev_b32 v5, 15, v4")
    e("v_lshl_add_u32 v5, v3, 4, v5")
    e("s_lshl_b32 s24, s10, 11")
    e("s_lshl_b32 s25, s11, 7")
    e("s_add_u32 s24, s24, s25")
    e("s_lshl_b32 s25, s3, 6")
    e("s_add_u32 s24, s24, s25")
    e(f"s_add_u32 s24, s24, {WP_OFF}")
    e("s_nop 7")
    e("v_cmp_gt_u32 vcc, 8, v4")
    e("s_and_saveexec_b64 s[30:31], vcc")
    e("buffer_store_dwordx4 v[8:11], v5, s[20:23], s24 offen")
    e.label(f"L_{name}_end")
    e("s_endpgm")
    return kernel_desc(name, 80)


def gen_final(e):
    name = "final_kernel"
    kernel_begin(e, name)
    e("s_cmp_ge_u32 s2, 256")
    e(f"s_cbranch_scc1 L_{name}_end")
    e("s_load_dwordx2 s[4:5], s[0:1], 0")
    e("s_load_dwordx8 s[8:15], s[0:1], 48")
    e("s_load_dwordx2 s[6:7], s[0:1], 80")
    e("s_load_dwordx2 s[16:17], s[0:1], 96")
    e("v_lshrrev_b32 v1, 6, v0")
    e("v_and_b32 v2, 63, v0")
    e("s_nop 0")
    e("v_readfirstlane_b32 s3, v1")
    e("s_lshr_b32 s18, s2, 5")
    e("s_and_b32 s19, s2, 31")
    e("s_waitcnt lgkmcnt(0)")
    srd(e, 20, 4, 5, 8192)
    srd(e, 24, 8, 9, 3584)
    srd(e, 28, 10, 11, 3584)
    srd(e, 32, 12, 13, 3584)
    srd(e, 36, 14, 15, 2)
    srd(e, 40, 6, 7, 8192)
    srd(e, 44, 16, 17, WS_USED)
    e("v_lshlrev_b32 v3, 2, v0")
    e("s_lshl_b32 s48, s18, 15")
    e(f"s_add_u32 s48, s48, {WP_OFF}")
    for i in range(16):
        e(f"s_add_u32 s49, s48, {2048*i}")
        e(f"buffer_load_dword v{16+i}, v3, s[44:47], s49 offen")
    e("v_lshlrev_b32 v4, 1, v0")
    e("s_lshl_b32 s49, s18, 10")
    e("buffer_load_ushort v32, v4, s[20:23], s49 offen")
    e("v_and_b32 v5, 255, v0")
    e("v_lshlrev_b32 v5, 1, v5")
    W1, B1, W2 = 40, 48, 56
    for j in range(7):
        e(f"buffer_load_ushort v{W1+j}, v5, s[24:27], 0 offen offset:{512*j}")
        e(f"buffer_load_ushort v{B1+j}, v5, s[28:31], 0 offen offset:{512*j}")
        e(f"buffer_load_ushort v{W2+j}, v5, s[32:35], 0 offen offset:{512*j}")
    e("v_mov_b32 v6, 0")
    e("buffer_load_ushort v33, v6, s[36:39], 0 offen")
    e("s_waitcnt vmcnt(22)")
    for i in range(1, 16):
        e(f"v_add_f32 v16, v16, v{16+i}")
    bf16r(e, 16)
    e("v_lshlrev_b32 v32, 16, v32")
    e("v_add_f32 v16, v16, v32")
    bf16r(e, 16)
    e("ds_write_b32 v3, v16")
    e("s_waitcnt lgkmcnt(0)")
    e("s_barrier")
    e("v_lshlrev_b32 v7, 5, v2")
    e("ds_read_b128 v[16:19], v7")
    e("ds_read_b128 v[20:23], v7 offset:16")
    e("s_waitcnt lgkmcnt(0)")
    layernorm8(e, 16, 64, 52)
    layernorm8(e, 16, 64, 52)
    e("s_lshr_b32 s50, s3, 2")
    e("s_lshl_b32 s51, s19, 1")
    e("s_add_u32 s51, s51, s50")
    e("s_nop 0")
    for k in range(8):
        e(f"v_readlane_b32 s{56+k}, v{16+k}, s51")
    e("s_waitcnt vmcnt(0)")
    for j in range(7):
        e(f"v_lshlrev_b32 v{W1+j}, 16, v{W1+j}")
        e(f"v_lshlrev_b32 v{B1+j}, 16, v{B1+j}")
        e(f"v_lshlrev_b32 v{W2+j}, 16, v{W2+j}")
    import struct, math
    k0 = -2.0 * math.sqrt(2.0 / math.pi) * math.log2(math.e)
    k1 = k0 * 0.044715
    f2u = lambda f: struct.unpack("<I", struct.pack("<f", f))[0]
    e(f"s_mov_b32 s64, 0x{f2u(k0):08x}")
    e(f"s_mov_b32 s65, 0x{f2u(k1):08x}")
    e("v_mov_b32 v79, s64")
    ACC = 24
    for k in range(8):
        e(f"v_mov_b32 v{ACC+k}, 0")
    for j in range(7):
        for k in range(0, 8, 2):
            a, b_ = 64, 65
            e(f"v_mul_f32 v{a}, s{56+k}, v{W1+j}")
            e(f"v_mul_f32 v{b_}, s{57+k}, v{W1+j}")
            e(f"v_cvt_pk_bf16_f32 v66, v{a}, v{b_}")
            e(f"v_lshlrev_b32 v{a}, 16, v66")
            e(f"v_and_b32 v{b_}, 0xffff0000, v66")
            e(f"v_add_f32 v{a}, v{a}, v{B1+j}")
            e(f"v_add_f32 v{b_}, v{b_}, v{B1+j}")
            e(f"v_cvt_pk_bf16_f32 v66, v{a}, v{b_}")
            e(f"v_lshlrev_b32 v{a}, 16, v66")
            e(f"v_and_b32 v{b_}, 0xffff0000, v66")
            e(f"v_mul_f32 v67, v{a}, v{a}")
            e(f"v_mul_f32 v68, v{b_}, v{b_}")
            e(f"v_fma_f32 v67, v67, s65, v79")
            e(f"v_fma_f32 v68, v68, s65, v79")
            e(f"v_mul_f32 v67, v67, v{a}")
            e(f"v_mul_f32 v68, v68, v{b_}")
            e(f"v_exp_f32 v67, v67")
            e(f"v_exp_f32 v68, v68")
            e(f"s_nop 0")
            e(f"v_add_f32 v67, 1.0, v67")
            e(f"v_add_f32 v68, 1.0, v68")
            e(f"v_rcp_f32 v67, v67")
            e(f"v_rcp_f32 v68, v68")
            e(f"s_nop 0")
            e(f"v_mul_f32 v67, v67, v{a}")
            e(f"v_mul_f32 v68, v68, v{b_}")
            e(f"v_cvt_pk_bf16_f32 v66, v67, v68")
            e(f"v_lshlrev_b32 v67, 16, v66")
            e(f"v_and_b32 v68, 0xffff0000, v66")
            e(f"v_fmac_f32 v{ACC+k}, v67, v{W2+j}")
            e(f"v_fmac_f32 v{ACC+k+1}, v68, v{W2+j}")
    for mod in ["quad_perm:[1,0,3,2] row_mask:0xf", "quad_perm:[2,3,0,1] row_mask:0xf",
                "row_half_mirror row_mask:0xf", "row_mirror row_mask:0xf",
                "row_bcast:15 row_mask:0xa", "row_bcast:31 row_mask:0xc"]:
        e("s_nop 1")
        for k in range(8):
            e(f"v_add_f32_dpp v{ACC+k}, v{ACC+k}, v{ACC+k} {mod} bank_mask:0xf")
    e("s_lshl_b32 s50, s3, 5")
    e("s_add_u32 s50, s50, 2048")
    e("v_mov_b32 v7, s50")
    e("v_cmp_eq_u32 vcc, 63, v2")
    e("s_and_saveexec_b64 s[66:67], vcc")
    e(f"ds_write_b128 v7, v[{ACC}:{ACC+3}]")
    e(f"ds_write_b128 v7, v[{ACC+4}:{ACC+7}] offset:16")
    e("s_mov_b64 exec, s[66:67]")
    e("s_waitcnt lgkmcnt(0)")
    e("s_barrier")
    e("s_cmp_lg_u32 s3, 0")
    e(f"s_cbranch_scc1 L_{name}_end")
    e("v_cmp_gt_u32 vcc, 16, v2")
    e("s_and_saveexec_b64 s[66:67], vcc")
    e("v_lshrrev_b32 v7, 3, v2")
    e("v_lshlrev_b32 v7, 7, v7")
    e("v_and_b32 v8, 7, v2")
    e("v_lshl_add_u32 v7, v8, 2, v7")
    for w in range(4):
        e(f"ds_read_b32 v{16+w}, v7 offset:{2048+32*w}")
    e("s_lshl_b32 s50, s19, 6")
    e("v_lshlrev_b32 v8, 2, v2")
    e("v_add_u32 v8, s50, v8")
    e("ds_read_b32 v20, v8")
    e("s_waitcnt lgkmcnt(0)")
    e("v_add_f32 v16, v16, v17")
    e("v_add_f32 v18, v18, v19")
    e("v_add_f32 v16, v16, v18")
    bf16r(e, 16)
    e("v_lshlrev_b32 v33, 16, v33")
    e("v_add_f32 v16, v16, v33")
    bf16r(e, 16)
    e("v_add_f32 v16, v16, v20")
    e("v_cvt_pk_bf16_f32 v16, v16, v16")
    e("v_lshrrev_b32 v8, 1, v8")
    e("s_lshl_b32 s50, s18, 10")
    e("buffer_store_short v16, v8, s[40:43], s50 offen")
    e.label(f"L_{name}_end")
    e("s_endpgm")
    return kernel_desc(name, 80)


def main():
    opt = {}
    for a in sys.argv[2:]:
        k, v = a.split("=")
        opt[k] = {"0": False, "1": True}.get(v, v)
    e = E()
    descs = []
    e.raw(HEADER.rstrip("\n"))
    only = opt.get("only", "")
    ks = [("qproj_kernel", 256, 256, 24576), ("attn_kernel", 256, 256, 131072 + 8192 + 512),
          ("wo_kernel", 256, 256, 20480), ("final_kernel", 256, 512, 4096)]
    for k, g, b, l in ks:
        if only and k.split("_")[0] not in only.split(","):
            continue
        e.raw(f"; @launch kernel={k} grid=({g},1,1) block=({b},1,1) lds={l}")
    e.raw('.amdgcn_target "amdgcn-amd-amdhsa--gfx950"')
    e.raw(".text")
    descs.append(gen_qproj(e))
    descs.append(gen_attn(e, opt))
    descs.append(gen_wo(e))
    descs.append(gen_final(e))
    e.raw('.section .rodata,"a"')
    for d in descs:
        e.raw(".p2align 6")
        e.raw(d.rstrip("\n"))
    open(sys.argv[1], "w").write(e.text())


main()
```

```python
import sys

HEADER = open("sequential_preLN__gqa_block_cached__mixer_token_mlp__decode.s.ref").read().split("; Override launch")[0]

Q_OFF = 0x0
PO_OFF = 0x10000
PML_OFF = 0x90000
WP_OFF = 0xA0000
WS_USED = 0xE0000

LOG2E = 0x3FB8AA3B
SCALE = 0x3DB504F3
NEGBIG = 0xF149F2CA


class E:
    def __init__(self):
        self.lines = []
        self.lbl = 0

    def __call__(self, s):
        for ln in s.strip("\n").split("\n"):
            self.lines.append("    " + ln.strip())

    def label(self, name):
        self.lines.append(name + ":")

    def raw(self, s):
        self.lines.append(s)

    def newlabel(self, base):
        self.lbl += 1
        return f"L_{base}_{self.lbl}"

    def text(self):
        return "\n".join(self.lines) + "\n"


def kernel_begin(e, name):
    e.raw(f".globl {name}")
    e.raw(".p2align 8")
    e.raw(f".type {name},@function")
    e.label(name)


def kernel_desc(name, vgpr, sgpr=102):
    if STAMP["on"]:
        vgpr = 256
    acc = (vgpr + 3) // 4 * 4
    return f""".amdhsa_kernel {name}
  .amdhsa_next_free_vgpr {vgpr}
  .amdhsa_next_free_sgpr {sgpr}
  .amdhsa_accum_offset {acc}
  .amdhsa_group_segment_fixed_size 0
  .amdhsa_kernarg_size 104
  .amdhsa_user_sgpr_count 2
  .amdhsa_user_sgpr_kernarg_segment_ptr 1
  .amdhsa_system_sgpr_workgroup_id_x 1
.end_amdhsa_kernel
"""


STAMP = {"on": False}


def stamp(e, kidx, which):
    if not STAMP["on"]:
        return
    e("s_load_dwordx2 s[90:91], s[0:1], 88")
    e("s_memrealtime s[92:93]")
    e("s_waitcnt lgkmcnt(0)")
    e(f"s_sub_u32 s90, s90, {512*kidx}")
    e("s_subb_u32 s91, s91, 0")
    if which == 0:
        e("s_not_b32 s92, s92")
    e("s_mov_b64 s[94:95], exec")
    e("s_mov_b64 exec, 1")
    e(f"v_mov_b32 v250, {kidx*8 + which*4}")
    e("v_mov_b32 v251, s92")
    e("global_atomic_umax v250, v251, s[90:91]")
    e("s_waitcnt vmcnt(0)")
    e("s_mov_b64 exec, s[94:95]")


def srd(e, d, base_lo, base_hi, nbytes):
    e(f"s_mov_b32 s{d}, s{base_lo}")
    e(f"s_mov_b32 s{d+1}, s{base_hi}")
    e(f"s_mov_b32 s{d+2}, {nbytes}")
    e(f"s_mov_b32 s{d+3}, 0x00020000")


def wave_allreduce_add(e, v, t, s0):
    e(f"s_nop 1")
    e(f"v_add_f32_dpp v{v}, v{v}, v{v} quad_perm:[1,0,3,2] row_mask:0xf bank_mask:0xf")
    e(f"s_nop 1")
    e(f"v_add_f32_dpp v{v}, v{v}, v{v} quad_perm:[2,3,0,1] row_mask:0xf bank_mask:0xf")
    e(f"s_nop 1")
    e(f"v_add_f32_dpp v{v}, v{v}, v{v} row_half_mirror row_mask:0xf bank_mask:0xf")
    e(f"s_nop 1")
    e(f"v_add_f32_dpp v{v}, v{v}, v{v} row_mirror row_mask:0xf bank_mask:0xf")
    e(f"s_nop 1")
    e(f"v_readlane_b32 s{s0}, v{v}, 0")
    e(f"v_readlane_b32 s{s0+1}, v{v}, 16")
    e(f"v_readlane_b32 s{s0+2}, v{v}, 32")
    e(f"v_readlane_b32 s{s0+3}, v{v}, 48")
    e(f"s_nop 1")
    e(f"v_mov_b32 v{t}, s{s0}")
    e(f"v_add_f32 v{t}, s{s0+1}, v{t}")
    e(f"v_add_f32 v{v}, s{s0+2}, v{t}")
    e(f"v_add_f32 v{v}, s{s0+3}, v{v}")


def bf16r(e, v, t=None):
    e(f"v_cvt_pk_bf16_f32 v{v}, v{v}, v{v}")
    e(f"v_lshlrev_b32 v{v}, 16, v{v}")


def layernorm8(e, x, t, s0):
    e(f"v_add_f32 v{t}, v{x}, v{x+1}")
    for i in range(2, 8):
        e(f"v_add_f32 v{t}, v{t}, v{x+i}")
    wave_allreduce_add(e, t, t + 1, s0)
    e(f"v_mul_f32 v{t}, 0x3b000000, v{t}")
    for i in range(8):
        e(f"v_sub_f32 v{t+2+i}, v{x+i}, v{t}")
    e(f"v_mul_f32 v{t+10}, v{t+2}, v{t+2}")
    for i in range(1, 8):
        e(f"v_fmac_f32 v{t+10}, v{t+2+i}, v{t+2+i}")
    wave_allreduce_add(e, t + 10, t + 1, s0)
    e(f"v_mul_f32 v{t+10}, 0x3b000000, v{t+10}")
    bf16r(e, t + 10)
    e(f"v_add_f32 v{t+10}, 0x3727c5ac, v{t+10}")
    bf16r(e, t + 10)
    e(f"v_sqrt_f32 v{t+10}, v{t+10}")
    e(f"s_nop 0")
    bf16r(e, t + 10)
    e(f"v_rcp_f32 v{t+11}, v{t+10}")
    bf16r(e, t)
    for i in range(8):
        e(f"v_sub_f32 v{x+i}, v{x+i}, v{t}")
    for i in range(0, 8, 2):
        e(f"v_cvt_pk_bf16_f32 v{t+2}, v{x+i}, v{x+i+1}")
        e(f"v_lshlrev_b32 v{x+i}, 16, v{t+2}")
        e(f"v_and_b32 v{x+i+1}, 0xffff0000, v{t+2}")
    for i in range(8):
        e(f"v_mul_f32 v{t+2}, v{x+i}, v{t+11}")
        e(f"v_fma_f32 v{t+3}, -v{t+2}, v{t+10}, v{x+i}")
        e(f"v_fma_f32 v{x+i}, v{t+3}, v{t+11}, v{t+2}")
    for i in range(0, 8, 2):
        e(f"v_cvt_pk_bf16_f32 v{t+2}, v{x+i}, v{x+i+1}")
        e(f"v_lshlrev_b32 v{x+i}, 16, v{t+2}")
        e(f"v_and_b32 v{x+i+1}, 0xffff0000, v{t+2}")


def unpack8(e, src, dst):
    for i in range(4):
        e(f"v_lshlrev_b32 v{dst+2*i}, 16, v{src+i}")
        e(f"v_and_b32 v{dst+2*i+1}, 0xffff0000, v{src+i}")


def gen_qproj(e):
    name = "qproj_kernel"
    KIDX = 0
    kernel_begin(e, name)
    e("s_cmp_ge_u32 s2, 256")
    e(f"s_cbranch_scc1 L_{name}_exit")
    stamp(e, KIDX, 0)
    e("s_load_dwordx2 s[4:5], s[0:1], 0")
    e("s_load_dwordx2 s[6:7], s[0:1], 24")
    e("s_load_dwordx2 s[8:9], s[0:1], 96")
    e("v_lshrrev_b32 v1, 6, v0")
    e("v_and_b32 v2, 63, v0")
    e("s_nop 0")
    e("v_readfirstlane_b32 s3, v1")
    e("s_waitcnt lgkmcnt(0)")
    srd(e, 12, 4, 5, 8192)
    srd(e, 16, 6, 7, 4 << 20)
    srd(e, 20, 8, 9, WS_USED)
    e("v_lshrrev_b32 v3, 1, v2")
    e("v_lshlrev_b32 v3, 13, v3")
    e("v_and_b32 v4, 1, v2")
    e("v_lshl_add_u32 v3, v4, 4, v3")
    e("s_lshl_b32 s24, s2, 5")
    e("s_lshl_b32 s25, s3, 18")
    e("s_add_u32 s24, s24, s25")
    e("s_lshl_b32 s26, s3, 10")
    e("s_add_u32 s26, s26, 8192")
    for i in range(4):
        e(f"s_mov_b32 m0, s26")
        e(f"s_nop 0")
        e(f"buffer_load_dwordx4 v3, s[16:19], s24 offen lds")
        if i < 3:
            e(f"s_add_u32 s26, s26, 4096")
            e(f"s_add_u32 s24, s24, {128*8192}")
    e("s_lshl_b32 s27, s3, 11")
    e("v_lshlrev_b32 v5, 4, v2")
    e("buffer_load_dwordx4 v[8:11], v5, s[12:15], s27 offen")
    e("buffer_load_dwordx4 v[12:15], v5, s[12:15], s27 offen offset:1024")
    e("s_waitcnt vmcnt(0)")
    for r in range(2):
        unpack8(e, 8 + 4 * r, 16)
        layernorm8(e, 16, 32, 28)
        for i in range(4):
            e(f"v_cvt_pk_bf16_f32 v{24+i}, v{16+2*i}, v{16+2*i+1}")
        e(f"v_add_u32 v6, s27, v5")
        e(f"ds_write_b128 v6, v[24:27] offset:{1024*r}")
    e("s_waitcnt vmcnt(0) lgkmcnt(0)")
    e("s_barrier")
    e("s_cmp_lg_u32 s3, 0")
    e(f"s_cbranch_scc1 L_{name}_end")
    e("v_lshrrev_b32 v3, 4, v2")
    e("v_bfe_u32 v4, v2, 2, 2")
    e("v_and_b32 v5, 3, v2")
    e("v_lshl_add_u32 v6, v3, 3, v4")
    e("v_lshlrev_b32 v6, 5, v6")
    e("v_lshl_add_u32 v6, v5, 3, v6")
    e("v_and_b32 v7, 7, v2")
    e("v_lshlrev_b32 v7, 10, v7")
    e("v_lshl_add_u32 v7, v3, 4, v7")
    A0, B0 = 16, 80
    for s in range(16):
        e(f"ds_read_b64_tr_b16 v[{A0+4*s}:{A0+4*s+1}], v6 offset:{8192 + s*1024}")
        e(f"ds_read_b64_tr_b16 v[{A0+4*s+2}:{A0+4*s+3}], v6 offset:{8192 + s*1024 + 128}")
        e(f"ds_read_b128 v[{B0+4*s}:{B0+4*s+3}], v7 offset:{s*64}")
        if s % 4 == 3:
            e("s_waitcnt lgkmcnt(0)")
    for s in range(16):
        c = "0" if s == 0 else "v[8:11]"
        e(f"v_mfma_f32_16x16x32_bf16 v[8:11], v[{A0+4*s}:{A0+4*s+3}], v[{B0+4*s}:{B0+4*s+3}], {c}")
    e("s_nop 7")
    e("s_nop 3")
    e("v_cvt_pk_bf16_f32 v12, v8, v9")
    e("v_cvt_pk_bf16_f32 v13, v10, v11")
    e("v_and_b32 v4, 15, v2")
    e("v_lshlrev_b32 v5, 13, v4")
    e("v_lshl_add_u32 v5, v3, 3, v5")
    e("s_lshl_b32 s24, s2, 5")
    e(f"s_add_u32 s24, s24, {Q_OFF}")
    e("v_cmp_gt_u32 vcc, 8, v4")
    e("s_and_saveexec_b64 s[30:31], vcc")
    e("buffer_store_dwordx2 v[12:13], v5, s[20:23], s24 offen")
    e.label(f"L_{name}_end")
    stamp(e, KIDX, 1)
    e.label(f"L_{name}_exit")
    e("s_endpgm")
    return kernel_desc(name, 144)


def gen_attn(e, opt):
    name = "attn_kernel"
    KIDX = 1
    NT = opt.get("nt", "")
    compute = opt.get("compute", True)
    kernel_begin(e, name)
    e("s_cmp_ge_u32 s2, 256")
    e(f"s_cbranch_scc1 L_{name}_exit")
    stamp(e, KIDX, 0)
    e("s_load_dwordx4 s[4:7], s[0:1], 8")
    e("s_load_dwordx2 s[8:9], s[0:1], 96")
    e("v_lshrrev_b32 v1, 6, v0")
    e("v_and_b32 v2, 63, v0")
    e("s_nop 0")
    e("v_readfirstlane_b32 s3, v1")
    e("v_lshrrev_b32 v3, 4, v2")
    e("v_and_b32 v22, 15, v2")
    e("s_lshl_b32 s10, s2, 19")
    e("s_lshl_b32 s11, s3, 17")
    e("s_add_u32 s10, s10, s11")
    e("s_waitcnt lgkmcnt(0)")
    e("s_add_u32 s16, s4, s10")
    e("s_addc_u32 s17, s5, 0")
    e("s_mov_b32 s18, 131072")
    e("s_mov_b32 s19, 0x00020000")
    e("s_add_u32 s20, s6, s10")
    e("s_addc_u32 s21, s7, 0")
    e("s_mov_b32 s22, 131072")
    e("s_mov_b32 s23, 0x00020000")
    srd(e, 24, 8, 9, WS_USED)
    QF = 24
    for i in range(16):
        e(f"v_mov_b32 v{QF+i}, 0")
    e("v_lshlrev_b32 v4, 8, v22")
    e("v_lshl_add_u32 v4, v3, 4, v4")
    e("s_lshr_b32 s12, s2, 2")
    e("s_lshl_b32 s12, s12, 10")
    e(f"s_add_u32 s12, s12, {Q_OFF}")
    e("v_cmp_gt_u32 vcc, 4, v22")
    e("s_and_saveexec_b64 s[30:31], vcc")
    for i in range(4):
        e(f"buffer_load_dwordx4 v[{QF+4*i}:{QF+4*i+3}], v4, s[24:27], s12 offen offset:{64*i}")
    e("s_mov_b64 exec, s[30:31]")
    for i in range(4):
        e(f"v_add_u32 v23, {4*i}, v3")
        e(f"v_xor_b32 v23, v23, v22")
        e(f"v_lshlrev_b32 v23, 4, v23")
        e(f"v_lshl_add_u32 v{4+i}, v3, 8, v23")
    for i in range(2):
        e(f"v_add_u32 v23, {4*i}, v3")
        e(f"v_lshlrev_b32 v23, 1, v23")
        e(f"v_xor_b32 v23, v23, v22")
        e(f"v_lshlrev_b32 v23, 4, v23")
        e(f"v_lshl_add_u32 v{8+i}, v3, 8, v23")
    e("s_lshl_b32 s13, s3, 15")

    def issue(kind, slot, soff):
        srdn = 16 if kind == "K" else 20
        ldsoff = (0 if kind == "K" else 16384) + slot * 8192
        for half in range(2):
            e(f"s_add_u32 s28, s13, {ldsoff + half*4096}")
            e(f"s_mov_b32 m0, s28")
            if half == 1:
                e(f"s_add_u32 s29, s{soff}, 4096")
            else:
                e(f"s_mov_b32 s29, s{soff}")
            for i in range(4):
                vo = (4 + i) if kind == "K" else (8 + (i & 1))
                e(f"buffer_load_dwordx4 v{vo}, s[{srdn}:{srdn+3}], s29 offen offset:{1024*i} {NT} lds")
        e(f"s_add_u32 s{soff}, s{soff}, 8192")

    e("s_mov_b32 s14, 0")
    e("s_mov_b32 s15, 0")
    issue("K", 0, 14)
    issue("V", 0, 15)
    issue("K", 1, 14)
    issue("V", 1, 15)
    for i in range(4):
        e(f"v_add_u32 v23, {4*i}, v3")
        e(f"v_xor_b32 v23, v23, v22")
        e(f"v_lshlrev_b32 v23, 4, v23")
        e(f"v_lshl_add_u32 v23, v22, 8, v23")
        e(f"v_add_u32 v{10+i}, s13, v23")
    e("v_bfe_u32 v40, v2, 2, 2")
    e("v_lshl_add_u32 v40, v3, 2, v40")
    e("v_and_b32 v41, 7, v40")
    e("v_lshlrev_b32 v41, 1, v41")
    e("v_bfe_u32 v42, v2, 1, 1")
    e("v_and_b32 v43, 1, v2")
    e("v_lshlrev_b32 v44, 8, v40")
    e("v_lshl_add_u32 v44, v43, 3, v44")
    e("v_add_u32 v44, s13, v44")
    e("v_add_u32 v44, 16384, v44")
    for j in range(8):
        e(f"v_xor_b32 v23, {2*j}, v41")
        e(f"v_add_u32 v23, v23, v42")
        e(f"v_lshl_add_u32 v{14+j}, v23, 4, v44")
    KF, VF, S0, P0, T0, OA = 40, 72, 104, 112, 116, 128
    MREF, MNEG, THR, LSUM = 124, 125, 126, 127
    for i in range(32):
        e(f"v_mov_b32 v{OA+i}, 0")
    e(f"v_mov_b32 v{MREF}, 0x{NEGBIG:08x}")
    e(f"v_mov_b32 v{THR}, 0x{NEGBIG:08x}")
    e(f"v_mov_b32 v{MNEG}, 0")
    e(f"v_mov_b32 v{LSUM}, 0")
    e(f"s_mov_b32 s32, 0x{SCALE:08x}")
    e(f"s_mov_b32 s33, 0x{LOG2E:08x}")
    e("s_mov_b32 s34, 0")
    e("v_xor_b32 v160, 16, v2")
    e("v_lshlrev_b32 v160, 2, v160")
    e("v_xor_b32 v161, 32, v2")
    e("v_lshlrev_b32 v161, 2, v161")
    e("s_waitcnt vmcnt(32)")
    e.label("L_attn_loop")
    rares = []
    for slot in range(2):
        e("s_waitcnt vmcnt(24)")
        if compute:
            for u in range(2):
                for i in range(4):
                    r = KF + (u * 4 + i) * 4
                    e(f"ds_read_b128 v[{r}:{r+3}], v{10+i} offset:{slot*8192 + u*4096}")
            e("s_waitcnt lgkmcnt(0)")
        issue("K", slot, 14)
        if compute:
            for i in range(4):
                for u in range(2):
                    r = KF + (u * 4 + i) * 4
                    c = "0" if i == 0 else f"v[{S0+4*u}:{S0+4*u+3}]"
                    e(f"v_mfma_f32_16x16x32_bf16 v[{S0+4*u}:{S0+4*u+3}], v[{r}:{r+3}], v[{QF+4*i}:{QF+4*i+3}], {c}")
            e("s_nop 7")
            for i in range(4):
                e(f"v_cvt_pk_bf16_f32 v{T0+i}, v{S0+2*i}, v{S0+2*i+1}")
            for i in range(4):
                e(f"v_lshlrev_b32 v{S0+2*i}, 16, v{T0+i}")
                e(f"v_and_b32 v{S0+2*i+1}, 0xffff0000, v{T0+i}")
            for i in range(8):
                e(f"v_mul_f32 v{S0+i}, s32, v{S0+i}")
            for i in range(4):
                e(f"v_cvt_pk_bf16_f32 v{T0+i}, v{S0+2*i}, v{S0+2*i+1}")
            for i in range(4):
                e(f"v_lshlrev_b32 v{S0+2*i}, 16, v{T0+i}")
                e(f"v_and_b32 v{S0+2*i+1}, 0xffff0000, v{T0+i}")
            e(f"v_max3_f32 v{T0}, v{S0}, v{S0+1}, v{S0+2}")
            e(f"v_max3_f32 v{T0+1}, v{S0+3}, v{S0+4}, v{S0+5}")
            e(f"v_max3_f32 v{T0}, v{T0}, v{S0+6}, v{S0+7}")
            e(f"v_max_f32 v{T0}, v{T0}, v{T0+1}")
            e(f"v_cmp_gt_f32 vcc, v{T0}, v{THR}")
            rl, bl = f"L_attn_rare{slot}", f"L_attn_back{slot}"
            e(f"s_cbranch_vccnz {rl}")
            e.label(bl)
            rares.append((rl, bl))
            for i in range(8):
                e(f"v_fma_f32 v{S0+i}, v{S0+i}, s33, v{MNEG}")
            for i in range(8):
                e(f"v_exp_f32 v{S0+i}, v{S0+i}")
            e("s_nop 0")
            for i in range(4):
                e(f"v_cvt_pk_bf16_f32 v{P0+i}, v{S0+2*i}, v{S0+2*i+1}")
            e(f"v_add_f32 v{T0}, v{S0}, v{S0+1}")
            e(f"v_add_f32 v{T0+1}, v{S0+2}, v{S0+3}")
            e(f"v_add_f32 v{T0+2}, v{S0+4}, v{S0+5}")
            e(f"v_add_f32 v{T0+3}, v{S0+6}, v{S0+7}")
            e(f"v_add_f32 v{T0}, v{T0}, v{T0+1}")
            e(f"v_add_f32 v{T0+2}, v{T0+2}, v{T0+3}")
            e(f"v_add_f32 v{T0}, v{T0}, v{T0+2}")
            e(f"v_add_f32 v{LSUM}, v{LSUM}, v{T0}")
        e("s_waitcnt vmcnt(24)")
        if compute:
            for j in range(8):
                for hb in range(2):
                    r = VF + j * 4 + hb * 2
                    e(f"ds_read_b64_tr_b16 v[{r}:{r+1}], v{14+j} offset:{slot*8192 + hb*4096}")
            e("s_waitcnt lgkmcnt(0)")
        issue("V", slot, 15)
        if compute:
            for j in range(8):
                r = VF + j * 4
                e(f"v_mfma_f32_16x16x32_bf16 v[{OA+4*j}:{OA+4*j+3}], v[{r}:{r+3}], v[{P0}:{P0+3}], v[{OA+4*j}:{OA+4*j+3}]")
    e("s_add_u32 s34, s34, 1")
    e("s_cmp_lt_u32 s34, 8")
    e("s_cbranch_scc1 L_attn_loop")
    CB = 131072
    e("s_nop 7")
    e("s_nop 7")
    e("v_lshl_add_u32 v40, v22, 0, 0")
    e("s_lshl_b32 s28, s3, 11")
    e(f"s_add_u32 s28, s28, {CB}")
    e("v_lshlrev_b32 v40, 9, v22")
    e("v_lshl_add_u32 v40, v3, 4, v40")
    e("v_add_u32 v40, s28, v40")
    e("s_lshl_b32 s29, s3, 2")
    e("v_lshlrev_b32 v41, 4, v22")
    e("v_add_u32 v41, s29, v41")
    e("v_lshlrev_b32 v42, 2, v41")
    e("v_lshl_add_u32 v42, v3, 2, v42")
    e("v_cmp_gt_u32 vcc, 4, v22")
    e("s_and_saveexec_b64 s[30:31], vcc")
    for j in range(8):
        e(f"ds_write_b128 v40, v[{OA+4*j}:{OA+4*j+3}] offset:{64*j}")
    e(f"ds_write_b32 v41, v{MREF} offset:{CB+8192-65536}") if False else None
    e(f"v_add_u32 v41, {CB+8192}, v41")
    e(f"v_add_u32 v42, {CB+8192+64}, v42")
    e(f"ds_write_b32 v41, v{MREF}")
    e(f"ds_write_b32 v42, v{LSUM}")
    e("s_mov_b64 exec, s[30:31]")
    e("s_waitcnt lgkmcnt(0)")
    e("s_barrier")
    e("s_lshl_b32 s28, s3, 4")
    e(f"s_add_u32 s28, s28, {CB+8192}")
    e("v_mov_b32 v40, s28")
    e("ds_read_b128 v[44:47], v40")
    e("s_lshl_b32 s28, s3, 6")
    e(f"s_add_u32 s28, s28, {CB+8192+64}")
    e("v_mov_b32 v41, s28")
    for w in range(4):
        e(f"ds_read_b128 v[{48+4*w}:{48+4*w+3}], v41 offset:{16*w}")
    e("s_lshl_b32 s28, s3, 9")
    e(f"s_add_u32 s28, s28, {CB}")
    e("v_lshlrev_b32 v42, 3, v2")
    e("v_add_u32 v42, s28, v42")
    for w in range(4):
        e(f"ds_read_b64 v[{64+2*w}:{64+2*w+1}], v42 offset:{2048*w}")
    e("s_waitcnt lgkmcnt(0)")
    e("v_max3_f32 v72, v44, v45, v46")
    e("v_max_f32 v72, v72, v47")
    for w in range(4):
        e(f"v_sub_f32 v{44+w}, v{44+w}, v72")
        e(f"v_mul_f32 v{44+w}, s33, v{44+w}")
        e(f"v_exp_f32 v{44+w}, v{44+w}")
    for w in range(4):
        e(f"v_add_f32 v{48+4*w}, v{48+4*w}, v{49+4*w}")
        e(f"v_add_f32 v{50+4*w}, v{50+4*w}, v{51+4*w}")
        e(f"v_add_f32 v{48+4*w}, v{48+4*w}, v{50+4*w}")
    e("v_mul_f32 v73, v44, v48")
    e("v_mul_f32 v74, v44, v64")
    e("v_mul_f32 v75, v44, v65")
    for w in range(1, 4):
        e(f"v_fmac_f32 v73, v{44+w}, v{48+4*w}")
        e(f"v_fmac_f32 v74, v{44+w}, v{64+2*w}")
        e(f"v_fmac_f32 v75, v{44+w}, v{65+2*w}")
    e("s_lshr_b32 s28, s2, 2")
    e("s_lshl_b32 s28, s28, 2")
    e("s_add_u32 s28, s28, s3")
    e("s_lshl_b32 s28, s28, 2")
    e("s_and_b32 s29, s2, 3")
    e("s_add_u32 s28, s28, s29")
    e("s_lshl_b32 s29, s28, 9")
    e(f"s_add_u32 s29, s29, {PO_OFF}")
    e("v_lshlrev_b32 v42, 3, v2")
    e("buffer_store_dwordx2 v[74:75], v42, s[24:27], s29 offen")
    e("s_lshl_b32 s29, s28, 3")
    e(f"s_add_u32 s29, s29, {PML_OFF}")
    e("v_mov_b32 v76, v72")
    e("v_mov_b32 v77, v73")
    e("v_mov_b32 v43, 0")
    e("v_cmp_eq_u32 vcc, 0, v2")
    e("s_and_saveexec_b64 s[30:31], vcc")
    e("buffer_store_dwordx2 v[76:77], v43, s[24:27], s29 offen")
    e("s_waitcnt vmcnt(0)")
    e.label(f"L_{name}_end")
    stamp(e, KIDX, 1)
    e.label(f"L_{name}_exit")
    e("s_endpgm")
    for rl, bl in rares:
        e.label(rl)
        e(f"ds_bpermute_b32 v{T0+1}, v160, v{T0}")
        e("s_waitcnt lgkmcnt(0)")
        e(f"v_max_f32 v{T0}, v{T0}, v{T0+1}")
        e(f"ds_bpermute_b32 v{T0+1}, v161, v{T0}")
        e("s_waitcnt lgkmcnt(0)")
        e(f"v_max3_f32 v{T0}, v{T0}, v{T0+1}, v{MREF}")
        e(f"v_sub_f32 v{T0+1}, v{MREF}, v{T0}")
        e(f"v_mul_f32 v{T0+1}, s33, v{T0+1}")
        e(f"v_exp_f32 v{T0+1}, v{T0+1}")
        e("s_nop 0")
        for i in range(32):
            e(f"v_mul_f32 v{OA+i}, v{OA+i}, v{T0+1}")
        e(f"v_mul_f32 v{LSUM}, v{LSUM}, v{T0+1}")
        e(f"v_mov_b32 v{MREF}, v{T0}")
        e(f"v_mul_f32 v{MNEG}, s33, v{T0}")
        e(f"v_sub_f32 v{MNEG}, 0, v{MNEG}")
        e(f"v_add_f32 v{THR}, 0x40a00000, v{T0}")
        e(f"s_branch {bl}")
    return kernel_desc(name, 168)


def gen_wo(e):
    name = "wo_kernel"
    KIDX = 2
    kernel_begin(e, name)
    e("s_cmp_ge_u32 s2, 256")
    e(f"s_cbranch_scc1 L_{name}_exit")
    stamp(e, KIDX, 0)
    e("s_load_dwordx2 s[6:7], s[0:1], 32")
    e("s_load_dwordx2 s[8:9], s[0:1], 96")
    e("v_lshrrev_b32 v1, 6, v0")
    e("v_and_b32 v2, 63, v0")
    e("s_nop 0")
    e("v_readfirstlane_b32 s3, v1")
    e("s_lshr_b32 s10, s2, 4")
    e("s_and_b32 s11, s2, 15")
    e("s_waitcnt lgkmcnt(0)")
    srd(e, 16, 6, 7, 4 << 20)
    srd(e, 20, 8, 9, WS_USED)
    e("v_lshrrev_b32 v3, 2, v2")
    e("v_lshlrev_b32 v3, 10, v3")
    e("v_and_b32 v4, 3, v2")
    e("v_lshl_add_u32 v3, v4, 4, v3")
    e("s_lshl_b32 s24, s10, 18")
    e("s_lshl_b32 s25, s11, 6")
    e("s_add_u32 s24, s24, s25")
    e("s_lshl_b32 s25, s3, 14")
    e("s_add_u32 s24, s24, s25")
    e("s_lshl_b32 s26, s3, 10")
    e("s_add_u32 s26, s26, 4096")
    for it in range(4):
        e("s_mov_b32 m0, s26")
        e("s_nop 0")
        e("buffer_load_dwordx4 v3, s[16:19], s24 offen lds")
        if it < 3:
            e("s_add_u32 s26, s26, 4096")
            e("s_add_u32 s24, s24, 65536")
    e("v_lshrrev_b32 v5, 5, v0")
    e("v_bfe_u32 v6, v0, 4, 1")
    e("v_and_b32 v7, 15, v0")
    e("v_lshl_add_u32 v8, v5, 5, v6")
    e("s_lshl_b32 s25, s10, 1")
    e("v_add_u32 v8, s25, v8")
    e("v_lshlrev_b32 v9, 5, v8")
    e(f"s_mov_b32 s27, {PML_OFF}")
    e("buffer_load_dwordx4 v[16:19], v9, s[20:23], s27 offen")
    e("buffer_load_dwordx4 v[20:23], v9, s[20:23], s27 offen offset:16")
    e("v_lshlrev_b32 v9, 11, v8")
    e("v_lshl_add_u32 v9, v7, 5, v9")
    e(f"s_mov_b32 s27, {PO_OFF}")
    for s in range(4):
        e(f"buffer_load_dwordx4 v[{24+8*s}:{24+8*s+3}], v9, s[20:23], s27 offen offset:{512*s}")
        e(f"buffer_load_dwordx4 v[{28+8*s}:{28+8*s+3}], v9, s[20:23], s27 offen offset:{512*s+16}")
    e(f"s_mov_b32 s33, 0x{LOG2E:08x}")
    e("s_waitcnt vmcnt(8)")
    e("v_max3_f32 v60, v16, v18, v20")
    e("v_max_f32 v60, v60, v22")
    for s in range(4):
        e(f"v_sub_f32 v{16+2*s}, v{16+2*s}, v60")
        e(f"v_mul_f32 v{16+2*s}, s33, v{16+2*s}")
        e(f"v_exp_f32 v{16+2*s}, v{16+2*s}")
    e("s_nop 0")
    e("v_mul_f32 v61, v16, v17")
    for s in range(1, 4):
        e(f"v_fmac_f32 v61, v{16+2*s}, v{17+2*s}")
    e("v_rcp_f32 v61, v61")
    e("s_nop 0")
    for s in range(4):
        e(f"v_mul_f32 v{16+2*s}, v{16+2*s}, v61")
    e("s_waitcnt vmcnt(0)")
    for k in range(8):
        e(f"v_mul_f32 v{64+k}, v16, v{24+k}")
        for s in range(1, 4):
            e(f"v_fmac_f32 v{64+k}, v{16+2*s}, v{24+8*s+k}")
    for k in range(4):
        e(f"v_cvt_pk_bf16_f32 v{72+k}, v{64+2*k}, v{65+2*k}")
    e("v_lshlrev_b32 v9, 4, v0")
    e("ds_write_b128 v9, v[72:75]")
    e("s_waitcnt vmcnt(0) lgkmcnt(0)")
    e("s_barrier")
    e("s_cmp_ge_u32 s3, 2")
    e(f"s_cbranch_scc1 L_{name}_end")
    e("v_lshrrev_b32 v3, 4, v2")
    e("v_bfe_u32 v4, v2, 2, 2")
    e("v_and_b32 v5, 3, v2")
    e("v_lshl_add_u32 v6, v3, 3, v4")
    e("v_lshlrev_b32 v6, 6, v6")
    e("v_lshl_add_u32 v6, v5, 3, v6")
    e("s_lshl_b32 s25, s3, 5")
    e("v_add_u32 v6, s25, v6")
    e("v_and_b32 v7, 7, v2")
    e("v_lshlrev_b32 v7, 9, v7")
    e("v_lshl_add_u32 v7, v3, 4, v7")
    A0, B0 = 16, 48
    for s in range(8):
        e(f"ds_read_b64_tr_b16 v[{A0+4*s}:{A0+4*s+1}], v6 offset:{4096 + s*2048}")
        e(f"ds_read_b64_tr_b16 v[{A0+4*s+2}:{A0+4*s+3}], v6 offset:{4096 + s*2048 + 256}")
        e(f"ds_read_b128 v[{B0+4*s}:{B0+4*s+3}], v7 offset:{s*64}")
        if s % 4 == 3:
            e("s_waitcnt lgkmcnt(0)")
    for s in range(8):
        c = "0" if s == 0 else "v[8:11]"
        e(f"v_mfma_f32_16x16x32_bf16 v[8:11], v[{A0+4*s}:{A0+4*s+3}], v[{B0+4*s}:{B0+4*s+3}], {c}")
    e("v_and_b32 v4, 15, v2")
    e("v_lshlrev_b32 v5, 15, v4")
    e("v_lshl_add_u32 v5, v3, 4, v5")
    e("s_lshl_b32 s24, s10, 11")
    e("s_lshl_b32 s25, s11, 7")
    e("s_add_u32 s24, s24, s25")
    e("s_lshl_b32 s25, s3, 6")
    e("s_add_u32 s24, s24, s25")
    e(f"s_add_u32 s24, s24, {WP_OFF}")
    e("s_nop 7")
    e("v_cmp_gt_u32 vcc, 8, v4")
    e("s_and_saveexec_b64 s[30:31], vcc")
    e("buffer_store_dwordx4 v[8:11], v5, s[20:23], s24 offen")
    e.label(f"L_{name}_end")
    stamp(e, KIDX, 1)
    e.label(f"L_{name}_exit")
    e("s_endpgm")
    return kernel_desc(name, 80)


def gen_final(e):
    name = "final_kernel"
    KIDX = 3
    kernel_begin(e, name)
    e("s_cmp_ge_u32 s2, 256")
    e(f"s_cbranch_scc1 L_{name}_exit")
    stamp(e, KIDX, 0)
    e("s_load_dwordx2 s[4:5], s[0:1], 0")
    e("s_load_dwordx8 s[8:15], s[0:1], 48")
    e("s_load_dwordx2 s[6:7], s[0:1], 80")
    e("s_load_dwordx2 s[16:17], s[0:1], 96")
    e("v_lshrrev_b32 v1, 6, v0")
    e("v_and_b32 v2, 63, v0")
    e("s_nop 0")
    e("v_readfirstlane_b32 s3, v1")
    e("s_lshr_b32 s18, s2, 5")
    e("s_and_b32 s19, s2, 31")
    e("s_waitcnt lgkmcnt(0)")
    srd(e, 20, 4, 5, 8192)
    srd(e, 24, 8, 9, 3584)
    srd(e, 28, 10, 11, 3584)
    srd(e, 32, 12, 13, 3584)
    srd(e, 36, 14, 15, 2)
    srd(e, 40, 6, 7, 8192)
    srd(e, 44, 16, 17, WS_USED)
    e("v_lshlrev_b32 v3, 2, v0")
    e("s_lshl_b32 s48, s18, 15")
    e(f"s_add_u32 s48, s48, {WP_OFF}")
    for i in range(16):
        e(f"s_add_u32 s49, s48, {2048*i}")
        e(f"buffer_load_dword v{16+i}, v3, s[44:47], s49 offen")
    e("v_lshlrev_b32 v4, 1, v0")
    e("s_lshl_b32 s49, s18, 10")
    e("buffer_load_ushort v32, v4, s[20:23], s49 offen")
    e("v_and_b32 v5, 255, v0")
    e("v_lshlrev_b32 v5, 1, v5")
    W1, B1, W2 = 40, 48, 56
    for j in range(7):
        e(f"buffer_load_ushort v{W1+j}, v5, s[24:27], 0 offen offset:{512*j}")
        e(f"buffer_load_ushort v{B1+j}, v5, s[28:31], 0 offen offset:{512*j}")
        e(f"buffer_load_ushort v{W2+j}, v5, s[32:35], 0 offen offset:{512*j}")
    e("v_mov_b32 v6, 0")
    e("buffer_load_ushort v33, v6, s[36:39], 0 offen")
    e("s_waitcnt vmcnt(22)")
    for i in range(1, 16):
        e(f"v_add_f32 v16, v16, v{16+i}")
    bf16r(e, 16)
    e("v_lshlrev_b32 v32, 16, v32")
    e("v_add_f32 v16, v16, v32")
    bf16r(e, 16)
    e("ds_write_b32 v3, v16")
    e("s_waitcnt lgkmcnt(0)")
    e("s_barrier")
    e("v_lshlrev_b32 v7, 5, v2")
    e("ds_read_b128 v[16:19], v7")
    e("ds_read_b128 v[20:23], v7 offset:16")
    e("s_waitcnt lgkmcnt(0)")
    layernorm8(e, 16, 64, 52)
    layernorm8(e, 16, 64, 52)
    e("s_lshr_b32 s50, s3, 2")
    e("s_lshl_b32 s51, s19, 1")
    e("s_add_u32 s51, s51, s50")
    e("s_nop 0")
    for k in range(8):
        e(f"v_readlane_b32 s{56+k}, v{16+k}, s51")
    e("s_waitcnt vmcnt(0)")
    for j in range(7):
        e(f"v_lshlrev_b32 v{W1+j}, 16, v{W1+j}")
        e(f"v_lshlrev_b32 v{B1+j}, 16, v{B1+j}")
        e(f"v_lshlrev_b32 v{W2+j}, 16, v{W2+j}")
    import struct, math
    k0 = -2.0 * math.sqrt(2.0 / math.pi) * math.log2(math.e)
    k1 = k0 * 0.044715
    f2u = lambda f: struct.unpack("<I", struct.pack("<f", f))[0]
    e(f"s_mov_b32 s64, 0x{f2u(k0):08x}")
    e(f"s_mov_b32 s65, 0x{f2u(k1):08x}")
    e("v_mov_b32 v79, s64")
    ACC = 24
    for k in range(8):
        e(f"v_mov_b32 v{ACC+k}, 0")
    for j in range(7):
        for k in range(0, 8, 2):
            a, b_ = 64, 65
            e(f"v_mul_f32 v{a}, s{56+k}, v{W1+j}")
            e(f"v_mul_f32 v{b_}, s{57+k}, v{W1+j}")
            e(f"v_cvt_pk_bf16_f32 v66, v{a}, v{b_}")
            e(f"v_lshlrev_b32 v{a}, 16, v66")
            e(f"v_and_b32 v{b_}, 0xffff0000, v66")
            e(f"v_add_f32 v{a}, v{a}, v{B1+j}")
            e(f"v_add_f32 v{b_}, v{b_}, v{B1+j}")
            e(f"v_cvt_pk_bf16_f32 v66, v{a}, v{b_}")
            e(f"v_lshlrev_b32 v{a}, 16, v66")
            e(f"v_and_b32 v{b_}, 0xffff0000, v66")
            e(f"v_mul_f32 v67, v{a}, v{a}")
            e(f"v_mul_f32 v68, v{b_}, v{b_}")
            e(f"v_fma_f32 v67, v67, s65, v79")
            e(f"v_fma_f32 v68, v68, s65, v79")
            e(f"v_mul_f32 v67, v67, v{a}")
            e(f"v_mul_f32 v68, v68, v{b_}")
            e(f"v_exp_f32 v67, v67")
            e(f"v_exp_f32 v68, v68")
            e(f"s_nop 0")
            e(f"v_add_f32 v67, 1.0, v67")
            e(f"v_add_f32 v68, 1.0, v68")
            e(f"v_rcp_f32 v67, v67")
            e(f"v_rcp_f32 v68, v68")
            e(f"s_nop 0")
            e(f"v_mul_f32 v67, v67, v{a}")
            e(f"v_mul_f32 v68, v68, v{b_}")
            e(f"v_cvt_pk_bf16_f32 v66, v67, v68")
            e(f"v_lshlrev_b32 v67, 16, v66")
            e(f"v_and_b32 v68, 0xffff0000, v66")
            e(f"v_fmac_f32 v{ACC+k}, v67, v{W2+j}")
            e(f"v_fmac_f32 v{ACC+k+1}, v68, v{W2+j}")
    for mod in ["quad_perm:[1,0,3,2] row_mask:0xf", "quad_perm:[2,3,0,1] row_mask:0xf",
                "row_half_mirror row_mask:0xf", "row_mirror row_mask:0xf",
                "row_bcast:15 row_mask:0xa", "row_bcast:31 row_mask:0xc"]:
        e("s_nop 1")
        for k in range(8):
            e(f"v_add_f32_dpp v{ACC+k}, v{ACC+k}, v{ACC+k} {mod} bank_mask:0xf")
    e("s_lshl_b32 s50, s3, 5")
    e("s_add_u32 s50, s50, 2048")
    e("v_mov_b32 v7, s50")
    e("v_cmp_eq_u32 vcc, 63, v2")
    e("s_and_saveexec_b64 s[66:67], vcc")
    e(f"ds_write_b128 v7, v[{ACC}:{ACC+3}]")
    e(f"ds_write_b128 v7, v[{ACC+4}:{ACC+7}] offset:16")
    e("s_mov_b64 exec, s[66:67]")
    e("s_waitcnt lgkmcnt(0)")
    e("s_barrier")
    e("s_cmp_lg_u32 s3, 0")
    e(f"s_cbranch_scc1 L_{name}_end")
    e("v_cmp_gt_u32 vcc, 16, v2")
    e("s_and_saveexec_b64 s[66:67], vcc")
    e("v_lshrrev_b32 v7, 3, v2")
    e("v_lshlrev_b32 v7, 7, v7")
    e("v_and_b32 v8, 7, v2")
    e("v_lshl_add_u32 v7, v8, 2, v7")
    for w in range(4):
        e(f"ds_read_b32 v{16+w}, v7 offset:{2048+32*w}")
    e("s_lshl_b32 s50, s19, 6")
    e("v_lshlrev_b32 v8, 2, v2")
    e("v_add_u32 v8, s50, v8")
    e("ds_read_b32 v20, v8")
    e("s_waitcnt lgkmcnt(0)")
    e("v_add_f32 v16, v16, v17")
    e("v_add_f32 v18, v18, v19")
    e("v_add_f32 v16, v16, v18")
    bf16r(e, 16)
    e("v_lshlrev_b32 v33, 16, v33")
    e("v_add_f32 v16, v16, v33")
    bf16r(e, 16)
    e("v_add_f32 v16, v16, v20")
    e("v_cvt_pk_bf16_f32 v16, v16, v16")
    e("v_lshrrev_b32 v8, 1, v8")
    e("s_lshl_b32 s50, s18, 10")
    e("buffer_store_short v16, v8, s[40:43], s50 offen")
    e.label(f"L_{name}_end")
    stamp(e, KIDX, 1)
    e.label(f"L_{name}_exit")
    e("s_endpgm")
    return kernel_desc(name, 80)


def main():
    opt = {}
    for a in sys.argv[2:]:
        k, v = a.split("=")
        opt[k] = {"0": False, "1": True}.get(v, v)
    STAMP["on"] = bool(opt.get("stamp", False))
    e = E()
    descs = []
    e.raw(HEADER.rstrip("\n"))
    only = opt.get("only", "")
    ks = [("qproj_kernel", 256, 256, 24576), ("attn_kernel", 256, 256, 131072 + 8192 + 512),
          ("wo_kernel", 256, 256, 20480), ("final_kernel", 256, 512, 4096)]
    for k, g, b, l in ks:
        if only and k.split("_")[0] not in only.split(","):
            continue
        e.raw(f"; @launch kernel={k} grid=({g},1,1) block=({b},1,1) lds={l}")
    e.raw('.amdgcn_target "amdgcn-amd-amdhsa--gfx950"')
    e.raw(".text")
    descs.append(gen_qproj(e))
    descs.append(gen_attn(e, opt))
    descs.append(gen_wo(e))
    descs.append(gen_final(e))
    e.raw('.section .rodata,"a"')
    for d in descs:
        e.raw(".p2align 6")
        e.raw(d.rstrip("\n"))
    open(sys.argv[1], "w").write(e.text())


main()
```

```python
import sys

HEADER = open("sequential_preLN__gqa_block_cached__mixer_token_mlp__decode.s.ref").read().split("; Override launch")[0]

Q_OFF = 0x0
PO_OFF = 0x10000
PML_OFF = 0x90000
WP_OFF = 0xA0000
WS_USED = 0xE0000

LOG2E = 0x3FB8AA3B
SCALE = 0x3DB504F3
NEGBIG = 0xF149F2CA


class E:
    def __init__(self):
        self.lines = []
        self.lbl = 0

    def __call__(self, s):
        for ln in s.strip("\n").split("\n"):
            self.lines.append("    " + ln.strip())

    def label(self, name):
        self.lines.append(name + ":")

    def raw(self, s):
        self.lines.append(s)

    def newlabel(self, base):
        self.lbl += 1
        return f"L_{base}_{self.lbl}"

    def text(self):
        return "\n".join(self.lines) + "\n"


def kernel_begin(e, name):
    e.raw(f".globl {name}")
    e.raw(".p2align 8")
    e.raw(f".type {name},@function")
    e.label(name)


def kernel_desc(name, vgpr, sgpr=102):
    if STAMP["on"]:
        vgpr = 256
    acc = (vgpr + 3) // 4 * 4
    return f""".amdhsa_kernel {name}
  .amdhsa_next_free_vgpr {vgpr}
  .amdhsa_next_free_sgpr {sgpr}
  .amdhsa_accum_offset {acc}
  .amdhsa_group_segment_fixed_size 0
  .amdhsa_kernarg_size 104
  .amdhsa_user_sgpr_count 2
  .amdhsa_user_sgpr_kernarg_segment_ptr 1
  .amdhsa_system_sgpr_workgroup_id_x 1
.end_amdhsa_kernel
"""


STAMP = {"on": False, "n": 4}


def stamp(e, kidx, which):
    if not STAMP["on"]:
        return
    lab = e.newlabel("stamp")
    e("s_and_b32 s90, s2, 7")
    e("s_cmp_lg_u32 s90, 0")
    e(f"s_cbranch_scc1 {lab}")
    e("v_cmp_eq_u32 vcc, 0, v0")
    e("s_and_saveexec_b64 s[94:95], vcc")
    e(f"s_cbranch_execz {lab}_r")
    e("s_load_dwordx2 s[90:91], s[0:1], 88")
    e("s_memrealtime s[92:93]")
    e("s_waitcnt lgkmcnt(0)")
    e(f"s_add_u32 s90, s90, {512*(STAMP['n']-1-kidx)}")
    e("s_addc_u32 s91, s91, 0")
    if which == 0:
        e("s_not_b32 s92, s92")
    e(f"v_mov_b32 v250, {kidx*8 + which*4}")
    e("v_mov_b32 v251, s92")
    e("global_atomic_umax v250, v251, s[90:91]")
    e("s_waitcnt vmcnt(0)")
    e.label(f"{lab}_r")
    e("s_mov_b64 exec, s[94:95]")
    e.label(lab)


def srd(e, d, base_lo, base_hi, nbytes):
    e(f"s_mov_b32 s{d}, s{base_lo}")
    e(f"s_mov_b32 s{d+1}, s{base_hi}")
    e(f"s_mov_b32 s{d+2}, {nbytes}")
    e(f"s_mov_b32 s{d+3}, 0x00020000")


def wave_allreduce_add(e, v, t, s0):
    e(f"s_nop 1")
    e(f"v_add_f32_dpp v{v}, v{v}, v{v} quad_perm:[1,0,3,2] row_mask:0xf bank_mask:0xf")
    e(f"s_nop 1")
    e(f"v_add_f32_dpp v{v}, v{v}, v{v} quad_perm:[2,3,0,1] row_mask:0xf bank_mask:0xf")
    e(f"s_nop 1")
    e(f"v_add_f32_dpp v{v}, v{v}, v{v} row_half_mirror row_mask:0xf bank_mask:0xf")
    e(f"s_nop 1")
    e(f"v_add_f32_dpp v{v}, v{v}, v{v} row_mirror row_mask:0xf bank_mask:0xf")
    e(f"s_nop 1")
    e(f"v_readlane_b32 s{s0}, v{v}, 0")
    e(f"v_readlane_b32 s{s0+1}, v{v}, 16")
    e(f"v_readlane_b32 s{s0+2}, v{v}, 32")
    e(f"v_readlane_b32 s{s0+3}, v{v}, 48")
    e(f"s_nop 1")
    e(f"v_mov_b32 v{t}, s{s0}")
    e(f"v_add_f32 v{t}, s{s0+1}, v{t}")
    e(f"v_add_f32 v{v}, s{s0+2}, v{t}")
    e(f"v_add_f32 v{v}, s{s0+3}, v{v}")


def bf16r(e, v, t=None):
    e(f"v_cvt_pk_bf16_f32 v{v}, v{v}, v{v}")
    e(f"v_lshlrev_b32 v{v}, 16, v{v}")


def layernorm8(e, x, t, s0):
    e(f"v_add_f32 v{t}, v{x}, v{x+1}")
    for i in range(2, 8):
        e(f"v_add_f32 v{t}, v{t}, v{x+i}")
    wave_allreduce_add(e, t, t + 1, s0)
    e(f"v_mul_f32 v{t}, 0x3b000000, v{t}")
    for i in range(8):
        e(f"v_sub_f32 v{t+2+i}, v{x+i}, v{t}")
    e(f"v_mul_f32 v{t+10}, v{t+2}, v{t+2}")
    for i in range(1, 8):
        e(f"v_fmac_f32 v{t+10}, v{t+2+i}, v{t+2+i}")
    wave_allreduce_add(e, t + 10, t + 1, s0)
    e(f"v_mul_f32 v{t+10}, 0x3b000000, v{t+10}")
    bf16r(e, t + 10)
    e(f"v_add_f32 v{t+10}, 0x3727c5ac, v{t+10}")
    bf16r(e, t + 10)
    e(f"v_sqrt_f32 v{t+10}, v{t+10}")
    e(f"s_nop 0")
    bf16r(e, t + 10)
    e(f"v_rcp_f32 v{t+11}, v{t+10}")
    bf16r(e, t)
    for i in range(8):
        e(f"v_sub_f32 v{x+i}, v{x+i}, v{t}")
    for i in range(0, 8, 2):
        e(f"v_cvt_pk_bf16_f32 v{t+2}, v{x+i}, v{x+i+1}")
        e(f"v_lshlrev_b32 v{x+i}, 16, v{t+2}")
        e(f"v_and_b32 v{x+i+1}, 0xffff0000, v{t+2}")
    for i in range(8):
        e(f"v_mul_f32 v{t+2}, v{x+i}, v{t+11}")
        e(f"v_fma_f32 v{t+3}, -v{t+2}, v{t+10}, v{x+i}")
        e(f"v_fma_f32 v{x+i}, v{t+3}, v{t+11}, v{t+2}")
    for i in range(0, 8, 2):
        e(f"v_cvt_pk_bf16_f32 v{t+2}, v{x+i}, v{x+i+1}")
        e(f"v_lshlrev_b32 v{x+i}, 16, v{t+2}")
        e(f"v_and_b32 v{x+i+1}, 0xffff0000, v{t+2}")


def unpack8(e, src, dst):
    for i in range(4):
        e(f"v_lshlrev_b32 v{dst+2*i}, 16, v{src+i}")
        e(f"v_and_b32 v{dst+2*i+1}, 0xffff0000, v{src+i}")


def gen_qproj(e):
    name = "qproj_kernel"
    KIDX = 0
    kernel_begin(e, name)
    e("s_cmp_ge_u32 s2, 256")
    e(f"s_cbranch_scc1 L_{name}_exit")
    stamp(e, KIDX, 0)
    e("s_load_dwordx2 s[4:5], s[0:1], 0")
    e("s_load_dwordx2 s[6:7], s[0:1], 24")
    e("s_load_dwordx2 s[8:9], s[0:1], 96")
    e("v_lshrrev_b32 v1, 6, v0")
    e("v_and_b32 v2, 63, v0")
    e("s_nop 0")
    e("v_readfirstlane_b32 s3, v1")
    e("s_waitcnt lgkmcnt(0)")
    srd(e, 12, 4, 5, 8192)
    srd(e, 16, 6, 7, 4 << 20)
    srd(e, 20, 8, 9, WS_USED)
    e("v_lshrrev_b32 v3, 1, v2")
    e("v_lshlrev_b32 v3, 13, v3")
    e("v_and_b32 v4, 1, v2")
    e("v_lshl_add_u32 v3, v4, 4, v3")
    e("s_lshl_b32 s24, s2, 5")
    e("s_lshl_b32 s25, s3, 18")
    e("s_add_u32 s24, s24, s25")
    e("s_lshl_b32 s26, s3, 10")
    e("s_add_u32 s26, s26, 8192")
    for i in range(4):
        e(f"s_mov_b32 m0, s26")
        e(f"s_nop 0")
        e(f"buffer_load_dwordx4 v3, s[16:19], s24 offen lds")
        if i < 3:
            e(f"s_add_u32 s26, s26, 4096")
            e(f"s_add_u32 s24, s24, {128*8192}")
    e("s_lshl_b32 s27, s3, 11")
    e("v_lshlrev_b32 v5, 4, v2")
    e("buffer_load_dwordx4 v[8:11], v5, s[12:15], s27 offen")
    e("buffer_load_dwordx4 v[12:15], v5, s[12:15], s27 offen offset:1024")
    e("s_waitcnt vmcnt(0)")
    for r in range(2):
        unpack8(e, 8 + 4 * r, 16)
        layernorm8(e, 16, 32, 28)
        for i in range(4):
            e(f"v_cvt_pk_bf16_f32 v{24+i}, v{16+2*i}, v{16+2*i+1}")
        e(f"v_add_u32 v6, s27, v5")
        e(f"ds_write_b128 v6, v[24:27] offset:{1024*r}")
    e("s_waitcnt vmcnt(0) lgkmcnt(0)")
    e("s_barrier")
    e("s_cmp_lg_u32 s3, 0")
    e(f"s_cbranch_scc1 L_{name}_end")
    e("v_lshrrev_b32 v3, 4, v2")
    e("v_bfe_u32 v4, v2, 2, 2")
    e("v_and_b32 v5, 3, v2")
    e("v_lshl_add_u32 v6, v3, 3, v4")
    e("v_lshlrev_b32 v6, 5, v6")
    e("v_lshl_add_u32 v6, v5, 3, v6")
    e("v_and_b32 v7, 7, v2")
    e("v_lshlrev_b32 v7, 10, v7")
    e("v_lshl_add_u32 v7, v3, 4, v7")
    A0, B0 = 16, 80
    for s in range(16):
        e(f"ds_read_b64_tr_b16 v[{A0+4*s}:{A0+4*s+1}], v6 offset:{8192 + s*1024}")
        e(f"ds_read_b64_tr_b16 v[{A0+4*s+2}:{A0+4*s+3}], v6 offset:{8192 + s*1024 + 128}")
        e(f"ds_read_b128 v[{B0+4*s}:{B0+4*s+3}], v7 offset:{s*64}")
        if s % 4 == 3:
            e("s_waitcnt lgkmcnt(0)")
    for s in range(16):
        c = "0" if s == 0 else "v[8:11]"
        e(f"v_mfma_f32_16x16x32_bf16 v[8:11], v[{A0+4*s}:{A0+4*s+3}], v[{B0+4*s}:{B0+4*s+3}], {c}")
    e("s_nop 7")
    e("s_nop 3")
    e("v_cvt_pk_bf16_f32 v12, v8, v9")
    e("v_cvt_pk_bf16_f32 v13, v10, v11")
    e("v_and_b32 v4, 15, v2")
    e("v_lshlrev_b32 v5, 13, v4")
    e("v_lshl_add_u32 v5, v3, 3, v5")
    e("s_lshl_b32 s24, s2, 5")
    e(f"s_add_u32 s24, s24, {Q_OFF}")
    e("v_cmp_gt_u32 vcc, 8, v4")
    e("s_and_saveexec_b64 s[30:31], vcc")
    e("buffer_store_dwordx2 v[12:13], v5, s[20:23], s24 offen")
    e.label(f"L_{name}_end")
    stamp(e, KIDX, 1)
    e.label(f"L_{name}_exit")
    e("s_endpgm")
    return kernel_desc(name, 144)


def gen_attn(e, opt):
    name = "attn_kernel"
    KIDX = 1
    NT = opt.get("nt", "")
    compute = opt.get("compute", True)
    kernel_begin(e, name)
    e("s_cmp_ge_u32 s2, 256")
    e(f"s_cbranch_scc1 L_{name}_exit")
    stamp(e, KIDX, 0)
    e("s_load_dwordx4 s[4:7], s[0:1], 8")
    e("s_load_dwordx2 s[8:9], s[0:1], 96")
    e("v_lshrrev_b32 v1, 6, v0")
    e("v_and_b32 v2, 63, v0")
    e("s_nop 0")
    e("v_readfirstlane_b32 s3, v1")
    e("v_lshrrev_b32 v3, 4, v2")
    e("v_and_b32 v22, 15, v2")
    e("s_lshl_b32 s10, s2, 19")
    e("s_lshl_b32 s11, s3, 17")
    e("s_add_u32 s10, s10, s11")
    e("s_waitcnt lgkmcnt(0)")
    e("s_add_u32 s16, s4, s10")
    e("s_addc_u32 s17, s5, 0")
    e("s_mov_b32 s18, 131072")
    e("s_mov_b32 s19, 0x00020000")
    e("s_add_u32 s20, s6, s10")
    e("s_addc_u32 s21, s7, 0")
    e("s_mov_b32 s22, 131072")
    e("s_mov_b32 s23, 0x00020000")
    srd(e, 24, 8, 9, WS_USED)
    QF = 24
    for i in range(16):
        e(f"v_mov_b32 v{QF+i}, 0")
    e("v_lshlrev_b32 v4, 8, v22")
    e("v_lshl_add_u32 v4, v3, 4, v4")
    e("s_lshr_b32 s12, s2, 2")
    e("s_lshl_b32 s12, s12, 10")
    e(f"s_add_u32 s12, s12, {Q_OFF}")
    e("v_cmp_gt_u32 vcc, 4, v22")
    e("s_and_saveexec_b64 s[30:31], vcc")
    for i in range(4):
        e(f"buffer_load_dwordx4 v[{QF+4*i}:{QF+4*i+3}], v4, s[24:27], s12 offen offset:{64*i}")
    e("s_mov_b64 exec, s[30:31]")
    for i in range(4):
        e(f"v_add_u32 v23, {4*i}, v3")
        e(f"v_xor_b32 v23, v23, v22")
        e(f"v_lshlrev_b32 v23, 4, v23")
        e(f"v_lshl_add_u32 v{4+i}, v3, 8, v23")
    for i in range(2):
        e(f"v_add_u32 v23, {4*i}, v3")
        e(f"v_lshlrev_b32 v23, 1, v23")
        e(f"v_xor_b32 v23, v23, v22")
        e(f"v_lshlrev_b32 v23, 4, v23")
        e(f"v_lshl_add_u32 v{8+i}, v3, 8, v23")
    e("s_lshl_b32 s13, s3, 15")

    def issue(kind, slot, soff):
        srdn = 16 if kind == "K" else 20
        ldsoff = (0 if kind == "K" else 16384) + slot * 8192
        for half in range(2):
            e(f"s_add_u32 s28, s13, {ldsoff + half*4096}")
            e(f"s_mov_b32 m0, s28")
            if half == 1:
                e(f"s_add_u32 s29, s{soff}, 4096")
            else:
                e(f"s_mov_b32 s29, s{soff}")
            for i in range(4):
                vo = (4 + i) if kind == "K" else (8 + (i & 1))
                e(f"buffer_load_dwordx4 v{vo}, s[{srdn}:{srdn+3}], s29 offen offset:{1024*i} {NT} lds")
        e(f"s_add_u32 s{soff}, s{soff}, 8192")

    e("s_mov_b32 s14, 0")
    e("s_mov_b32 s15, 0")
    issue("K", 0, 14)
    issue("V", 0, 15)
    issue("K", 1, 14)
    issue("V", 1, 15)
    for i in range(4):
        e(f"v_add_u32 v23, {4*i}, v3")
        e(f"v_xor_b32 v23, v23, v22")
        e(f"v_lshlrev_b32 v23, 4, v23")
        e(f"v_lshl_add_u32 v23, v22, 8, v23")
        e(f"v_add_u32 v{10+i}, s13, v23")
    e("v_bfe_u32 v40, v2, 2, 2")
    e("v_lshl_add_u32 v40, v3, 2, v40")
    e("v_and_b32 v41, 7, v40")
    e("v_lshlrev_b32 v41, 1, v41")
    e("v_bfe_u32 v42, v2, 1, 1")
    e("v_and_b32 v43, 1, v2")
    e("v_lshlrev_b32 v44, 8, v40")
    e("v_lshl_add_u32 v44, v43, 3, v44")
    e("v_add_u32 v44, s13, v44")
    e("v_add_u32 v44, 16384, v44")
    for j in range(8):
        e(f"v_xor_b32 v23, {2*j}, v41")
        e(f"v_add_u32 v23, v23, v42")
        e(f"v_lshl_add_u32 v{14+j}, v23, 4, v44")
    KF, VF, S0, P0, T0, OA = 40, 72, 104, 112, 116, 128
    MREF, MNEG, THR, LSUM = 124, 125, 126, 127
    for i in range(32):
        e(f"v_mov_b32 v{OA+i}, 0")
    e(f"v_mov_b32 v{MREF}, 0x{NEGBIG:08x}")
    e(f"v_mov_b32 v{THR}, 0x{NEGBIG:08x}")
    e(f"v_mov_b32 v{MNEG}, 0")
    e(f"v_mov_b32 v{LSUM}, 0")
    e(f"s_mov_b32 s32, 0x{SCALE:08x}")
    e(f"s_mov_b32 s33, 0x{LOG2E:08x}")
    e("s_mov_b32 s34, 0")
    e("v_xor_b32 v160, 16, v2")
    e("v_lshlrev_b32 v160, 2, v160")
    e("v_xor_b32 v161, 32, v2")
    e("v_lshlrev_b32 v161, 2, v161")
    e("s_waitcnt vmcnt(32)")
    e.label("L_attn_loop")
    rares = []
    for slot in range(2):
        e("s_waitcnt vmcnt(24)")
        if compute:
            for u in range(2):
                for i in range(4):
                    r = KF + (u * 4 + i) * 4
                    e(f"ds_read_b128 v[{r}:{r+3}], v{10+i} offset:{slot*8192 + u*4096}")
            e("s_waitcnt lgkmcnt(0)")
        issue("K", slot, 14)
        if compute:
            for i in range(4):
                for u in range(2):
                    r = KF + (u * 4 + i) * 4
                    c = "0" if i == 0 else f"v[{S0+4*u}:{S0+4*u+3}]"
                    e(f"v_mfma_f32_16x16x32_bf16 v[{S0+4*u}:{S0+4*u+3}], v[{r}:{r+3}], v[{QF+4*i}:{QF+4*i+3}], {c}")
            e("s_nop 7")
            for i in range(4):
                e(f"v_cvt_pk_bf16_f32 v{T0+i}, v{S0+2*i}, v{S0+2*i+1}")
            for i in range(4):
                e(f"v_lshlrev_b32 v{S0+2*i}, 16, v{T0+i}")
                e(f"v_and_b32 v{S0+2*i+1}, 0xffff0000, v{T0+i}")
            for i in range(8):
                e(f"v_mul_f32 v{S0+i}, s32, v{S0+i}")
            for i in range(4):
                e(f"v_cvt_pk_bf16_f32 v{T0+i}, v{S0+2*i}, v{S0+2*i+1}")
            for i in range(4):
                e(f"v_lshlrev_b32 v{S0+2*i}, 16, v{T0+i}")
                e(f"v_and_b32 v{S0+2*i+1}, 0xffff0000, v{T0+i}")
            e(f"v_max3_f32 v{T0}, v{S0}, v{S0+1}, v{S0+2}")
            e(f"v_max3_f32 v{T0+1}, v{S0+3}, v{S0+4}, v{S0+5}")
            e(f"v_max3_f32 v{T0}, v{T0}, v{S0+6}, v{S0+7}")
            e(f"v_max_f32 v{T0}, v{T0}, v{T0+1}")
            e(f"v_cmp_gt_f32 vcc, v{T0}, v{THR}")
            rl, bl = f"L_attn_rare{slot}", f"L_attn_back{slot}"
            e(f"s_cbranch_vccnz {rl}")
            e.label(bl)
            rares.append((rl, bl))
            for i in range(8):
                e(f"v_fma_f32 v{S0+i}, v{S0+i}, s33, v{MNEG}")
            for i in range(8):
                e(f"v_exp_f32 v{S0+i}, v{S0+i}")
            e("s_nop 0")
            for i in range(4):
                e(f"v_cvt_pk_bf16_f32 v{P0+i}, v{S0+2*i}, v{S0+2*i+1}")
            e(f"v_add_f32 v{T0}, v{S0}, v{S0+1}")
            e(f"v_add_f32 v{T0+1}, v{S0+2}, v{S0+3}")
            e(f"v_add_f32 v{T0+2}, v{S0+4}, v{S0+5}")
            e(f"v_add_f32 v{T0+3}, v{S0+6}, v{S0+7}")
            e(f"v_add_f32 v{T0}, v{T0}, v{T0+1}")
            e(f"v_add_f32 v{T0+2}, v{T0+2}, v{T0+3}")
            e(f"v_add_f32 v{T0}, v{T0}, v{T0+2}")
            e(f"v_add_f32 v{LSUM}, v{LSUM}, v{T0}")
        e("s_waitcnt vmcnt(24)")
        if compute:
            for j in range(8):
                for hb in range(2):
                    r = VF + j * 4 + hb * 2
                    e(f"ds_read_b64_tr_b16 v[{r}:{r+1}], v{14+j} offset:{slot*8192 + hb*4096}")
            e("s_waitcnt lgkmcnt(0)")
        issue("V", slot, 15)
        if compute:
            for j in range(8):
                r = VF + j * 4
                e(f"v_mfma_f32_16x16x32_bf16 v[{OA+4*j}:{OA+4*j+3}], v[{r}:{r+3}], v[{P0}:{P0+3}], v[{OA+4*j}:{OA+4*j+3}]")
    e("s_add_u32 s34, s34, 1")
    e("s_cmp_lt_u32 s34, 8")
    e("s_cbranch_scc1 L_attn_loop")
    CB = 131072
    e("s_nop 7")
    e("s_nop 7")
    e("v_lshl_add_u32 v40, v22, 0, 0")
    e("s_lshl_b32 s28, s3, 11")
    e(f"s_add_u32 s28, s28, {CB}")
    e("v_lshlrev_b32 v40, 9, v22")
    e("v_lshl_add_u32 v40, v3, 4, v40")
    e("v_add_u32 v40, s28, v40")
    e("s_lshl_b32 s29, s3, 2")
    e("v_lshlrev_b32 v41, 4, v22")
    e("v_add_u32 v41, s29, v41")
    e("v_lshlrev_b32 v42, 2, v41")
    e("v_lshl_add_u32 v42, v3, 2, v42")
    e("v_cmp_gt_u32 vcc, 4, v22")
    e("s_and_saveexec_b64 s[30:31], vcc")
    for j in range(8):
        e(f"ds_write_b128 v40, v[{OA+4*j}:{OA+4*j+3}] offset:{64*j}")
    e(f"ds_write_b32 v41, v{MREF} offset:{CB+8192-65536}") if False else None
    e(f"v_add_u32 v41, {CB+8192}, v41")
    e(f"v_add_u32 v42, {CB+8192+64}, v42")
    e(f"ds_write_b32 v41, v{MREF}")
    e(f"ds_write_b32 v42, v{LSUM}")
    e("s_mov_b64 exec, s[30:31]")
    e("s_waitcnt lgkmcnt(0)")
    e("s_barrier")
    e("s_lshl_b32 s28, s3, 4")
    e(f"s_add_u32 s28, s28, {CB+8192}")
    e("v_mov_b32 v40, s28")
    e("ds_read_b128 v[44:47], v40")
    e("s_lshl_b32 s28, s3, 6")
    e(f"s_add_u32 s28, s28, {CB+8192+64}")
    e("v_mov_b32 v41, s28")
    for w in range(4):
        e(f"ds_read_b128 v[{48+4*w}:{48+4*w+3}], v41 offset:{16*w}")
    e("s_lshl_b32 s28, s3, 9")
    e(f"s_add_u32 s28, s28, {CB}")
    e("v_lshlrev_b32 v42, 3, v2")
    e("v_add_u32 v42, s28, v42")
    for w in range(4):
        e(f"ds_read_b64 v[{64+2*w}:{64+2*w+1}], v42 offset:{2048*w}")
    e("s_waitcnt lgkmcnt(0)")
    e("v_max3_f32 v72, v44, v45, v46")
    e("v_max_f32 v72, v72, v47")
    for w in range(4):
        e(f"v_sub_f32 v{44+w}, v{44+w}, v72")
        e(f"v_mul_f32 v{44+w}, s33, v{44+w}")
        e(f"v_exp_f32 v{44+w}, v{44+w}")
    for w in range(4):
        e(f"v_add_f32 v{48+4*w}, v{48+4*w}, v{49+4*w}")
        e(f"v_add_f32 v{50+4*w}, v{50+4*w}, v{51+4*w}")
        e(f"v_add_f32 v{48+4*w}, v{48+4*w}, v{50+4*w}")
    e("v_mul_f32 v73, v44, v48")
    e("v_mul_f32 v74, v44, v64")
    e("v_mul_f32 v75, v44, v65")
    for w in range(1, 4):
        e(f"v_fmac_f32 v73, v{44+w}, v{48+4*w}")
        e(f"v_fmac_f32 v74, v{44+w}, v{64+2*w}")
        e(f"v_fmac_f32 v75, v{44+w}, v{65+2*w}")
    e("s_lshr_b32 s28, s2, 2")
    e("s_lshl_b32 s28, s28, 2")
    e("s_add_u32 s28, s28, s3")
    e("s_lshl_b32 s28, s28, 2")
    e("s_and_b32 s29, s2, 3")
    e("s_add_u32 s28, s28, s29")
    e("s_lshl_b32 s29, s28, 9")
    e(f"s_add_u32 s29, s29, {PO_OFF}")
    e("v_lshlrev_b32 v42, 3, v2")
    e("buffer_store_dwordx2 v[74:75], v42, s[24:27], s29 offen")
    e("s_lshl_b32 s29, s28, 3")
    e(f"s_add_u32 s29, s29, {PML_OFF}")
    e("v_mov_b32 v76, v72")
    e("v_mov_b32 v77, v73")
    e("v_mov_b32 v43, 0")
    e("v_cmp_eq_u32 vcc, 0, v2")
    e("s_and_saveexec_b64 s[30:31], vcc")
    e("buffer_store_dwordx2 v[76:77], v43, s[24:27], s29 offen")
    e("s_waitcnt vmcnt(0)")
    e.label(f"L_{name}_end")
    stamp(e, KIDX, 1)
    e.label(f"L_{name}_exit")
    e("s_endpgm")
    for rl, bl in rares:
        e.label(rl)
        e(f"ds_bpermute_b32 v{T0+1}, v160, v{T0}")
        e("s_waitcnt lgkmcnt(0)")
        e(f"v_max_f32 v{T0}, v{T0}, v{T0+1}")
        e(f"ds_bpermute_b32 v{T0+1}, v161, v{T0}")
        e("s_waitcnt lgkmcnt(0)")
        e(f"v_max3_f32 v{T0}, v{T0}, v{T0+1}, v{MREF}")
        e(f"v_sub_f32 v{T0+1}, v{MREF}, v{T0}")
        e(f"v_mul_f32 v{T0+1}, s33, v{T0+1}")
        e(f"v_exp_f32 v{T0+1}, v{T0+1}")
        e("s_nop 0")
        for i in range(32):
            e(f"v_mul_f32 v{OA+i}, v{OA+i}, v{T0+1}")
        e(f"v_mul_f32 v{LSUM}, v{LSUM}, v{T0+1}")
        e(f"v_mov_b32 v{MREF}, v{T0}")
        e(f"v_mul_f32 v{MNEG}, s33, v{T0}")
        e(f"v_sub_f32 v{MNEG}, 0, v{MNEG}")
        e(f"v_add_f32 v{THR}, 0x40a00000, v{T0}")
        e(f"s_branch {bl}")
    return kernel_desc(name, 168)


def gen_wo(e):
    name = "wo_kernel"
    KIDX = 2
    kernel_begin(e, name)
    e("s_cmp_ge_u32 s2, 256")
    e(f"s_cbranch_scc1 L_{name}_exit")
    stamp(e, KIDX, 0)
    e("s_load_dwordx2 s[6:7], s[0:1], 32")
    e("s_load_dwordx2 s[8:9], s[0:1], 96")
    e("v_lshrrev_b32 v1, 6, v0")
    e("v_and_b32 v2, 63, v0")
    e("s_nop 0")
    e("v_readfirstlane_b32 s3, v1")
    e("s_lshr_b32 s10, s2, 4")
    e("s_and_b32 s11, s2, 15")
    e("s_waitcnt lgkmcnt(0)")
    srd(e, 16, 6, 7, 4 << 20)
    srd(e, 20, 8, 9, WS_USED)
    e("v_lshrrev_b32 v3, 2, v2")
    e("v_lshlrev_b32 v3, 10, v3")
    e("v_and_b32 v4, 3, v2")
    e("v_lshl_add_u32 v3, v4, 4, v3")
    e("s_lshl_b32 s24, s10, 18")
    e("s_lshl_b32 s25, s11, 6")
    e("s_add_u32 s24, s24, s25")
    e("s_lshl_b32 s25, s3, 14")
    e("s_add_u32 s24, s24, s25")
    e("s_lshl_b32 s26, s3, 10")
    e("s_add_u32 s26, s26, 4096")
    for it in range(4):
        e("s_mov_b32 m0, s26")
        e("s_nop 0")
        e("buffer_load_dwordx4 v3, s[16:19], s24 offen lds")
        if it < 3:
            e("s_add_u32 s26, s26, 4096")
            e("s_add_u32 s24, s24, 65536")
    e("v_lshrrev_b32 v5, 5, v0")
    e("v_bfe_u32 v6, v0, 4, 1")
    e("v_and_b32 v7, 15, v0")
    e("v_lshl_add_u32 v8, v5, 5, v6")
    e("s_lshl_b32 s25, s10, 1")
    e("v_add_u32 v8, s25, v8")
    e("v_lshlrev_b32 v9, 5, v8")
    e(f"s_mov_b32 s27, {PML_OFF}")
    e("buffer_load_dwordx4 v[16:19], v9, s[20:23], s27 offen")
    e("buffer_load_dwordx4 v[20:23], v9, s[20:23], s27 offen offset:16")
    e("v_lshlrev_b32 v9, 11, v8")
    e("v_lshl_add_u32 v9, v7, 5, v9")
    e(f"s_mov_b32 s27, {PO_OFF}")
    for s in range(4):
        e(f"buffer_load_dwordx4 v[{24+8*s}:{24+8*s+3}], v9, s[20:23], s27 offen offset:{512*s}")
        e(f"buffer_load_dwordx4 v[{28+8*s}:{28+8*s+3}], v9, s[20:23], s27 offen offset:{512*s+16}")
    e(f"s_mov_b32 s33, 0x{LOG2E:08x}")
    e("s_waitcnt vmcnt(8)")
    e("v_max3_f32 v60, v16, v18, v20")
    e("v_max_f32 v60, v60, v22")
    for s in range(4):
        e(f"v_sub_f32 v{16+2*s}, v{16+2*s}, v60")
        e(f"v_mul_f32 v{16+2*s}, s33, v{16+2*s}")
        e(f"v_exp_f32 v{16+2*s}, v{16+2*s}")
    e("s_nop 0")
    e("v_mul_f32 v61, v16, v17")
    for s in range(1, 4):
        e(f"v_fmac_f32 v61, v{16+2*s}, v{17+2*s}")
    e("v_rcp_f32 v61, v61")
    e("s_nop 0")
    for s in range(4):
        e(f"v_mul_f32 v{16+2*s}, v{16+2*s}, v61")
    e("s_waitcnt vmcnt(0)")
    for k in range(8):
        e(f"v_mul_f32 v{64+k}, v16, v{24+k}")
        for s in range(1, 4):
            e(f"v_fmac_f32 v{64+k}, v{16+2*s}, v{24+8*s+k}")
    for k in range(4):
        e(f"v_cvt_pk_bf16_f32 v{72+k}, v{64+2*k}, v{65+2*k}")
    e("v_lshlrev_b32 v9, 4, v0")
    e("ds_write_b128 v9, v[72:75]")
    e("s_waitcnt vmcnt(0) lgkmcnt(0)")
    e("s_barrier")
    e("s_cmp_ge_u32 s3, 2")
    e(f"s_cbranch_scc1 L_{name}_end")
    e("v_lshrrev_b32 v3, 4, v2")
    e("v_bfe_u32 v4, v2, 2, 2")
    e("v_and_b32 v5, 3, v2")
    e("v_lshl_add_u32 v6, v3, 3, v4")
    e("v_lshlrev_b32 v6, 6, v6")
    e("v_lshl_add_u32 v6, v5, 3, v6")
    e("s_lshl_b32 s25, s3, 5")
    e("v_add_u32 v6, s25, v6")
    e("v_and_b32 v7, 7, v2")
    e("v_lshlrev_b32 v7, 9, v7")
    e("v_lshl_add_u32 v7, v3, 4, v7")
    A0, B0 = 16, 48
    for s in range(8):
        e(f"ds_read_b64_tr_b16 v[{A0+4*s}:{A0+4*s+1}], v6 offset:{4096 + s*2048}")
        e(f"ds_read_b64_tr_b16 v[{A0+4*s+2}:{A0+4*s+3}], v6 offset:{4096 + s*2048 + 256}")
        e(f"ds_read_b128 v[{B0+4*s}:{B0+4*s+3}], v7 offset:{s*64}")
        if s % 4 == 3:
            e("s_waitcnt lgkmcnt(0)")
    for s in range(8):
        c = "0" if s == 0 else "v[8:11]"
        e(f"v_mfma_f32_16x16x32_bf16 v[8:11], v[{A0+4*s}:{A0+4*s+3}], v[{B0+4*s}:{B0+4*s+3}], {c}")
    e("v_and_b32 v4, 15, v2")
    e("v_lshlrev_b32 v5, 15, v4")
    e("v_lshl_add_u32 v5, v3, 4, v5")
    e("s_lshl_b32 s24, s10, 11")
    e("s_lshl_b32 s25, s11, 7")
    e("s_add_u32 s24, s24, s25")
    e("s_lshl_b32 s25, s3, 6")
    e("s_add_u32 s24, s24, s25")
    e(f"s_add_u32 s24, s24, {WP_OFF}")
    e("s_nop 7")
    e("v_cmp_gt_u32 vcc, 8, v4")
    e("s_and_saveexec_b64 s[30:31], vcc")
    e("buffer_store_dwordx4 v[8:11], v5, s[20:23], s24 offen")
    e.label(f"L_{name}_end")
    stamp(e, KIDX, 1)
    e.label(f"L_{name}_exit")
    e("s_endpgm")
    return kernel_desc(name, 80)


def gen_final(e):
    name = "final_kernel"
    KIDX = 3
    kernel_begin(e, name)
    e("s_cmp_ge_u32 s2, 256")
    e(f"s_cbranch_scc1 L_{name}_exit")
    stamp(e, KIDX, 0)
    e("s_load_dwordx2 s[4:5], s[0:1], 0")
    e("s_load_dwordx8 s[8:15], s[0:1], 48")
    e("s_load_dwordx2 s[6:7], s[0:1], 80")
    e("s_load_dwordx2 s[16:17], s[0:1], 96")
    e("v_lshrrev_b32 v1, 6, v0")
    e("v_and_b32 v2, 63, v0")
    e("s_nop 0")
    e("v_readfirstlane_b32 s3, v1")
    e("s_lshr_b32 s18, s2, 5")
    e("s_and_b32 s19, s2, 31")
    e("s_waitcnt lgkmcnt(0)")
    srd(e, 20, 4, 5, 8192)
    srd(e, 24, 8, 9, 3584)
    srd(e, 28, 10, 11, 3584)
    srd(e, 32, 12, 13, 3584)
    srd(e, 36, 14, 15, 2)
    srd(e, 40, 6, 7, 8192)
    srd(e, 44, 16, 17, WS_USED)
    e("v_lshlrev_b32 v3, 2, v0")
    e("s_lshl_b32 s48, s18, 15")
    e(f"s_add_u32 s48, s48, {WP_OFF}")
    for i in range(16):
        e(f"s_add_u32 s49, s48, {2048*i}")
        e(f"buffer_load_dword v{16+i}, v3, s[44:47], s49 offen")
    e("v_lshlrev_b32 v4, 1, v0")
    e("s_lshl_b32 s49, s18, 10")
    e("buffer_load_ushort v32, v4, s[20:23], s49 offen")
    e("v_and_b32 v5, 255, v0")
    e("v_lshlrev_b32 v5, 1, v5")
    W1, B1, W2 = 40, 48, 56
    for j in range(7):
        e(f"buffer_load_ushort v{W1+j}, v5, s[24:27], 0 offen offset:{512*j}")
        e(f"buffer_load_ushort v{B1+j}, v5, s[28:31], 0 offen offset:{512*j}")
        e(f"buffer_load_ushort v{W2+j}, v5, s[32:35], 0 offen offset:{512*j}")
    e("v_mov_b32 v6, 0")
    e("buffer_load_ushort v33, v6, s[36:39], 0 offen")
    e("s_waitcnt vmcnt(22)")
    for i in range(1, 16):
        e(f"v_add_f32 v16, v16, v{16+i}")
    bf16r(e, 16)
    e("v_lshlrev_b32 v32, 16, v32")
    e("v_add_f32 v16, v16, v32")
    bf16r(e, 16)
    e("ds_write_b32 v3, v16")
    e("s_waitcnt lgkmcnt(0)")
    e("s_barrier")
    e("v_lshlrev_b32 v7, 5, v2")
    e("ds_read_b128 v[16:19], v7")
    e("ds_read_b128 v[20:23], v7 offset:16")
    e("s_waitcnt lgkmcnt(0)")
    layernorm8(e, 16, 64, 52)
    layernorm8(e, 16, 64, 52)
    e("s_lshr_b32 s50, s3, 2")
    e("s_lshl_b32 s51, s19, 1")
    e("s_add_u32 s51, s51, s50")
    e("s_nop 0")
    for k in range(8):
        e(f"v_readlane_b32 s{56+k}, v{16+k}, s51")
    e("s_waitcnt vmcnt(0)")
    for j in range(7):
        e(f"v_lshlrev_b32 v{W1+j}, 16, v{W1+j}")
        e(f"v_lshlrev_b32 v{B1+j}, 16, v{B1+j}")
        e(f"v_lshlrev_b32 v{W2+j}, 16, v{W2+j}")
    import struct, math
    k0 = -2.0 * math.sqrt(2.0 / math.pi) * math.log2(math.e)
    k1 = k0 * 0.044715
    f2u = lambda f: struct.unpack("<I", struct.pack("<f", f))[0]
    e(f"s_mov_b32 s64, 0x{f2u(k0):08x}")
    e(f"s_mov_b32 s65, 0x{f2u(k1):08x}")
    e("v_mov_b32 v79, s64")
    ACC = 24
    for k in range(8):
        e(f"v_mov_b32 v{ACC+k}, 0")
    for j in range(7):
        for k in range(0, 8, 2):
            a, b_ = 64, 65
            e(f"v_mul_f32 v{a}, s{56+k}, v{W1+j}")
            e(f"v_mul_f32 v{b_}, s{57+k}, v{W1+j}")
            e(f"v_cvt_pk_bf16_f32 v66, v{a}, v{b_}")
            e(f"v_lshlrev_b32 v{a}, 16, v66")
            e(f"v_and_b32 v{b_}, 0xffff0000, v66")
            e(f"v_add_f32 v{a}, v{a}, v{B1+j}")
            e(f"v_add_f32 v{b_}, v{b_}, v{B1+j}")
            e(f"v_cvt_pk_bf16_f32 v66, v{a}, v{b_}")
            e(f"v_lshlrev_b32 v{a}, 16, v66")
            e(f"v_and_b32 v{b_}, 0xffff0000, v66")
            e(f"v_mul_f32 v67, v{a}, v{a}")
            e(f"v_mul_f32 v68, v{b_}, v{b_}")
            e(f"v_fma_f32 v67, v67, s65, v79")
            e(f"v_fma_f32 v68, v68, s65, v79")
            e(f"v_mul_f32 v67, v67, v{a}")
            e(f"v_mul_f32 v68, v68, v{b_}")
            e(f"v_exp_f32 v67, v67")
            e(f"v_exp_f32 v68, v68")
            e(f"s_nop 0")
            e(f"v_add_f32 v67, 1.0, v67")
            e(f"v_add_f32 v68, 1.0, v68")
            e(f"v_rcp_f32 v67, v67")
            e(f"v_rcp_f32 v68, v68")
            e(f"s_nop 0")
            e(f"v_mul_f32 v67, v67, v{a}")
            e(f"v_mul_f32 v68, v68, v{b_}")
            e(f"v_cvt_pk_bf16_f32 v66, v67, v68")
            e(f"v_lshlrev_b32 v67, 16, v66")
            e(f"v_and_b32 v68, 0xffff0000, v66")
            e(f"v_fmac_f32 v{ACC+k}, v67, v{W2+j}")
            e(f"v_fmac_f32 v{ACC+k+1}, v68, v{W2+j}")
    for mod in ["quad_perm:[1,0,3,2] row_mask:0xf", "quad_perm:[2,3,0,1] row_mask:0xf",
                "row_half_mirror row_mask:0xf", "row_mirror row_mask:0xf",
                "row_bcast:15 row_mask:0xa", "row_bcast:31 row_mask:0xc"]:
        e("s_nop 1")
        for k in range(8):
            e(f"v_add_f32_dpp v{ACC+k}, v{ACC+k}, v{ACC+k} {mod} bank_mask:0xf")
    e("s_lshl_b32 s50, s3, 5")
    e("s_add_u32 s50, s50, 2048")
    e("v_mov_b32 v7, s50")
    e("v_cmp_eq_u32 vcc, 63, v2")
    e("s_and_saveexec_b64 s[66:67], vcc")
    e(f"ds_write_b128 v7, v[{ACC}:{ACC+3}]")
    e(f"ds_write_b128 v7, v[{ACC+4}:{ACC+7}] offset:16")
    e("s_mov_b64 exec, s[66:67]")
    e("s_waitcnt lgkmcnt(0)")
    e("s_barrier")
    e("s_cmp_lg_u32 s3, 0")
    e(f"s_cbranch_scc1 L_{name}_end")
    e("v_cmp_gt_u32 vcc, 16, v2")
    e("s_and_saveexec_b64 s[66:67], vcc")
    e("v_lshrrev_b32 v7, 3, v2")
    e("v_lshlrev_b32 v7, 7, v7")
    e("v_and_b32 v8, 7, v2")
    e("v_lshl_add_u32 v7, v8, 2, v7")
    for w in range(4):
        e(f"ds_read_b32 v{16+w}, v7 offset:{2048+32*w}")
    e("s_lshl_b32 s50, s19, 6")
    e("v_lshlrev_b32 v8, 2, v2")
    e("v_add_u32 v8, s50, v8")
    e("ds_read_b32 v20, v8")
    e("s_waitcnt lgkmcnt(0)")
    e("v_add_f32 v16, v16, v17")
    e("v_add_f32 v18, v18, v19")
    e("v_add_f32 v16, v16, v18")
    bf16r(e, 16)
    e("v_lshlrev_b32 v33, 16, v33")
    e("v_add_f32 v16, v16, v33")
    bf16r(e, 16)
    e("v_add_f32 v16, v16, v20")
    e("v_cvt_pk_bf16_f32 v16, v16, v16")
    e("v_lshrrev_b32 v8, 1, v8")
    e("s_lshl_b32 s50, s18, 10")
    e("buffer_store_short v16, v8, s[40:43], s50 offen")
    e.label(f"L_{name}_end")
    stamp(e, KIDX, 1)
    e.label(f"L_{name}_exit")
    e("s_endpgm")
    return kernel_desc(name, 80)


def main():
    opt = {}
    for a in sys.argv[2:]:
        k, v = a.split("=")
        opt[k] = {"0": False, "1": True}.get(v, v)
    STAMP["on"] = bool(opt.get("stamp", False))
    e = E()
    descs = []
    e.raw(HEADER.rstrip("\n"))
    only = opt.get("only", "")
    ks = [("qproj_kernel", 256, 256, 24576), ("attn_kernel", 256, 256, 131072 + 8192 + 512),
          ("wo_kernel", 256, 256, 20480), ("final_kernel", 256, 512, 4096)]
    for k, g, b, l in ks:
        if only and k.split("_")[0] not in only.split(","):
            continue
        e.raw(f"; @launch kernel={k} grid=({g},1,1) block=({b},1,1) lds={l}")
    e.raw('.amdgcn_target "amdgcn-amd-amdhsa--gfx950"')
    e.raw(".text")
    descs.append(gen_qproj(e))
    descs.append(gen_attn(e, opt))
    descs.append(gen_wo(e))
    descs.append(gen_final(e))
    e.raw('.section .rodata,"a"')
    for d in descs:
        e.raw(".p2align 6")
        e.raw(d.rstrip("\n"))
    open(sys.argv[1], "w").write(e.text())


main()
```

```python
import sys, struct, math

KNAME = "sequential_preLN__gqa_block_cached__mixer_token_mlp__decode_kernel"
HEADER = open("sequential_preLN__gqa_block_cached__mixer_token_mlp__decode.s.ref").read().split("; Override launch")[0]

Q_OFF = 0x0
PO_OFF = 0x10000
PML_OFF = 0x90000
WP_OFF = 0xA0000
ST_OFF = 0xE0000
CNT_OFF = 0xF0000
WS_USED = 0xF8000

LOG2E = 0x3FB8AA3B
SCALE = 0x3DB504F3
NEGBIG = 0xF149F2CA

X = 131072
L_LN = X
L_CB = X
L_WT = X + 8192
L_Q = X + 24576
L_ST = X + 25600
L_OA = X + 26624
L_H = X + 30720
LDS_TOTAL = 163840

POLL_LIMIT = 400000


class E:
    def __init__(self):
        self.lines = []
        self.lbl = 0

    def __call__(self, s):
        for ln in s.strip("\n").split("\n"):
            self.lines.append("    " + ln.strip())

    def label(self, name):
        self.lines.append(name + ":")

    def raw(self, s):
        self.lines.append(s)

    def newlabel(self, base):
        self.lbl += 1
        return f"L_{base}_{self.lbl}"

    def text(self):
        return "\n".join(self.lines) + "\n"


def srd(e, d, base_lo, nbytes):
    e(f"s_mov_b32 s{d}, s{base_lo}")
    e(f"s_mov_b32 s{d+1}, s{base_lo+1}")
    e(f"s_mov_b32 s{d+2}, {nbytes}")
    e(f"s_mov_b32 s{d+3}, 0x00020000")


def wave_allreduce_add(e, v, t, s0):
    e(f"s_nop 1")
    e(f"v_add_f32_dpp v{v}, v{v}, v{v} quad_perm:[1,0,3,2] row_mask:0xf bank_mask:0xf")
    e(f"s_nop 1")
    e(f"v_add_f32_dpp v{v}, v{v}, v{v} quad_perm:[2,3,0,1] row_mask:0xf bank_mask:0xf")
    e(f"s_nop 1")
    e(f"v_add_f32_dpp v{v}, v{v}, v{v} row_half_mirror row_mask:0xf bank_mask:0xf")
    e(f"s_nop 1")
    e(f"v_add_f32_dpp v{v}, v{v}, v{v} row_mirror row_mask:0xf bank_mask:0xf")
    e(f"s_nop 1")
    e(f"v_readlane_b32 s{s0}, v{v}, 0")
    e(f"v_readlane_b32 s{s0+1}, v{v}, 16")
    e(f"v_readlane_b32 s{s0+2}, v{v}, 32")
    e(f"v_readlane_b32 s{s0+3}, v{v}, 48")
    e(f"s_nop 1")
    e(f"v_mov_b32 v{t}, s{s0}")
    e(f"v_add_f32 v{t}, s{s0+1}, v{t}")
    e(f"v_add_f32 v{v}, s{s0+2}, v{t}")
    e(f"v_add_f32 v{v}, s{s0+3}, v{v}")


def bf16r(e, v):
    e(f"v_cvt_pk_bf16_f32 v{v}, v{v}, v{v}")
    e(f"v_lshlrev_b32 v{v}, 16, v{v}")


def layernorm8(e, x, t, s0):
    e(f"v_add_f32 v{t}, v{x}, v{x+1}")
    for i in range(2, 8):
        e(f"v_add_f32 v{t}, v{t}, v{x+i}")
    wave_allreduce_add(e, t, t + 1, s0)
    e(f"v_mul_f32 v{t}, 0x3b000000, v{t}")
    for i in range(8):
        e(f"v_sub_f32 v{t+2+i}, v{x+i}, v{t}")
    e(f"v_mul_f32 v{t+10}, v{t+2}, v{t+2}")
    for i in range(1, 8):
        e(f"v_fmac_f32 v{t+10}, v{t+2+i}, v{t+2+i}")
    wave_allreduce_add(e, t + 10, t + 1, s0)
    e(f"v_mul_f32 v{t+10}, 0x3b000000, v{t+10}")
    bf16r(e, t + 10)
    e(f"v_add_f32 v{t+10}, 0x3727c5ac, v{t+10}")
    bf16r(e, t + 10)
    e(f"v_sqrt_f32 v{t+10}, v{t+10}")
    e(f"s_nop 0")
    bf16r(e, t + 10)
    e(f"v_rcp_f32 v{t+11}, v{t+10}")
    bf16r(e, t)
    for i in range(8):
        e(f"v_sub_f32 v{x+i}, v{x+i}, v{t}")
    for i in range(0, 8, 2):
        e(f"v_cvt_pk_bf16_f32 v{t+2}, v{x+i}, v{x+i+1}")
        e(f"v_lshlrev_b32 v{x+i}, 16, v{t+2}")
        e(f"v_and_b32 v{x+i+1}, 0xffff0000, v{t+2}")
    for i in range(8):
        e(f"v_mul_f32 v{t+2}, v{x+i}, v{t+11}")
        e(f"v_fma_f32 v{t+3}, -v{t+2}, v{t+10}, v{x+i}")
        e(f"v_fma_f32 v{x+i}, v{t+3}, v{t+11}, v{t+2}")
    for i in range(0, 8, 2):
        e(f"v_cvt_pk_bf16_f32 v{t+2}, v{x+i}, v{x+i+1}")
        e(f"v_lshlrev_b32 v{x+i}, 16, v{t+2}")
        e(f"v_and_b32 v{x+i+1}, 0xffff0000, v{t+2}")


def unpack8(e, src, dst):
    for i in range(4):
        e(f"v_lshlrev_b32 v{dst+2*i}, 16, v{src+i}")
        e(f"v_and_b32 v{dst+2*i+1}, 0xffff0000, v{src+i}")


def gen(e, opt):
    NT = opt.get("nt", "nt")
    STAMP = opt.get("stamp", False)
    SLEEP = int(opt.get("sleep", 1))

    def stamp(k):
        if not STAMP:
            return
        lab = e.newlabel("st")
        e("s_cmp_lg_u32 s3, 0")
        e(f"s_cbranch_scc1 {lab}")
        e("s_memrealtime s[92:93]")
        e("s_waitcnt lgkmcnt(0)")
        e("s_mov_b64 s[94:95], exec")
        e("s_mov_b64 exec, 1")
        e("v_mov_b32 v250, s92")
        e("v_mov_b32 v251, 0")
        e("s_lshl_b32 s96, s2, 6")
        e(f"s_add_u32 s96, s96, {ST_OFF + 4*k}")
        e("buffer_store_dword v250, v251, s[40:43], s96 offen")
        e("s_mov_b64 exec, s[94:95]")
        e.label(lab)

    e.raw(f".globl {KNAME}")
    e.raw(".p2align 8")
    e.raw(f".type {KNAME},@function")
    e.label(KNAME)
    e("s_cmp_ge_u32 s2, 256")
    e("s_cbranch_scc1 L_exit")
    e("s_load_dwordx8 s[4:11], s[0:1], 0")
    e("s_load_dwordx2 s[12:13], s[0:1], 32")
    e("s_load_dwordx8 s[16:23], s[0:1], 48")
    e("s_load_dwordx4 s[24:27], s[0:1], 80")
    e("s_load_dwordx2 s[28:29], s[0:1], 96")
    e("v_lshrrev_b32 v1, 6, v0")
    e("v_and_b32 v2, 63, v0")
    e("v_lshrrev_b32 v3, 4, v2")
    e("v_readfirstlane_b32 s3, v1")
    e("v_and_b32 v22, 15, v2")
    e("s_lshr_b32 s72, s2, 2")
    e("s_and_b32 s73, s2, 3")
    e("s_lshl_b32 s75, s72, 21")
    e("s_waitcnt lgkmcnt(0)")
    e("s_add_u32 s32, s6, s75")
    e("s_addc_u32 s33, s7, 0")
    e("s_mov_b32 s34, 0x200000")
    e("s_mov_b32 s35, 0x00020000")
    e("s_add_u32 s36, s8, s75")
    e("s_addc_u32 s37, s9, 0")
    e("s_mov_b32 s38, 0x200000")
    e("s_mov_b32 s39, 0x00020000")
    srd(e, 40, 28, WS_USED)
    srd(e, 44, 4, 8192)
    srd(e, 48, 10, 4 << 20)
    srd(e, 52, 16, 3584)
    srd(e, 56, 18, 3584)
    srd(e, 60, 20, 3584)
    srd(e, 64, 22, 2)
    srd(e, 68, 24, 8192)
    srd(e, 84, 12, 4 << 20)
    e(f"s_mov_b32 s80, 0x{SCALE:08x}")
    e(f"s_mov_b32 s81, 0x{LOG2E:08x}")
    stamp(0)
    e("s_lshl_b32 s75, s3, 10")
    e("v_lshlrev_b32 v5, 4, v2")
    e("buffer_load_dwordx4 v[8:11], v5, s[44:47], s75 offen")
    e("s_cmp_ge_u32 s3, 4")
    e("s_cbranch_scc1 L_helper_h1")

    VK, VV = 12, 16
    for i in range(4):
        e(f"v_add_u32 v23, {4*i}, v3")
        e(f"v_xor_b32 v23, v23, v22")
        e(f"v_lshlrev_b32 v23, 4, v23")
        e(f"v_lshl_add_u32 v{VK+i}, v3, 8, v23")
    for i in range(2):
        e(f"v_add_u32 v23, {4*i}, v3")
        e(f"v_lshlrev_b32 v23, 1, v23")
        e(f"v_xor_b32 v23, v23, v22")
        e(f"v_lshlrev_b32 v23, 4, v23")
        e(f"v_lshl_add_u32 v{VV+i}, v3, 8, v23")
    e("s_lshl_b32 s74, s3, 15")
    VC = 18
    e("s_lshl_b32 s75, s72, 8")
    e(f"s_add_u32 s75, s75, {CNT_OFF}")
    e("v_mov_b32 v20, s75")
    e("v_mov_b32 v21, 1")

    def issue(kind, slot, soff):
        srdn = 32 if kind == "K" else 36
        ldsoff = (0 if kind == "K" else 16384) + slot * 8192
        for half in range(2):
            e(f"s_add_u32 s76, s74, {ldsoff + half*4096}")
            e(f"s_mov_b32 m0, s76")
            if half == 1:
                e(f"s_add_u32 s77, s{soff}, 4096")
            else:
                e(f"s_mov_b32 s77, s{soff}")
            for i in range(4):
                vo = (VK + i) if kind == "K" else (VV + (i & 1))
                e(f"buffer_load_dwordx4 v{vo}, s[{srdn}:{srdn+3}], s77 offen offset:{1024*i} {NT} lds")

    def claim(slot):
        e("s_mov_b64 exec, 1")
        e(f"global_atomic_add v{VC+slot}, v20, v21, s[28:29] sc0 sc1")
        e("s_mov_b64 exec, -1")

    e("s_lshl_b32 s75, s73, 2")
    e("s_add_u32 s75, s75, s3")
    e("s_lshl_b32 s78, s75, 15")
    e("s_add_u32 s79, s78, 8192")
    e("s_lshl_b32 s75, s75, 2")
    e("s_sub_u32 s76, s75, 62")
    e(f"v_mov_b32 v{VC}, s76")
    e("s_sub_u32 s76, s75, 61")
    e(f"v_mov_b32 v{VC+1}, s76")
    e("v_mov_b32 v23, 0")
    issue("K", 0, 78)
    e("buffer_load_dword v239, v23, s[44:47], 0 offen")
    issue("V", 0, 78)
    issue("K", 1, 79)
    e("buffer_load_dword v239, v23, s[44:47], 0 offen")
    issue("V", 1, 79)
    e("s_waitcnt vmcnt(34)")
    e("s_branch L_ln")

    e.label("L_helper_h1")
    e("s_cmp_lg_u32 s3, 5")
    e("s_cbranch_scc1 L_h1_noclear")
    for i in range(4):
        e(f"v_mov_b32 v{16+i}, -1")
    e("v_lshlrev_b32 v12, 11, v3")
    e("v_lshl_add_u32 v12, v22, 5, v12")
    e("s_lshl_b32 s75, s72, 13")
    e("s_lshl_b32 s76, s73, 9")
    e("s_add_u32 s75, s75, s76")
    e(f"s_add_u32 s75, s75, {PO_OFF}")
    e("buffer_store_dwordx4 v[16:19], v12, s[40:43], s75 offen sc1")
    e("buffer_store_dwordx4 v[16:19], v12, s[40:43], s75 offen offset:16 sc1")
    e("v_lshrrev_b32 v12, 3, v2")
    e("v_lshlrev_b32 v12, 15, v12")
    e("v_and_b32 v13, 7, v2")
    e("v_lshl_add_u32 v12, v13, 4, v12")
    e("s_lshr_b32 s75, s2, 4")
    e("s_lshl_b32 s75, s75, 11")
    e("s_and_b32 s76, s2, 7")
    e("s_lshl_b32 s76, s76, 8")
    e("s_add_u32 s75, s75, s76")
    e("s_bfe_u32 s76, s2, 0x10003")
    e("s_lshl_b32 s76, s76, 7")
    e("s_add_u32 s75, s75, s76")
    e(f"s_add_u32 s75, s75, {WP_OFF}")
    e("buffer_store_dwordx4 v[16:19], v12, s[40:43], s75 offen sc1")
    e("v_lshlrev_b32 v12, 5, v2")
    e("s_lshl_b32 s75, s72, 7")
    e("s_lshl_b32 s76, s73, 3")
    e("s_add_u32 s75, s75, s76")
    e(f"s_add_u32 s75, s75, {PML_OFF}")
    e("s_mov_b64 exec, 15")
    e("buffer_store_dwordx2 v[16:17], v12, s[40:43], s75 offen sc1")
    e("s_mov_b64 exec, -1")
    e("s_and_b32 s75, s2, 31")
    e("s_cmp_ge_u32 s75, 8")
    e("s_cbranch_scc1 L_h1_cleared")
    e("s_lshl_b32 s75, s75, 3")
    e("s_lshr_b32 s76, s2, 5")
    e("s_add_u32 s75, s75, s76")
    e("s_lshl_b32 s75, s75, 8")
    e(f"s_add_u32 s75, s75, {CNT_OFF}")
    e("v_mov_b32 v12, 0")
    e("s_mov_b64 exec, 1")
    e("buffer_store_dword v12, v12, s[40:43], s75 offen sc1")
    e("s_mov_b64 exec, -1")
    e.label("L_h1_cleared")
    e("s_waitcnt vmcnt(0)")
    e.label("L_h1_noclear")
    e("s_lshr_b32 s75, s2, 5")
    e("s_lshl_b32 s75, s75, 3")
    e("s_and_b32 s76, s2, 7")
    e("s_add_u32 s75, s75, s76")
    e("s_lshl_b32 s75, s75, 2")
    e("s_lshr_b32 s76, s2, 3")
    e("s_and_b32 s76, s76, 3")
    e("s_add_u32 s88, s75, s76")
    e("v_lshrrev_b32 v12, 1, v2")
    e("v_lshlrev_b32 v12, 13, v12")
    e("v_and_b32 v13, 1, v2")
    e("v_lshl_add_u32 v12, v13, 4, v12")
    e("s_sub_u32 s89, s3, 4")
    e("s_lshl_b32 s75, s88, 5")
    e("s_lshl_b32 s76, s89, 18")
    e("s_add_u32 s75, s75, s76")
    e("s_lshl_b32 s76, s89, 10")
    e(f"s_add_u32 s76, s76, {L_WT}")
    for i in range(4):
        e("s_mov_b32 m0, s76")
        e("s_nop 0")
        e("buffer_load_dwordx4 v12, s[48:51], s75 offen lds")
        if i < 3:
            e("s_add_u32 s76, s76, 4096")
            e(f"s_add_u32 s75, s75, {128*8192}")
    e("s_waitcnt vmcnt(4)")
    e.label("L_ln")
    unpack8(e, 8, 24)
    layernorm8(e, 24, 40, 92)
    for i in range(4):
        e(f"v_cvt_pk_bf16_f32 v{32+i}, v{24+2*i}, v{24+2*i+1}")
    e("s_lshl_b32 s75, s3, 10")
    e(f"s_add_u32 s75, s75, {L_LN}")
    e("v_add_u32 v6, s75, v5")
    e("ds_write_b128 v6, v[32:35]")
    e("s_cmp_lt_u32 s3, 4")
    e("s_cbranch_scc1 L_b1_s")
    e("s_waitcnt vmcnt(0)")
    e.label("L_b1_s")
    e("s_waitcnt lgkmcnt(0)")
    e("s_barrier")
    e("s_cmp_lt_u32 s3, 4")
    e("s_cbranch_scc1 L_s_pre")
    e("s_cmp_lg_u32 s3, 4")
    e("s_cbranch_scc1 L_b2")
    e("v_bfe_u32 v4, v2, 2, 2")
    e("v_and_b32 v5, 3, v2")
    e("v_lshl_add_u32 v6, v3, 3, v4")
    e("v_lshlrev_b32 v6, 5, v6")
    e("v_lshl_add_u32 v6, v5, 3, v6")
    e(f"v_add_u32 v6, {L_WT}, v6")
    e("v_and_b32 v7, 7, v2")
    e("v_lshlrev_b32 v7, 10, v7")
    e("v_lshl_add_u32 v7, v3, 4, v7")
    e(f"v_add_u32 v7, {L_LN}, v7")
    A0, B0 = 32, 96
    for s in range(16):
        e(f"ds_read_b64_tr_b16 v[{A0+4*s}:{A0+4*s+1}], v6 offset:{s*1024}")
        e(f"ds_read_b64_tr_b16 v[{A0+4*s+2}:{A0+4*s+3}], v6 offset:{s*1024 + 128}")
        e(f"ds_read_b128 v[{B0+4*s}:{B0+4*s+3}], v7 offset:{s*64}")
        if s % 4 == 3:
            e("s_waitcnt lgkmcnt(0)")
    for s in range(16):
        c = "0" if s == 0 else "v[8:11]"
        e(f"v_mfma_f32_16x16x32_bf16 v[8:11], v[{A0+4*s}:{A0+4*s+3}], v[{B0+4*s}:{B0+4*s+3}], {c}")
    e("v_lshlrev_b32 v5, 13, v22")
    e("v_lshl_add_u32 v5, v3, 3, v5")
    e("s_lshl_b32 s75, s88, 5")
    e(f"s_add_u32 s75, s75, {Q_OFF}")
    e("s_nop 7")
    e("v_cvt_pk_bf16_f32 v12, v8, v9")
    e("v_cvt_pk_bf16_f32 v13, v10, v11")
    e("v_cmp_gt_u32 vcc, 8, v22")
    e("s_and_saveexec_b64 s[82:83], vcc")
    e("buffer_store_dwordx2 v[12:13], v5, s[40:43], s75 offen sc1")
    e("s_mov_b64 exec, s[82:83]")
    e("s_waitcnt vmcnt(0)")
    e("v_mov_b32 v14, s88")
    e("v_mov_b32 v15, 1")
    e("s_and_b32 s76, s72, 7")
    e("s_lshl_b32 s76, s76, 5")
    e("v_lshlrev_b32 v16, 2, v2")
    e("v_add_u32 v16, s76, v16")
    e("s_mov_b64 exec, 1")
    e("global_store_byte v14, v15, s[26:27] sc1")
    e("s_mov_b64 exec, 0xff")
    e("s_mov_b32 s90, 0")
    e("s_mov_b32 s91, 0x01010101")
    e.label("L_qpoll")
    e("global_load_dword v17, v16, s[26:27] sc1")
    e("s_waitcnt vmcnt(0)")
    e("v_cmp_ne_u32 vcc, s91, v17")
    e("s_nop 1")
    e("s_cmp_eq_u64 vcc, 0")
    e("s_cbranch_scc1 L_qready")
    e("s_add_u32 s90, s90, 1")
    e(f"s_cmp_ge_u32 s90, {POLL_LIMIT}")
    e("s_cbranch_scc1 L_qready")
    e(f"s_sleep {SLEEP}")
    e("s_branch L_qpoll")
    e.label("L_qready")
    e("s_mov_b64 exec, -1")
    e("s_lshl_b32 s75, s72, 10")
    e(f"s_add_u32 s75, s75, {Q_OFF}")
    e("v_lshlrev_b32 v5, 4, v2")
    e("buffer_load_dwordx4 v[8:11], v5, s[40:43], s75 offen sc1")
    e(f"v_add_u32 v6, {L_Q}, v5")
    e("s_waitcnt vmcnt(0)")
    e("ds_write_b128 v6, v[8:11]")
    e("s_waitcnt lgkmcnt(0)")
    e("s_branch L_b2")
    e.label("L_s_pre")
    KA, VA = 24, 28
    for i in range(4):
        e(f"v_add_u32 v23, {4*i}, v3")
        e(f"v_xor_b32 v23, v23, v22")
        e(f"v_lshlrev_b32 v23, 4, v23")
        e(f"v_lshl_add_u32 v23, v22, 8, v23")
        e(f"v_add_u32 v{KA+i}, s74, v23")
    e("v_bfe_u32 v40, v2, 2, 2")
    e("v_lshl_add_u32 v40, v3, 2, v40")
    e("v_and_b32 v41, 7, v40")
    e("v_lshlrev_b32 v41, 1, v41")
    e("v_bfe_u32 v42, v2, 1, 1")
    e("v_and_b32 v43, 1, v2")
    e("v_lshlrev_b32 v44, 8, v40")
    e("v_lshl_add_u32 v44, v43, 3, v44")
    e("v_add_u32 v44, s74, v44")
    e("v_add_u32 v44, 16384, v44")
    for j in range(8):
        e(f"v_xor_b32 v23, {2*j}, v41")
        e(f"v_add_u32 v23, v23, v42")
        e(f"v_lshl_add_u32 v{VA+j}, v23, 4, v44")
    QF, KF, VF, S0, P0, T0, OA = 36, 52, 84, 116, 124, 128, 144
    MREF, MNEG, THR, LSUM = 136, 137, 138, 139
    BP0, BP1 = 140, 141
    for i in range(32):
        e(f"v_mov_b32 v{OA+i}, 0")
    for i in range(16):
        e(f"v_mov_b32 v{QF+i}, 0")
    e(f"v_mov_b32 v{MREF}, 0x{NEGBIG:08x}")
    e(f"v_mov_b32 v{THR}, 0x{NEGBIG:08x}")
    e(f"v_mov_b32 v{MNEG}, 0")
    e(f"v_mov_b32 v{LSUM}, 0")
    e(f"v_xor_b32 v{BP0}, 16, v2")
    e(f"v_lshlrev_b32 v{BP0}, 2, v{BP0}")
    e(f"v_xor_b32 v{BP1}, 32, v2")
    e(f"v_lshlrev_b32 v{BP1}, 2, v{BP1}")
    e("v_lshlrev_b32 v4, 8, v22")
    e("v_lshl_add_u32 v4, v3, 4, v4")
    e(f"v_add_u32 v4, {L_Q}, v4")
    e.label("L_b2")
    e("s_barrier")
    stamp(1)
    e("s_cmp_ge_u32 s3, 4")
    e("s_cbranch_scc1 L_helper_mid")
    e("v_cmp_gt_u32 vcc, 4, v22")
    e("s_and_saveexec_b64 s[82:83], vcc")
    for i in range(4):
        e(f"ds_read_b128 v[{QF+4*i}:{QF+4*i+3}], v4 offset:{64*i}")
    e("s_mov_b64 exec, s[82:83]")
    e("s_waitcnt lgkmcnt(0)")
    if STAMP:
        e("s_waitcnt vmcnt(0)")
    e.label("L_loop")
    rares = []
    for slot in range(2):
        e("s_waitcnt vmcnt(25)")
        for u in range(2):
            for i in range(4):
                r = KF + (u * 4 + i) * 4
                e(f"ds_read_b128 v[{r}:{r+3}], v{KA+i} offset:{slot*8192 + u*4096}")
        e(f"v_readfirstlane_b32 s75, v{VC+slot}")
        e("s_add_u32 s75, s75, 64")
        e("s_min_u32 s75, s75, 256")
        e(f"s_lshl_b32 s{78+slot}, s75, 13")
        e("s_waitcnt lgkmcnt(0)")
        issue("K", slot, 78 + slot)
        claim(slot)
        for i in range(4):
            for u in range(2):
                r = KF + (u * 4 + i) * 4
                c = "0" if i == 0 else f"v[{S0+4*u}:{S0+4*u+3}]"
                e(f"v_mfma_f32_16x16x32_bf16 v[{S0+4*u}:{S0+4*u+3}], v[{r}:{r+3}], v[{QF+4*i}:{QF+4*i+3}], {c}")
        e("s_nop 7")
        for i in range(4):
            e(f"v_cvt_pk_bf16_f32 v{T0+i}, v{S0+2*i}, v{S0+2*i+1}")
        for i in range(4):
            e(f"v_lshlrev_b32 v{S0+2*i}, 16, v{T0+i}")
            e(f"v_and_b32 v{S0+2*i+1}, 0xffff0000, v{T0+i}")
        for i in range(8):
            e(f"v_mul_f32 v{S0+i}, s80, v{S0+i}")
        for i in range(4):
            e(f"v_cvt_pk_bf16_f32 v{T0+i}, v{S0+2*i}, v{S0+2*i+1}")
        for i in range(4):
            e(f"v_lshlrev_b32 v{S0+2*i}, 16, v{T0+i}")
            e(f"v_and_b32 v{S0+2*i+1}, 0xffff0000, v{T0+i}")
        e(f"v_max3_f32 v{T0}, v{S0}, v{S0+1}, v{S0+2}")
        e(f"v_max3_f32 v{T0+1}, v{S0+3}, v{S0+4}, v{S0+5}")
        e(f"v_max3_f32 v{T0}, v{T0}, v{S0+6}, v{S0+7}")
        e(f"v_max_f32 v{T0}, v{T0}, v{T0+1}")
        e(f"v_cmp_gt_f32 vcc, v{T0}, v{THR}")
        rl, bl = f"L_rare{slot}", f"L_back{slot}"
        e(f"s_cbranch_vccnz {rl}")
        e.label(bl)
        rares.append((rl, bl))
        for i in range(8):
            e(f"v_fma_f32 v{S0+i}, v{S0+i}, s81, v{MNEG}")
        for i in range(8):
            e(f"v_exp_f32 v{S0+i}, v{S0+i}")
        e("s_nop 0")
        for i in range(4):
            e(f"v_cvt_pk_bf16_f32 v{P0+i}, v{S0+2*i}, v{S0+2*i+1}")
        e(f"v_add_f32 v{T0}, v{S0}, v{S0+1}")
        e(f"v_add_f32 v{T0+1}, v{S0+2}, v{S0+3}")
        e(f"v_add_f32 v{T0+2}, v{S0+4}, v{S0+5}")
        e(f"v_add_f32 v{T0+3}, v{S0+6}, v{S0+7}")
        e(f"v_add_f32 v{T0}, v{T0}, v{T0+1}")
        e(f"v_add_f32 v{T0+2}, v{T0+2}, v{T0+3}")
        e(f"v_add_f32 v{T0}, v{T0}, v{T0+2}")
        e(f"v_add_f32 v{LSUM}, v{LSUM}, v{T0}")
        e("s_waitcnt vmcnt(26)")
        for j in range(8):
            for hb in range(2):
                r = VF + j * 4 + hb * 2
                e(f"ds_read_b64_tr_b16 v[{r}:{r+1}], v{VA+j} offset:{slot*8192 + hb*4096}")
        e("s_waitcnt lgkmcnt(0)")
        issue("V", slot, 78 + slot)
        for j in range(8):
            r = VF + j * 4
            e(f"v_mfma_f32_16x16x32_bf16 v[{OA+4*j}:{OA+4*j+3}], v[{r}:{r+3}], v[{P0}:{P0+3}], v[{OA+4*j}:{OA+4*j+3}]")
        e(f"s_cmp_ge_u32 s{78+(slot^1)}, 0x200000")
        if slot == 0:
            e("s_cbranch_scc1 L_loop_done")
        else:
            e("s_cbranch_scc0 L_loop")
    e.label("L_loop_done")
    e("s_nop 7")
    e("s_nop 7")
    e("s_lshl_b32 s75, s3, 11")
    e(f"s_add_u32 s75, s75, {L_CB}")
    e("v_lshlrev_b32 v40, 9, v22")
    e("v_lshl_add_u32 v40, v3, 4, v40")
    e("v_add_u32 v40, s75, v40")
    e("s_lshl_b32 s76, s3, 2")
    e("v_lshlrev_b32 v41, 4, v22")
    e("v_add_u32 v41, s76, v41")
    e("v_lshlrev_b32 v42, 2, v41")
    e("v_lshl_add_u32 v42, v3, 2, v42")
    e(f"v_add_u32 v41, {L_ST}, v41")
    e(f"v_add_u32 v42, {L_ST+64}, v42")
    e("v_cmp_gt_u32 vcc, 4, v22")
    e("s_and_saveexec_b64 s[82:83], vcc")
    for j in range(8):
        e(f"ds_write_b128 v40, v[{OA+4*j}:{OA+4*j+3}] offset:{64*j}")
    e(f"ds_write_b32 v41, v{MREF}")
    e(f"ds_write_b32 v42, v{LSUM}")
    e("s_mov_b64 exec, s[82:83]")
    e("s_branch L_b3")

    e.label("L_helper_mid")
    e("v_lshrrev_b32 v12, 2, v2")
    e("v_lshlrev_b32 v12, 10, v12")
    e("v_and_b32 v13, 3, v2")
    e("v_lshl_add_u32 v12, v13, 4, v12")
    e("s_lshr_b32 s75, s2, 4")
    e("s_lshl_b32 s75, s75, 18")
    e("s_and_b32 s76, s2, 7")
    e("s_lshl_b32 s76, s76, 7")
    e("s_add_u32 s75, s75, s76")
    e("s_bfe_u32 s76, s2, 0x10003")
    e("s_lshl_b32 s76, s76, 6")
    e("s_add_u32 s75, s75, s76")
    e("s_lshl_b32 s76, s89, 14")
    e("s_add_u32 s75, s75, s76")
    e("s_lshl_b32 s76, s89, 10")
    e(f"s_add_u32 s76, s76, {L_WT}")
    for it in range(4):
        e("s_mov_b32 m0, s76")
        e("s_nop 0")
        e("buffer_load_dwordx4 v12, s[84:87], s75 offen lds")
        if it < 3:
            e("s_add_u32 s76, s76, 4096")
            e("s_add_u32 s75, s75, 65536")
    e.label("L_b3")
    e("s_waitcnt vmcnt(0) lgkmcnt(0)")
    e("s_barrier")
    stamp(2)
    e("s_cmp_ge_u32 s3, 2")
    e("s_cbranch_scc1 L_t2")
    e("v_lshrrev_b32 v4, 5, v0")
    e("v_and_b32 v5, 31, v0")
    e("v_lshlrev_b32 v6, 4, v4")
    e(f"v_add_u32 v6, {L_ST}, v6")
    e("ds_read_b128 v[44:47], v6")
    e("v_lshlrev_b32 v6, 6, v4")
    e(f"v_add_u32 v6, {L_ST+64}, v6")
    for w in range(4):
        e(f"ds_read_b128 v[{48+4*w}:{48+4*w+3}], v6 offset:{16*w}")
    e("v_lshlrev_b32 v6, 9, v4")
    e("v_lshl_add_u32 v6, v5, 4, v6")
    e(f"v_add_u32 v6, {L_CB}, v6")
    for w in range(4):
        e(f"ds_read_b128 v[{64+4*w}:{64+4*w+3}], v6 offset:{2048*w}")
    e("s_waitcnt lgkmcnt(0)")
    e("v_max3_f32 v80, v44, v45, v46")
    e("v_max_f32 v80, v80, v47")
    for w in range(4):
        e(f"v_sub_f32 v{44+w}, v{44+w}, v80")
        e(f"v_mul_f32 v{44+w}, s81, v{44+w}")
        e(f"v_exp_f32 v{44+w}, v{44+w}")
    for w in range(4):
        e(f"v_add_f32 v{48+4*w}, v{48+4*w}, v{49+4*w}")
        e(f"v_add_f32 v{50+4*w}, v{50+4*w}, v{51+4*w}")
        e(f"v_add_f32 v{48+4*w}, v{48+4*w}, v{50+4*w}")
    e("v_mul_f32 v81, v44, v48")
    for k in range(4):
        e(f"v_mul_f32 v{84+k}, v44, v{64+k}")
    for w in range(1, 4):
        e(f"v_fmac_f32 v81, v{44+w}, v{48+4*w}")
        for k in range(4):
            e(f"v_fmac_f32 v{84+k}, v{44+w}, v{64+4*w+k}")
    e("v_lshlrev_b32 v6, 11, v4")
    e("v_lshl_add_u32 v6, v5, 4, v6")
    e("s_lshl_b32 s75, s72, 13")
    e("s_lshl_b32 s76, s73, 9")
    e("s_add_u32 s75, s75, s76")
    e(f"s_add_u32 s75, s75, {PO_OFF}")
    e("buffer_store_dwordx4 v[84:87], v6, s[40:43], s75 offen sc1")
    e("v_lshlrev_b32 v6, 5, v4")
    e("s_lshl_b32 s75, s72, 7")
    e("s_lshl_b32 s76, s73, 3")
    e("s_add_u32 s75, s75, s76")
    e(f"s_add_u32 s75, s75, {PML_OFF}")
    e("v_cmp_eq_u32 vcc, 0, v5")
    e("s_and_saveexec_b64 s[82:83], vcc")
    e("buffer_store_dwordx2 v[80:81], v6, s[40:43], s75 offen sc1")
    e("s_mov_b64 exec, s[82:83]")
    e.label("L_t2")
    W1, B1, W2 = 200, 208, 216
    e("v_and_b32 v5, 255, v0")
    e("v_lshlrev_b32 v5, 1, v5")
    for j in range(7):
        e(f"buffer_load_ushort v{W1+j}, v5, s[52:55], 0 offen offset:{512*j}")
        e(f"buffer_load_ushort v{B1+j}, v5, s[56:59], 0 offen offset:{512*j}")
        e(f"buffer_load_ushort v{W2+j}, v5, s[60:63], 0 offen offset:{512*j}")
    e("v_mov_b32 v6, 0")
    e("buffer_load_ushort v224, v6, s[64:67], 0 offen")
    e("s_lshr_b32 s75, s2, 5")
    e("s_lshl_b32 s75, s75, 10")
    e("v_lshlrev_b32 v4, 1, v0")
    e("buffer_load_ushort v225, v4, s[44:47], s75 offen")
    e("v_lshlrev_b32 v16, 2, v2")
    e("s_mov_b32 s90, 0")
    e("s_mov_b32 s91, 0x01010101")
    e.label("L_gpoll")
    e("global_load_dword v17, v16, s[26:27] sc1")
    e("s_waitcnt vmcnt(0)")
    e("v_cmp_ne_u32 vcc, s91, v17")
    e("s_nop 1")
    e("s_cmp_eq_u64 vcc, 0")
    e("s_cbranch_scc1 L_gready")
    e("s_add_u32 s90, s90, 1")
    e(f"s_cmp_ge_u32 s90, {POLL_LIMIT}")
    e("s_cbranch_scc1 L_gready")
    e(f"s_sleep {SLEEP}")
    e("s_branch L_gpoll")
    e.label("L_gready")
    e("v_lshrrev_b32 v4, 5, v2")
    e("v_and_b32 v5, 31, v2")
    e("s_lshr_b32 s75, s2, 4")
    e("s_lshl_b32 s75, s75, 1")
    e("s_lshl_b32 s76, s3, 5")
    e("s_add_u32 s75, s75, s76")
    e("v_lshlrev_b32 v6, 5, v4")
    e("s_lshl_b32 s76, s75, 5")
    e(f"s_add_u32 s76, s76, {PML_OFF}")
    e("v_lshlrev_b32 v7, 11, v4")
    e("v_lshl_add_u32 v7, v5, 4, v7")
    e("s_lshl_b32 s77, s75, 11")
    e(f"s_add_u32 s77, s77, {PO_OFF}")
    e("s_mov_b32 s90, 0")
    e.label("L_mlpoll")
    e("buffer_load_dwordx4 v[16:19], v6, s[40:43], s76 offen sc1")
    e("buffer_load_dwordx4 v[20:23], v6, s[40:43], s76 offen offset:16 sc1")
    e("s_waitcnt vmcnt(0)")
    e("v_cmp_eq_u32 vcc, -1, v16")
    for k in range(17, 24):
        e(f"v_cmp_eq_u32 s[82:83], -1, v{k}")
        e("s_or_b64 vcc, vcc, s[82:83]")
    e("s_cmp_eq_u64 vcc, 0")
    e("s_cbranch_scc1 L_mlready")
    e("s_add_u32 s90, s90, 1")
    e(f"s_cmp_ge_u32 s90, {POLL_LIMIT}")
    e("s_cbranch_scc1 L_mlready")
    e(f"s_sleep {SLEEP}")
    e("s_branch L_mlpoll")
    e.label("L_mlready")
    for s in range(4):
        e(f"buffer_load_dwordx4 v[{24+4*s}:{24+4*s+3}], v7, s[40:43], s77 offen offset:{512*s} sc1")
    e("v_max3_f32 v60, v16, v18, v20")
    e("v_max_f32 v60, v60, v22")
    for s in range(4):
        e(f"v_sub_f32 v{44+s}, v{16+2*s}, v60")
        e(f"v_mul_f32 v{44+s}, s81, v{44+s}")
        e(f"v_exp_f32 v{44+s}, v{44+s}")
    e("s_nop 0")
    e("v_mul_f32 v61, v44, v17")
    for s in range(1, 4):
        e(f"v_fmac_f32 v61, v{44+s}, v{17+2*s}")
    e("v_rcp_f32 v61, v61")
    e("s_nop 0")
    for s in range(4):
        e(f"v_mul_f32 v{44+s}, v{44+s}, v61")
    e("s_waitcnt vmcnt(0)")
    e("v_cmp_eq_u32 vcc, -1, v24")
    for k in range(25, 40):
        e(f"v_cmp_eq_u32 s[82:83], -1, v{k}")
        e("s_or_b64 vcc, vcc, s[82:83]")
    e("s_cmp_eq_u64 vcc, 0")
    e("s_cbranch_scc1 L_poready")
    e("s_add_u32 s90, s90, 1")
    e(f"s_cmp_ge_u32 s90, {POLL_LIMIT}")
    e("s_cbranch_scc0 L_mlready")
    e.label("L_poready")
    for k in range(4):
        e(f"v_mul_f32 v{48+k}, v44, v{24+k}")
        for s in range(1, 4):
            e(f"v_fmac_f32 v{48+k}, v{44+s}, v{24+4*s+k}")
    e("v_cvt_pk_bf16_f32 v52, v48, v49")
    e("v_cvt_pk_bf16_f32 v53, v50, v51")
    e("v_lshlrev_b32 v6, 3, v0")
    e(f"v_add_u32 v6, {L_OA}, v6")
    e("ds_write_b64 v6, v[52:53]")
    e("s_waitcnt lgkmcnt(0)")
    e("s_barrier")
    stamp(3)
    e("s_cmp_ge_u32 s3, 2")
    e("s_cbranch_scc1 L_t4")
    e("v_and_b32 v22, 15, v2")
    e("v_bfe_u32 v4, v2, 2, 2")
    e("v_and_b32 v5, 3, v2")
    e("v_lshl_add_u32 v6, v3, 3, v4")
    e("v_lshlrev_b32 v6, 6, v6")
    e("v_lshl_add_u32 v6, v5, 3, v6")
    e("s_lshl_b32 s75, s3, 5")
    e(f"s_add_u32 s75, s75, {L_WT}")
    e("v_add_u32 v6, s75, v6")
    e("v_and_b32 v7, 7, v2")
    e("v_lshlrev_b32 v7, 9, v7")
    e("v_lshl_add_u32 v7, v3, 4, v7")
    e(f"v_add_u32 v7, {L_OA}, v7")
    A0, B0 = 32, 64
    for s in range(8):
        e(f"ds_read_b64_tr_b16 v[{A0+4*s}:{A0+4*s+1}], v6 offset:{s*2048}")
        e(f"ds_read_b64_tr_b16 v[{A0+4*s+2}:{A0+4*s+3}], v6 offset:{s*2048 + 256}")
        e(f"ds_read_b128 v[{B0+4*s}:{B0+4*s+3}], v7 offset:{s*64}")
        if s % 4 == 3:
            e("s_waitcnt lgkmcnt(0)")
    for s in range(8):
        c = "0" if s == 0 else "v[8:11]"
        e(f"v_mfma_f32_16x16x32_bf16 v[8:11], v[{A0+4*s}:{A0+4*s+3}], v[{B0+4*s}:{B0+4*s+3}], {c}")
    e("v_lshlrev_b32 v5, 15, v22")
    e("v_lshl_add_u32 v5, v3, 4, v5")
    e("s_lshr_b32 s75, s2, 4")
    e("s_lshl_b32 s75, s75, 11")
    e("s_and_b32 s76, s2, 7")
    e("s_lshl_b32 s76, s76, 8")
    e("s_add_u32 s75, s75, s76")
    e("s_bfe_u32 s76, s2, 0x10003")
    e("s_lshl_b32 s76, s76, 7")
    e("s_add_u32 s75, s75, s76")
    e("s_lshl_b32 s76, s3, 6")
    e("s_add_u32 s75, s75, s76")
    e(f"s_add_u32 s75, s75, {WP_OFF}")
    e("v_cmp_gt_u32 vcc, 8, v22")
    e("s_and_saveexec_b64 s[82:83], vcc")
    e("buffer_store_dwordx4 v[8:11], v5, s[40:43], s75 offen sc1")
    e("s_mov_b64 exec, s[82:83]")
    e.label("L_t4")
    e("s_lshr_b32 s75, s2, 5")
    e("s_lshl_b32 s75, s75, 15")
    e(f"s_add_u32 s75, s75, {WP_OFF}")
    e("v_lshrrev_b32 v5, 1, v2")
    e("v_lshlrev_b32 v5, 11, v5")
    e("v_and_b32 v6, 1, v2")
    e("v_lshl_add_u32 v5, v6, 7, v5")
    e("s_lshl_b32 s76, s3, 8")
    e("v_add_u32 v5, s76, v5")
    e("s_mov_b32 s90, 0")
    e("s_mov_b32 exec_hi, 0")
    e.label("L_wppoll")
    e("buffer_load_dword v16, v5, s[40:43], s75 offen sc1")
    e("s_waitcnt vmcnt(0)")
    e("v_cmp_eq_u32 vcc, -1, v16")
    e("s_nop 1")
    e("s_cmp_eq_u64 vcc, 0")
    e("s_cbranch_scc1 L_wpready")
    e("s_add_u32 s90, s90, 1")
    e(f"s_cmp_ge_u32 s90, {POLL_LIMIT}")
    e("s_cbranch_scc1 L_wpready")
    e(f"s_sleep {SLEEP}")
    e("s_branch L_wppoll")
    e.label("L_wpready")
    e("s_mov_b64 exec, -1")
    e("v_lshlrev_b32 v3, 2, v0")
    for i in range(16):
        e(f"s_add_u32 s76, s75, {2048*i}")
        e(f"buffer_load_dword v{16+i}, v3, s[40:43], s76 offen sc1")
    e("s_waitcnt vmcnt(0)")
    e("v_cmp_eq_u32 vcc, -1, v16")
    for k in range(17, 32):
        e(f"v_cmp_eq_u32 s[82:83], -1, v{k}")
        e("s_or_b64 vcc, vcc, s[82:83]")
    e("s_cmp_eq_u64 vcc, 0")
    e("s_cbranch_scc1 L_wpok")
    e("s_add_u32 s90, s90, 1")
    e(f"s_cmp_ge_u32 s90, {POLL_LIMIT}")
    e("s_cbranch_scc0 L_wpready")
    e.label("L_wpok")
    for i in range(1, 16):
        e(f"v_add_f32 v16, v16, v{16+i}")
    bf16r(e, 16)
    e("v_lshlrev_b32 v225, 16, v225")
    e("v_add_f32 v16, v16, v225")
    bf16r(e, 16)
    e(f"v_add_u32 v4, {L_H}, v3")
    e("ds_write_b32 v4, v16")
    e("s_waitcnt lgkmcnt(0)")
    e("s_barrier")
    stamp(4)
    e("v_lshlrev_b32 v7, 5, v2")
    e(f"v_add_u32 v7, {L_H}, v7")
    e("ds_read_b128 v[16:19], v7")
    e("ds_read_b128 v[20:23], v7 offset:16")
    e("s_waitcnt lgkmcnt(0)")
    layernorm8(e, 16, 64, 92)
    layernorm8(e, 16, 64, 92)
    e("s_lshr_b32 s75, s3, 2")
    e("s_and_b32 s76, s2, 31")
    e("s_lshl_b32 s77, s76, 1")
    e("s_add_u32 s77, s77, s75")
    e("s_nop 0")
    for k in range(8):
        e(f"v_readlane_b32 s{4+k}, v{16+k}, s77")
    for j in range(7):
        e(f"v_lshlrev_b32 v{W1+j}, 16, v{W1+j}")
        e(f"v_lshlrev_b32 v{B1+j}, 16, v{B1+j}")
        e(f"v_lshlrev_b32 v{W2+j}, 16, v{W2+j}")
    k0 = -2.0 * math.sqrt(2.0 / math.pi) * math.log2(math.e)
    k1 = k0 * 0.044715
    f2u = lambda f: struct.unpack("<I", struct.pack("<f", f))[0]
    e(f"s_mov_b32 s12, 0x{f2u(k0):08x}")
    e(f"s_mov_b32 s13, 0x{f2u(k1):08x}")
    e("v_mov_b32 v79, s12")
    ACC = 24
    for k in range(8):
        e(f"v_mov_b32 v{ACC+k}, 0")
    for j in range(7):
        for k in range(0, 8, 2):
            a, b_ = 64, 65
            e(f"v_mul_f32 v{a}, s{4+k}, v{W1+j}")
            e(f"v_mul_f32 v{b_}, s{5+k}, v{W1+j}")
            e(f"v_cvt_pk_bf16_f32 v66, v{a}, v{b_}")
            e(f"v_lshlrev_b32 v{a}, 16, v66")
            e(f"v_and_b32 v{b_}, 0xffff0000, v66")
            e(f"v_add_f32 v{a}, v{a}, v{B1+j}")
            e(f"v_add_f32 v{b_}, v{b_}, v{B1+j}")
            e(f"v_cvt_pk_bf16_f32 v66, v{a}, v{b_}")
            e(f"v_lshlrev_b32 v{a}, 16, v66")
            e(f"v_and_b32 v{b_}, 0xffff0000, v66")
            e(f"v_mul_f32 v67, v{a}, v{a}")
            e(f"v_mul_f32 v68, v{b_}, v{b_}")
            e(f"v_fma_f32 v67, v67, s13, v79")
            e(f"v_fma_f32 v68, v68, s13, v79")
            e(f"v_mul_f32 v67, v67, v{a}")
            e(f"v_mul_f32 v68, v68, v{b_}")
            e(f"v_exp_f32 v67, v67")
            e(f"v_exp_f32 v68, v68")
            e(f"s_nop 0")
            e(f"v_add_f32 v67, 1.0, v67")
            e(f"v_add_f32 v68, 1.0, v68")
            e(f"v_rcp_f32 v67, v67")
            e(f"v_rcp_f32 v68, v68")
            e(f"s_nop 0")
            e(f"v_mul_f32 v67, v67, v{a}")
            e(f"v_mul_f32 v68, v68, v{b_}")
            e(f"v_cvt_pk_bf16_f32 v66, v67, v68")
            e(f"v_lshlrev_b32 v67, 16, v66")
            e(f"v_and_b32 v68, 0xffff0000, v66")
            e(f"v_fmac_f32 v{ACC+k}, v67, v{W2+j}")
            e(f"v_fmac_f32 v{ACC+k+1}, v68, v{W2+j}")
    for mod in ["quad_perm:[1,0,3,2] row_mask:0xf", "quad_perm:[2,3,0,1] row_mask:0xf",
                "row_half_mirror row_mask:0xf", "row_mirror row_mask:0xf",
                "row_bcast:15 row_mask:0xa", "row_bcast:31 row_mask:0xc"]:
        e("s_nop 1")
        for k in range(8):
            e(f"v_add_f32_dpp v{ACC+k}, v{ACC+k}, v{ACC+k} {mod} bank_mask:0xf")
    e("s_lshl_b32 s75, s3, 5")
    e(f"s_add_u32 s75, s75, {L_ST}")
    e("v_mov_b32 v7, s75")
    e("v_cmp_eq_u32 vcc, 63, v2")
    e("s_and_saveexec_b64 s[82:83], vcc")
    e(f"ds_write_b128 v7, v[{ACC}:{ACC+3}]")
    e(f"ds_write_b128 v7, v[{ACC+4}:{ACC+7}] offset:16")
    e("s_mov_b64 exec, s[82:83]")
    e("s_waitcnt lgkmcnt(0)")
    e("s_barrier")
    e("s_cmp_lg_u32 s3, 0")
    e("s_cbranch_scc1 L_exit")
    e("v_cmp_gt_u32 vcc, 16, v2")
    e("s_and_saveexec_b64 s[82:83], vcc")
    e("v_lshrrev_b32 v7, 3, v2")
    e("v_lshlrev_b32 v7, 7, v7")
    e("v_and_b32 v8, 7, v2")
    e("v_lshl_add_u32 v7, v8, 2, v7")
    e(f"v_add_u32 v7, {L_ST}, v7")
    for w in range(4):
        e(f"ds_read_b32 v{16+w}, v7 offset:{32*w}")
    e("s_lshl_b32 s75, s76, 6")
    e("v_lshlrev_b32 v8, 2, v2")
    e("v_add_u32 v8, s75, v8")
    e(f"v_add_u32 v9, {L_H}, v8")
    e("ds_read_b32 v20, v9")
    e("s_waitcnt lgkmcnt(0)")
    e("v_add_f32 v16, v16, v17")
    e("v_add_f32 v18, v18, v19")
    e("v_add_f32 v16, v16, v18")
    bf16r(e, 16)
    e("v_lshlrev_b32 v224, 16, v224")
    e("v_add_f32 v16, v16, v224")
    bf16r(e, 16)
    e("v_add_f32 v16, v16, v20")
    e("v_cvt_pk_bf16_f32 v16, v16, v16")
    e("v_lshrrev_b32 v8, 1, v8")
    e("s_lshr_b32 s75, s2, 5")
    e("s_lshl_b32 s75, s75, 10")
    e("buffer_store_short v16, v8, s[68:71], s75 offen")
    e("s_mov_b64 exec, s[82:83]")
    stamp(5)
    e.label("L_exit")
    e("s_endpgm")
    for rl, bl in rares:
        e.label(rl)
        e(f"ds_bpermute_b32 v{T0+1}, v{BP0}, v{T0}")
        e("s_waitcnt lgkmcnt(0)")
        e(f"v_max_f32 v{T0}, v{T0}, v{T0+1}")
        e(f"ds_bpermute_b32 v{T0+1}, v{BP1}, v{T0}")
        e("s_waitcnt lgkmcnt(0)")
        e(f"v_max3_f32 v{T0}, v{T0}, v{T0+1}, v{MREF}")
        e(f"v_sub_f32 v{T0+1}, v{MREF}, v{T0}")
        e(f"v_mul_f32 v{T0+1}, s81, v{T0+1}")
        e(f"v_exp_f32 v{T0+1}, v{T0+1}")
        e("s_nop 0")
        for i in range(32):
            e(f"v_mul_f32 v{OA+i}, v{OA+i}, v{T0+1}")
        e(f"v_mul_f32 v{LSUM}, v{LSUM}, v{T0+1}")
        e(f"v_mov_b32 v{MREF}, v{T0}")
        e(f"v_mul_f32 v{MNEG}, s81, v{T0}")
        e(f"v_sub_f32 v{MNEG}, 0, v{MNEG}")
        e(f"v_add_f32 v{THR}, 0x40a00000, v{T0}")
        e(f"s_branch {bl}")


def main():
    opt = {}
    for a in sys.argv[2:]:
        k, v = a.split("=")
        opt[k] = {"0": False, "1": True}.get(v, v)
    e = E()
    e.raw(HEADER.rstrip("\n"))
    e.raw(f"; @launch grid=(256,1,1) block=(512,1,1) lds={LDS_TOTAL}")
    e.raw('.amdgcn_target "amdgcn-amd-amdhsa--gfx950"')
    e.raw(".text")
    gen(e, opt)
    e.raw('.section .rodata,"a"')
    e.raw(".p2align 6")
    e.raw(f""".amdhsa_kernel {KNAME}
  .amdhsa_next_free_vgpr 256
  .amdhsa_next_free_sgpr 102
  .amdhsa_accum_offset 256
  .amdhsa_group_segment_fixed_size 0
  .amdhsa_kernarg_size 104
  .amdhsa_user_sgpr_count 2
  .amdhsa_user_sgpr_kernarg_segment_ptr 1
  .amdhsa_system_sgpr_workgroup_id_x 1
.end_amdhsa_kernel""")
    open(sys.argv[1], "w").write(e.text())


main()
```

```python
import sys, struct, math

KNAME = "sequential_preLN__gqa_block_cached__mixer_token_mlp__decode_kernel"
HEADER = open("sequential_preLN__gqa_block_cached__mixer_token_mlp__decode.s.ref").read().split("; Override launch")[0]

Q_OFF = 0x0
PO_OFF = 0x10000
PML_OFF = 0x90000
WP_OFF = 0xA0000
ST_OFF = 0xE0000
CNT_OFF = 0xF0000
QG_OFF = 0x100000
WS_USED = 0x120000

LOG2E = 0x3FB8AA3B
SCALE = 0x3DB504F3
NEGBIG = 0xF149F2CA

X = 131072
L_LN = X
L_CB = X
L_WT = X + 8192
L_Q = X + 24576
L_ST = X + 25600
L_OA = X + 26624
L_H = X + 30720
LDS_TOTAL = 163840

POLL_LIMIT = 400000


class E:
    def __init__(self):
        self.lines = []
        self.lbl = 0

    def __call__(self, s):
        for ln in s.strip("\n").split("\n"):
            self.lines.append("    " + ln.strip())

    def label(self, name):
        self.lines.append(name + ":")

    def raw(self, s):
        self.lines.append(s)

    def newlabel(self, base):
        self.lbl += 1
        return f"L_{base}_{self.lbl}"

    def text(self):
        return "\n".join(self.lines) + "\n"


def srd(e, d, base_lo, nbytes):
    e(f"s_mov_b32 s{d}, s{base_lo}")
    e(f"s_mov_b32 s{d+1}, s{base_lo+1}")
    e(f"s_mov_b32 s{d+2}, {nbytes}")
    e(f"s_mov_b32 s{d+3}, 0x00020000")


def wave_allreduce_add(e, v, t, s0):
    e(f"s_nop 1")
    e(f"v_add_f32_dpp v{v}, v{v}, v{v} quad_perm:[1,0,3,2] row_mask:0xf bank_mask:0xf")
    e(f"s_nop 1")
    e(f"v_add_f32_dpp v{v}, v{v}, v{v} quad_perm:[2,3,0,1] row_mask:0xf bank_mask:0xf")
    e(f"s_nop 1")
    e(f"v_add_f32_dpp v{v}, v{v}, v{v} row_half_mirror row_mask:0xf bank_mask:0xf")
    e(f"s_nop 1")
    e(f"v_add_f32_dpp v{v}, v{v}, v{v} row_mirror row_mask:0xf bank_mask:0xf")
    e(f"s_nop 1")
    e(f"v_readlane_b32 s{s0}, v{v}, 0")
    e(f"v_readlane_b32 s{s0+1}, v{v}, 16")
    e(f"v_readlane_b32 s{s0+2}, v{v}, 32")
    e(f"v_readlane_b32 s{s0+3}, v{v}, 48")
    e(f"s_nop 1")
    e(f"v_mov_b32 v{t}, s{s0}")
    e(f"v_add_f32 v{t}, s{s0+1}, v{t}")
    e(f"v_add_f32 v{v}, s{s0+2}, v{t}")
    e(f"v_add_f32 v{v}, s{s0+3}, v{v}")


def bf16r(e, v):
    e(f"v_cvt_pk_bf16_f32 v{v}, v{v}, v{v}")
    e(f"v_lshlrev_b32 v{v}, 16, v{v}")


def layernorm8(e, x, t, s0):
    e(f"v_add_f32 v{t}, v{x}, v{x+1}")
    for i in range(2, 8):
        e(f"v_add_f32 v{t}, v{t}, v{x+i}")
    wave_allreduce_add(e, t, t + 1, s0)
    e(f"v_mul_f32 v{t}, 0x3b000000, v{t}")
    for i in range(8):
        e(f"v_sub_f32 v{t+2+i}, v{x+i}, v{t}")
    e(f"v_mul_f32 v{t+10}, v{t+2}, v{t+2}")
    for i in range(1, 8):
        e(f"v_fmac_f32 v{t+10}, v{t+2+i}, v{t+2+i}")
    wave_allreduce_add(e, t + 10, t + 1, s0)
    e(f"v_mul_f32 v{t+10}, 0x3b000000, v{t+10}")
    bf16r(e, t + 10)
    e(f"v_add_f32 v{t+10}, 0x3727c5ac, v{t+10}")
    bf16r(e, t + 10)
    e(f"v_sqrt_f32 v{t+10}, v{t+10}")
    e(f"s_nop 0")
    bf16r(e, t + 10)
    e(f"v_rcp_f32 v{t+11}, v{t+10}")
    bf16r(e, t)
    for i in range(8):
        e(f"v_sub_f32 v{x+i}, v{x+i}, v{t}")
    for i in range(0, 8, 2):
        e(f"v_cvt_pk_bf16_f32 v{t+2}, v{x+i}, v{x+i+1}")
        e(f"v_lshlrev_b32 v{x+i}, 16, v{t+2}")
        e(f"v_and_b32 v{x+i+1}, 0xffff0000, v{t+2}")
    for i in range(8):
        e(f"v_mul_f32 v{t+2}, v{x+i}, v{t+11}")
        e(f"v_fma_f32 v{t+3}, -v{t+2}, v{t+10}, v{x+i}")
        e(f"v_fma_f32 v{x+i}, v{t+3}, v{t+11}, v{t+2}")
    for i in range(0, 8, 2):
        e(f"v_cvt_pk_bf16_f32 v{t+2}, v{x+i}, v{x+i+1}")
        e(f"v_lshlrev_b32 v{x+i}, 16, v{t+2}")
        e(f"v_and_b32 v{x+i+1}, 0xffff0000, v{t+2}")


def unpack8(e, src, dst):
    for i in range(4):
        e(f"v_lshlrev_b32 v{dst+2*i}, 16, v{src+i}")
        e(f"v_and_b32 v{dst+2*i+1}, 0xffff0000, v{src+i}")


def gen(e, opt):
    NT = opt.get("nt", "nt")
    STAMP = opt.get("stamp", False)
    SLEEP = int(opt.get("sleep", 1))
    SLEEP2 = int(opt.get("sleep2", 4))

    def stamp(k, wave=0):
        if not STAMP:
            return
        lab = e.newlabel("st")
        e(f"s_cmp_lg_u32 s3, {wave}")
        e(f"s_cbranch_scc1 {lab}")
        e("s_memrealtime s[92:93]")
        e("s_waitcnt lgkmcnt(0)")
        e("s_mov_b64 s[94:95], exec")
        e("s_mov_b64 exec, 1")
        e("v_mov_b32 v250, s92")
        e("v_mov_b32 v251, 0")
        e("s_lshl_b32 s96, s2, 6")
        e(f"s_add_u32 s96, s96, {ST_OFF + 4*k}")
        e("buffer_store_dword v250, v251, s[40:43], s96 offen")
        e("s_mov_b64 exec, s[94:95]")
        e.label(lab)

    e.raw(f".globl {KNAME}")
    e.raw(".p2align 8")
    e.raw(f".type {KNAME},@function")
    e.label(KNAME)
    e("s_cmp_ge_u32 s2, 256")
    e("s_cbranch_scc1 L_exit")
    e("s_load_dwordx8 s[4:11], s[0:1], 0")
    e("s_load_dwordx2 s[12:13], s[0:1], 32")
    e("s_load_dwordx8 s[16:23], s[0:1], 48")
    e("s_load_dwordx4 s[24:27], s[0:1], 80")
    e("s_load_dwordx2 s[28:29], s[0:1], 96")
    e("s_memrealtime s[30:31]")
    e("v_lshrrev_b32 v1, 6, v0")
    e("v_and_b32 v2, 63, v0")
    e("v_lshrrev_b32 v3, 4, v2")
    e("v_readfirstlane_b32 s3, v1")
    e("v_and_b32 v22, 15, v2")
    e("s_lshr_b32 s72, s2, 2")
    e("s_and_b32 s73, s2, 3")
    e("s_lshl_b32 s75, s72, 21")
    e("s_waitcnt lgkmcnt(0)")
    e("s_add_u32 s32, s6, s75")
    e("s_addc_u32 s33, s7, 0")
    e("s_mov_b32 s34, 0x200000")
    e("s_mov_b32 s35, 0x00020000")
    e("s_add_u32 s36, s8, s75")
    e("s_addc_u32 s37, s9, 0")
    e("s_mov_b32 s38, 0x200000")
    e("s_mov_b32 s39, 0x00020000")
    srd(e, 40, 28, WS_USED)
    srd(e, 44, 4, 8192)
    srd(e, 48, 10, 4 << 20)
    srd(e, 52, 16, 3584)
    srd(e, 56, 18, 3584)
    srd(e, 60, 20, 3584)
    srd(e, 64, 22, 2)
    srd(e, 68, 24, 8192)
    srd(e, 84, 12, 4 << 20)
    e("s_mov_b32 s98, s3")
    e("s_mov_b32 s99, 0")
    e(f"s_mov_b32 s80, 0x{SCALE:08x}")
    e(f"s_mov_b32 s81, 0x{LOG2E:08x}")
    stamp(0)
    e("s_lshl_b32 s75, s3, 10")
    e("v_lshlrev_b32 v5, 4, v2")
    e("buffer_load_dwordx4 v[8:11], v5, s[44:47], s75 offen")
    e("s_cmp_ge_u32 s3, 4")
    e("s_cbranch_scc1 L_helper_h1")

    VK, VV = 12, 16
    for i in range(4):
        e(f"v_add_u32 v23, {4*i}, v3")
        e(f"v_xor_b32 v23, v23, v22")
        e(f"v_lshlrev_b32 v23, 4, v23")
        e(f"v_lshl_add_u32 v{VK+i}, v3, 8, v23")
    for i in range(2):
        e(f"v_add_u32 v23, {4*i}, v3")
        e(f"v_lshlrev_b32 v23, 1, v23")
        e(f"v_xor_b32 v23, v23, v22")
        e(f"v_lshlrev_b32 v23, 4, v23")
        e(f"v_lshl_add_u32 v{VV+i}, v3, 8, v23")
    e("s_lshl_b32 s74, s3, 15")
    VC = 18
    e("s_lshl_b32 s75, s72, 8")
    e(f"s_add_u32 s75, s75, {CNT_OFF}")
    e("v_mov_b32 v20, s75")
    e("v_mov_b32 v21, 1")

    def issue(kind, slot, soff):
        srdn = 32 if kind == "K" else 36
        ldsoff = (0 if kind == "K" else 16384) + slot * 8192
        for half in range(2):
            e(f"s_add_u32 s76, s74, {ldsoff + half*4096}")
            e(f"s_mov_b32 m0, s76")
            if half == 1:
                e(f"s_add_u32 s77, s{soff}, 4096")
            else:
                e(f"s_mov_b32 s77, s{soff}")
            for i in range(4):
                vo = (VK + i) if kind == "K" else (VV + (i & 1))
                e(f"buffer_load_dwordx4 v{vo}, s[{srdn}:{srdn+3}], s77 offen offset:{1024*i} {NT} lds")

    def claim(slot):
        e("s_mov_b64 exec, 1")
        e(f"global_atomic_add v{VC+slot}, v20, v21, s[28:29] sc0 sc1")
        e("s_mov_b64 exec, -1")

    e("s_lshl_b32 s75, s73, 2")
    e("s_add_u32 s75, s75, s3")
    e("s_lshl_b32 s78, s75, 15")
    e("s_add_u32 s79, s78, 8192")
    e("s_lshl_b32 s75, s75, 2")
    e("s_sub_u32 s76, s75, 62")
    e(f"v_mov_b32 v{VC}, s76")
    e("s_sub_u32 s76, s75, 61")
    e(f"v_mov_b32 v{VC+1}, s76")
    e("v_mov_b32 v23, 0")
    PRE = int(opt.get("pre", 4))
    units = [("K", 0, 78), ("V", 0, 78), ("K", 1, 79), ("V", 1, 79)]

    def issue_units(lo, hi):
        for u in range(lo, hi):
            issue(*units[u])
            if units[u][0] == "K":
                e("buffer_load_dword v239, v23, s[44:47], 0 offen")
    PACE = int(opt.get("pace", 4))
    PRE = int(opt.get("pre", 0))
    issue_units(0, PRE)
    e(f"s_waitcnt vmcnt({PRE*8 + (PRE+1)//2})")
    e("s_branch L_ln")

    e.label("L_helper_h1")
    e("s_cmp_lg_u32 s3, 5")
    e("s_cbranch_scc1 L_h1_noclear")
    for i in range(4):
        e(f"v_mov_b32 v{16+i}, -1")
    e("v_lshlrev_b32 v12, 11, v3")
    e("v_lshl_add_u32 v12, v22, 5, v12")
    e("s_lshl_b32 s75, s72, 13")
    e("s_lshl_b32 s76, s73, 9")
    e("s_add_u32 s75, s75, s76")
    e(f"s_add_u32 s75, s75, {PO_OFF}")
    e("buffer_store_dwordx4 v[16:19], v12, s[40:43], s75 offen sc1")
    e("buffer_store_dwordx4 v[16:19], v12, s[40:43], s75 offen offset:16 sc1")
    e("v_lshrrev_b32 v12, 3, v2")
    e("v_lshlrev_b32 v12, 15, v12")
    e("v_and_b32 v13, 7, v2")
    e("v_lshl_add_u32 v12, v13, 4, v12")
    e("s_lshr_b32 s75, s2, 4")
    e("s_lshl_b32 s75, s75, 11")
    e("s_and_b32 s76, s2, 7")
    e("s_lshl_b32 s76, s76, 8")
    e("s_add_u32 s75, s75, s76")
    e("s_bfe_u32 s76, s2, 0x10003")
    e("s_lshl_b32 s76, s76, 7")
    e("s_add_u32 s75, s75, s76")
    e(f"s_add_u32 s75, s75, {WP_OFF}")
    e("buffer_store_dwordx4 v[16:19], v12, s[40:43], s75 offen sc1")
    e("v_lshlrev_b32 v12, 5, v2")
    e("s_lshl_b32 s75, s72, 7")
    e("s_lshl_b32 s76, s73, 3")
    e("s_add_u32 s75, s75, s76")
    e(f"s_add_u32 s75, s75, {PML_OFF}")
    e("s_mov_b64 exec, 15")
    e("buffer_store_dwordx2 v[16:17], v12, s[40:43], s75 offen sc1")
    e("s_mov_b64 exec, -1")
    e("s_and_b32 s75, s2, 31")
    e("s_cmp_ge_u32 s75, 8")
    e("s_cbranch_scc1 L_h1_cleared")
    e("s_lshl_b32 s75, s75, 3")
    e("s_lshr_b32 s76, s2, 5")
    e("s_add_u32 s75, s75, s76")
    e("s_lshl_b32 s75, s75, 8")
    e(f"s_add_u32 s75, s75, {CNT_OFF}")
    e("v_mov_b32 v12, 0")
    e("s_mov_b64 exec, 1")
    e("buffer_store_dword v12, v12, s[40:43], s75 offen sc1")
    e("s_mov_b64 exec, -1")
    e.label("L_h1_cleared")
    e("s_waitcnt vmcnt(0)")
    e.label("L_h1_noclear")
    e("s_lshr_b32 s75, s2, 5")
    e("s_lshl_b32 s75, s75, 3")
    e("s_and_b32 s76, s2, 7")
    e("s_add_u32 s75, s75, s76")
    e("s_lshl_b32 s75, s75, 2")
    e("s_lshr_b32 s76, s2, 3")
    e("s_and_b32 s76, s76, 3")
    e("s_add_u32 s88, s75, s76")
    e("v_lshrrev_b32 v12, 1, v2")
    e("v_lshlrev_b32 v12, 13, v12")
    e("v_and_b32 v13, 1, v2")
    e("v_lshl_add_u32 v12, v13, 4, v12")
    e("s_sub_u32 s89, s3, 4")
    e("s_lshl_b32 s75, s88, 5")
    e("s_lshl_b32 s76, s89, 18")
    e("s_add_u32 s75, s75, s76")
    e("s_lshl_b32 s76, s89, 10")
    e(f"s_add_u32 s76, s76, {L_WT}")
    for i in range(4):
        e("s_mov_b32 m0, s76")
        e("s_nop 0")
        e("buffer_load_dwordx4 v12, s[48:51], s75 offen lds")
        if i < 3:
            e("s_add_u32 s76, s76, 4096")
            e(f"s_add_u32 s75, s75, {128*8192}")
    e("s_waitcnt vmcnt(4)")
    e.label("L_ln")
    stamp(9, 4)
    unpack8(e, 8, 24)
    layernorm8(e, 24, 40, 92)
    for i in range(4):
        e(f"v_cvt_pk_bf16_f32 v{32+i}, v{24+2*i}, v{24+2*i+1}")
    e("s_lshl_b32 s75, s3, 10")
    e(f"s_add_u32 s75, s75, {L_LN}")
    e("v_add_u32 v6, s75, v5")
    e("ds_write_b128 v6, v[32:35]")
    e("s_cmp_lt_u32 s3, 4")
    e("s_cbranch_scc1 L_b1_s")
    e("s_waitcnt vmcnt(0)")
    e.label("L_b1_s")
    e("s_waitcnt lgkmcnt(0)")
    e("s_barrier")
    e("s_cmp_lt_u32 s3, 4")
    e("s_cbranch_scc1 L_s_pre")
    e("s_cmp_lg_u32 s3, 4")
    e("s_cbranch_scc1 L_b2")
    stamp(6, 4)
    e("v_bfe_u32 v4, v2, 2, 2")
    e("v_and_b32 v5, 3, v2")
    e("v_lshl_add_u32 v6, v3, 3, v4")
    e("v_lshlrev_b32 v6, 5, v6")
    e("v_lshl_add_u32 v6, v5, 3, v6")
    e(f"v_add_u32 v6, {L_WT}, v6")
    e("v_and_b32 v7, 7, v2")
    e("v_lshlrev_b32 v7, 10, v7")
    e("v_lshl_add_u32 v7, v3, 4, v7")
    e(f"v_add_u32 v7, {L_LN}, v7")
    A0, B0 = 32, 96
    for s in range(16):
        e(f"ds_read_b64_tr_b16 v[{A0+4*s}:{A0+4*s+1}], v6 offset:{s*1024}")
        e(f"ds_read_b64_tr_b16 v[{A0+4*s+2}:{A0+4*s+3}], v6 offset:{s*1024 + 128}")
        e(f"ds_read_b128 v[{B0+4*s}:{B0+4*s+3}], v7 offset:{s*64}")
        if s % 4 == 3:
            e("s_waitcnt lgkmcnt(0)")
    for s in range(16):
        c = "0" if s == 0 else "v[8:11]"
        e(f"v_mfma_f32_16x16x32_bf16 v[8:11], v[{A0+4*s}:{A0+4*s+3}], v[{B0+4*s}:{B0+4*s+3}], {c}")
    e("s_memrealtime s[76:77]")
    e("v_lshlrev_b32 v5, 6, v22")
    e("v_lshl_add_u32 v5, v3, 4, v5")
    e("s_lshl_b32 s75, s88, 9")
    e(f"s_add_u32 s75, s75, {QG_OFF}")
    e("s_nop 4")
    e("s_waitcnt lgkmcnt(0)")
    e("v_cvt_pk_bf16_f32 v12, v8, v9")
    e("v_cvt_pk_bf16_f32 v13, v10, v11")
    e("v_mov_b32 v14, s76")
    e("v_mov_b32 v15, s77")
    e("v_cmp_gt_u32 vcc, 8, v22")
    e("s_and_saveexec_b64 s[82:83], vcc")
    e("buffer_store_dwordx4 v[12:15], v5, s[40:43], s75 offen sc1")
    e("s_mov_b64 exec, s[82:83]")
    e("v_lshrrev_b32 v5, 1, v2")
    e("v_lshlrev_b32 v5, 9, v5")
    e("v_and_b32 v6, 1, v2")
    e("v_lshl_add_u32 v5, v6, 5, v5")
    e("s_and_b32 s75, s72, 7")
    e("s_lshl_b32 s75, s75, 14")
    e("s_lshr_b32 s76, s72, 3")
    e("s_lshl_b32 s76, s76, 6")
    e("s_add_u32 s75, s75, s76")
    e(f"s_add_u32 s75, s75, {QG_OFF}")
    e("s_sub_u32 s30, s30, 2000")
    e("s_subb_u32 s31, s31, 0")
    e("v_mov_b32 v20, s31")
    e("v_mov_b32 v24, s88")
    e("v_mov_b32 v25, 1")
    e("s_and_b32 s76, s72, 7")
    e("s_lshl_b32 s76, s76, 5")
    e("v_and_b32 v26, 7, v2")
    e("v_lshlrev_b32 v26, 2, v26")
    e("v_add_u32 v26, s76, v26")
    e("s_mov_b32 s90, 0")
    e("s_mov_b32 s91, 0x01010101")
    e("s_mov_b32 s77, 0")
    e("s_mov_b32 s76, 0x100000")
    e.label("L_qpoll")
    e("buffer_load_dwordx4 v[8:11], v5, s[40:43], s75 offen sc1")
    e("buffer_load_dwordx4 v[16:19], v5, s[40:43], s75 offen offset:16 sc1")
    e("s_waitcnt vmcnt(0)")
    e("s_cmp_lg_u32 s77, 0")
    e("s_cbranch_scc1 L_qflagged")
    stamp(7, 4)
    e("s_mov_b32 s77, 1")
    e("s_mov_b64 exec, 1")
    e("global_store_byte v24, v25, s[26:27] sc1")
    e("s_mov_b64 exec, -1")
    e.label("L_qflagged")
    e("v_subrev_co_u32 v21, vcc, s30, v10")
    e("s_nop 1")
    e("v_subb_co_u32 v23, vcc, v11, v20, vcc")
    e("v_subrev_co_u32 v27, vcc, s30, v18")
    e("s_nop 1")
    e("v_subb_co_u32 v28, vcc, v19, v20, vcc")
    e("v_or_b32 v23, v23, v28")
    e("v_max_u32 v21, v21, v27")
    e("v_cmp_ne_u32 vcc, 0, v23")
    e("v_cmp_le_u32 s[82:83], s76, v21")
    e("s_or_b64 vcc, vcc, s[82:83]")
    e("s_cmp_eq_u64 vcc, 0")
    e("s_cbranch_scc1 L_qready")
    e("s_add_u32 s90, s90, 1")
    e(f"s_cmp_ge_u32 s90, {POLL_LIMIT}")
    e("s_cbranch_scc1 L_qready")
    e("s_and_b32 s82, s90, 63")
    e("s_cmp_lg_u32 s82, 0")
    e("s_cbranch_scc1 L_qsleep")
    e("global_load_dword v21, v26, s[26:27] sc1")
    e("s_waitcnt vmcnt(0)")
    e("v_cmp_ne_u32 vcc, s91, v21")
    e("s_nop 1")
    e("s_cmp_lg_u64 vcc, 0")
    e("s_cbranch_scc1 L_qsleep")
    e("buffer_load_dwordx4 v[8:11], v5, s[40:43], s75 offen sc1")
    e("buffer_load_dwordx4 v[16:19], v5, s[40:43], s75 offen offset:16 sc1")
    e("s_waitcnt vmcnt(0)")
    e("s_branch L_qready")
    e.label("L_qsleep")
    e(f"s_sleep {SLEEP}")
    e("s_branch L_qpoll")
    e.label("L_qready")
    stamp(8, 4)
    e("v_mov_b32 v10, v16")
    e("v_mov_b32 v11, v17")
    e("v_lshlrev_b32 v6, 4, v2")
    e(f"v_add_u32 v6, {L_Q}, v6")
    e("ds_write_b128 v6, v[8:11]")
    e("s_waitcnt lgkmcnt(0)")
    e("s_branch L_b2")
    e.label("L_s_pre")
    e("v_mov_b32 v23, 0")
    if PRE < 4:
        if PRE > 0:
            e(f"s_waitcnt vmcnt({PACE})")
        issue_units(PRE, PRE + 1)
    KA, VA = 24, 28
    for i in range(4):
        e(f"v_add_u32 v23, {4*i}, v3")
        e(f"v_xor_b32 v23, v23, v22")
        e(f"v_lshlrev_b32 v23, 4, v23")
        e(f"v_lshl_add_u32 v23, v22, 8, v23")
        e(f"v_add_u32 v{KA+i}, s74, v23")
    e("v_bfe_u32 v40, v2, 2, 2")
    e("v_lshl_add_u32 v40, v3, 2, v40")
    e("v_and_b32 v41, 7, v40")
    e("v_lshlrev_b32 v41, 1, v41")
    e("v_bfe_u32 v42, v2, 1, 1")
    e("v_and_b32 v43, 1, v2")
    e("v_lshlrev_b32 v44, 8, v40")
    e("v_lshl_add_u32 v44, v43, 3, v44")
    e("v_add_u32 v44, s74, v44")
    e("v_add_u32 v44, 16384, v44")
    for j in range(8):
        e(f"v_xor_b32 v23, {2*j}, v41")
        e(f"v_add_u32 v23, v23, v42")
        e(f"v_lshl_add_u32 v{VA+j}, v23, 4, v44")
    QF, KF, VF, S0, P0, T0, OA = 36, 52, 84, 116, 124, 128, 144
    MREF, MNEG, THR, LSUM = 136, 137, 138, 139
    BP0, BP1 = 140, 141
    for i in range(32):
        e(f"v_mov_b32 v{OA+i}, 0")
    for i in range(16):
        e(f"v_mov_b32 v{QF+i}, 0")
    e(f"v_mov_b32 v{MREF}, 0x{NEGBIG:08x}")
    e(f"v_mov_b32 v{THR}, 0x{NEGBIG:08x}")
    e(f"v_mov_b32 v{MNEG}, 0")
    e(f"v_mov_b32 v{LSUM}, 0")
    e(f"v_xor_b32 v{BP0}, 16, v2")
    e(f"v_lshlrev_b32 v{BP0}, 2, v{BP0}")
    e(f"v_xor_b32 v{BP1}, 32, v2")
    e(f"v_lshlrev_b32 v{BP1}, 2, v{BP1}")
    e("v_lshlrev_b32 v4, 8, v22")
    e("v_lshl_add_u32 v4, v3, 4, v4")
    e(f"v_add_u32 v4, {L_Q}, v4")
    e("v_mov_b32 v23, 0")
    for u in range(PRE + 1, 4):
        e(f"s_waitcnt vmcnt({PACE})")
        issue_units(u, u + 1)
    e.label("L_b2")
    e("s_barrier")
    stamp(1)
    e("s_cmp_ge_u32 s3, 4")
    e("s_cbranch_scc1 L_helper_mid")
    e("v_cmp_gt_u32 vcc, 4, v22")
    e("s_and_saveexec_b64 s[82:83], vcc")
    for i in range(4):
        e(f"ds_read_b128 v[{QF+4*i}:{QF+4*i+3}], v4 offset:{64*i}")
    e("s_mov_b64 exec, s[82:83]")
    e("s_waitcnt lgkmcnt(0)")
    if STAMP:
        e("s_waitcnt vmcnt(0)")
    e.label("L_loop")
    rares = []
    for slot in range(2):
        e("s_waitcnt vmcnt(25)")
        for u in range(2):
            for i in range(4):
                r = KF + (u * 4 + i) * 4
                e(f"ds_read_b128 v[{r}:{r+3}], v{KA+i} offset:{slot*8192 + u*4096}")
        e(f"v_readfirstlane_b32 s75, v{VC+slot}")
        e("s_add_u32 s75, s75, 64")
        e("s_min_u32 s75, s75, 256")
        e(f"s_lshl_b32 s{78+slot}, s75, 13")
        e("s_waitcnt lgkmcnt(0)")
        issue("K", slot, 78 + slot)
        claim(slot)
        for i in range(4):
            for u in range(2):
                r = KF + (u * 4 + i) * 4
                c = "0" if i == 0 else f"v[{S0+4*u}:{S0+4*u+3}]"
                e(f"v_mfma_f32_16x16x32_bf16 v[{S0+4*u}:{S0+4*u+3}], v[{r}:{r+3}], v[{QF+4*i}:{QF+4*i+3}], {c}")
        e("s_nop 7")
        for i in range(4):
            e(f"v_cvt_pk_bf16_f32 v{T0+i}, v{S0+2*i}, v{S0+2*i+1}")
        for i in range(4):
            e(f"v_lshlrev_b32 v{S0+2*i}, 16, v{T0+i}")
            e(f"v_and_b32 v{S0+2*i+1}, 0xffff0000, v{T0+i}")
        for i in range(8):
            e(f"v_mul_f32 v{S0+i}, s80, v{S0+i}")
        for i in range(4):
            e(f"v_cvt_pk_bf16_f32 v{T0+i}, v{S0+2*i}, v{S0+2*i+1}")
        for i in range(4):
            e(f"v_lshlrev_b32 v{S0+2*i}, 16, v{T0+i}")
            e(f"v_and_b32 v{S0+2*i+1}, 0xffff0000, v{T0+i}")
        e(f"v_max3_f32 v{T0}, v{S0}, v{S0+1}, v{S0+2}")
        e(f"v_max3_f32 v{T0+1}, v{S0+3}, v{S0+4}, v{S0+5}")
        e(f"v_max3_f32 v{T0}, v{T0}, v{S0+6}, v{S0+7}")
        e(f"v_max_f32 v{T0}, v{T0}, v{T0+1}")
        e(f"v_cmp_gt_f32 vcc, v{T0}, v{THR}")
        rl, bl = f"L_rare{slot}", f"L_back{slot}"
        e(f"s_cbranch_vccnz {rl}")
        e.label(bl)
        rares.append((rl, bl))
        for i in range(8):
            e(f"v_fma_f32 v{S0+i}, v{S0+i}, s81, v{MNEG}")
        for i in range(8):
            e(f"v_exp_f32 v{S0+i}, v{S0+i}")
        e("s_nop 0")
        for i in range(4):
            e(f"v_cvt_pk_bf16_f32 v{P0+i}, v{S0+2*i}, v{S0+2*i+1}")
        e(f"v_add_f32 v{T0}, v{S0}, v{S0+1}")
        e(f"v_add_f32 v{T0+1}, v{S0+2}, v{S0+3}")
        e(f"v_add_f32 v{T0+2}, v{S0+4}, v{S0+5}")
        e(f"v_add_f32 v{T0+3}, v{S0+6}, v{S0+7}")
        e(f"v_add_f32 v{T0}, v{T0}, v{T0+1}")
        e(f"v_add_f32 v{T0+2}, v{T0+2}, v{T0+3}")
        e(f"v_add_f32 v{T0}, v{T0}, v{T0+2}")
        e(f"v_add_f32 v{LSUM}, v{LSUM}, v{T0}")
        e("s_waitcnt vmcnt(26)")
        for j in range(8):
            for hb in range(2):
                r = VF + j * 4 + hb * 2
                e(f"ds_read_b64_tr_b16 v[{r}:{r+1}], v{VA+j} offset:{slot*8192 + hb*4096}")
        e("s_waitcnt lgkmcnt(0)")
        issue("V", slot, 78 + slot)
        for j in range(8):
            r = VF + j * 4
            e(f"v_mfma_f32_16x16x32_bf16 v[{OA+4*j}:{OA+4*j+3}], v[{r}:{r+3}], v[{P0}:{P0+3}], v[{OA+4*j}:{OA+4*j+3}]")
        e(f"s_cmp_ge_u32 s{78+(slot^1)}, 0x200000")
        if slot == 0:
            e("s_cbranch_scc1 L_loop_done")
        else:
            e("s_cbranch_scc0 L_loop")
    e.label("L_loop_done")
    e("s_nop 7")
    e("s_nop 7")
    e("s_lshl_b32 s75, s3, 11")
    e(f"s_add_u32 s75, s75, {L_CB}")
    e("v_lshlrev_b32 v40, 9, v22")
    e("v_lshl_add_u32 v40, v3, 4, v40")
    e("v_add_u32 v40, s75, v40")
    e("s_lshl_b32 s76, s3, 2")
    e("v_lshlrev_b32 v41, 4, v22")
    e("v_add_u32 v41, s76, v41")
    e("v_lshlrev_b32 v42, 2, v41")
    e("v_lshl_add_u32 v42, v3, 2, v42")
    e(f"v_add_u32 v41, {L_ST}, v41")
    e(f"v_add_u32 v42, {L_ST+64}, v42")
    e("v_cmp_gt_u32 vcc, 4, v22")
    e("s_and_saveexec_b64 s[82:83], vcc")
    for j in range(8):
        e(f"ds_write_b128 v40, v[{OA+4*j}:{OA+4*j+3}] offset:{64*j}")
    e(f"ds_write_b32 v41, v{MREF}")
    e(f"ds_write_b32 v42, v{LSUM}")
    e("s_mov_b64 exec, s[82:83]")
    e("s_branch L_b3")

    e.label("L_helper_mid")
    e("v_lshrrev_b32 v12, 2, v2")
    e("v_lshlrev_b32 v12, 10, v12")
    e("v_and_b32 v13, 3, v2")
    e("v_lshl_add_u32 v12, v13, 4, v12")
    e("s_lshr_b32 s75, s2, 4")
    e("s_lshl_b32 s75, s75, 18")
    e("s_and_b32 s76, s2, 7")
    e("s_lshl_b32 s76, s76, 7")
    e("s_add_u32 s75, s75, s76")
    e("s_bfe_u32 s76, s2, 0x10003")
    e("s_lshl_b32 s76, s76, 6")
    e("s_add_u32 s75, s75, s76")
    e("s_lshl_b32 s76, s89, 14")
    e("s_add_u32 s75, s75, s76")
    e("s_lshl_b32 s76, s89, 10")
    e(f"s_add_u32 s76, s76, {L_WT}")
    for it in range(4):
        e("s_mov_b32 m0, s76")
        e("s_nop 0")
        e("buffer_load_dwordx4 v12, s[84:87], s75 offen lds")
        if it < 3:
            e("s_add_u32 s76, s76, 4096")
            e("s_add_u32 s75, s75, 65536")
    if opt.get("dry", True):
        e("s_cmp_lg_u32 s3, 6")
        e("s_cbranch_scc1 L_nodry")
        e("s_mov_b32 s99, 1")
        e("s_mov_b32 s98, 0")
        e("s_mov_b64 exec, 0")
        e("s_branch L_tail")
        e.label("L_nodry")
    e("s_cmp_lg_u32 s3, 7")
    e("s_cbranch_scc1 L_b3")
    e("v_lshlrev_b32 v16, 2, v2")
    e("s_mov_b32 s90, 0")
    e("s_mov_b32 s91, 0x01010101")
    e.label("L_gpoll")
    e("global_load_dword v17, v16, s[26:27] sc1")
    e("s_waitcnt vmcnt(0)")
    e("v_cmp_ne_u32 vcc, s91, v17")
    e("s_nop 1")
    e("s_cmp_eq_u64 vcc, 0")
    e("s_cbranch_scc1 L_b3")
    e("s_add_u32 s90, s90, 1")
    e(f"s_cmp_ge_u32 s90, {POLL_LIMIT}")
    e("s_cbranch_scc1 L_b3")
    e("s_sleep 100")
    e("s_branch L_gpoll")
    e.label("L_b3")
    e("s_waitcnt vmcnt(0) lgkmcnt(0)")
    e("s_barrier")
    e.label("L_tail")
    stamp(2)
    e("s_cmp_ge_u32 s98, 2")
    e("s_cbranch_scc1 L_t2")
    e("v_lshrrev_b32 v4, 5, v0")
    e("v_and_b32 v5, 31, v0")
    e("v_lshlrev_b32 v6, 4, v4")
    e(f"v_add_u32 v6, {L_ST}, v6")
    e("ds_read_b128 v[44:47], v6")
    e("v_lshlrev_b32 v6, 6, v4")
    e(f"v_add_u32 v6, {L_ST+64}, v6")
    for w in range(4):
        e(f"ds_read_b128 v[{48+4*w}:{48+4*w+3}], v6 offset:{16*w}")
    e("v_lshlrev_b32 v6, 9, v4")
    e("v_lshl_add_u32 v6, v5, 4, v6")
    e(f"v_add_u32 v6, {L_CB}, v6")
    for w in range(4):
        e(f"ds_read_b128 v[{64+4*w}:{64+4*w+3}], v6 offset:{2048*w}")
    e("s_waitcnt lgkmcnt(0)")
    e("v_max3_f32 v80, v44, v45, v46")
    e("v_max_f32 v80, v80, v47")
    for w in range(4):
        e(f"v_sub_f32 v{44+w}, v{44+w}, v80")
        e(f"v_mul_f32 v{44+w}, s81, v{44+w}")
        e(f"v_exp_f32 v{44+w}, v{44+w}")
    for w in range(4):
        e(f"v_add_f32 v{48+4*w}, v{48+4*w}, v{49+4*w}")
        e(f"v_add_f32 v{50+4*w}, v{50+4*w}, v{51+4*w}")
        e(f"v_add_f32 v{48+4*w}, v{48+4*w}, v{50+4*w}")
    e("v_mul_f32 v81, v44, v48")
    for k in range(4):
        e(f"v_mul_f32 v{84+k}, v44, v{64+k}")
    for w in range(1, 4):
        e(f"v_fmac_f32 v81, v{44+w}, v{48+4*w}")
        for k in range(4):
            e(f"v_fmac_f32 v{84+k}, v{44+w}, v{64+4*w+k}")
    e("v_lshlrev_b32 v6, 11, v4")
    e("v_lshl_add_u32 v6, v5, 4, v6")
    e("s_lshl_b32 s75, s72, 13")
    e("s_lshl_b32 s76, s73, 9")
    e("s_add_u32 s75, s75, s76")
    e(f"s_add_u32 s75, s75, {PO_OFF}")
    e("buffer_store_dwordx4 v[84:87], v6, s[40:43], s75 offen sc1")
    e("v_lshlrev_b32 v6, 5, v4")
    e("s_lshl_b32 s75, s72, 7")
    e("s_lshl_b32 s76, s73, 3")
    e("s_add_u32 s75, s75, s76")
    e(f"s_add_u32 s75, s75, {PML_OFF}")
    e("v_cmp_eq_u32 vcc, 0, v5")
    e("s_and_saveexec_b64 s[82:83], vcc")
    e("buffer_store_dwordx2 v[80:81], v6, s[40:43], s75 offen sc1")
    e("s_mov_b64 exec, s[82:83]")
    e.label("L_t2")
    W1, B1, W2 = 200, 208, 216
    e("v_and_b32 v5, 255, v0")
    e("v_lshlrev_b32 v5, 1, v5")
    for j in range(7):
        e(f"buffer_load_ushort v{W1+j}, v5, s[52:55], 0 offen offset:{512*j}")
        e(f"buffer_load_ushort v{B1+j}, v5, s[56:59], 0 offen offset:{512*j}")
        e(f"buffer_load_ushort v{W2+j}, v5, s[60:63], 0 offen offset:{512*j}")
    e("v_mov_b32 v6, 0")
    e("buffer_load_ushort v224, v6, s[64:67], 0 offen")
    e("s_lshr_b32 s75, s2, 5")
    e("s_lshl_b32 s75, s75, 10")
    e("v_lshlrev_b32 v4, 1, v0")
    e("buffer_load_ushort v225, v4, s[44:47], s75 offen")
    e("v_lshrrev_b32 v4, 5, v2")
    e("v_and_b32 v5, 31, v2")
    e("s_lshr_b32 s75, s2, 4")
    e("s_lshl_b32 s75, s75, 1")
    e("s_lshl_b32 s76, s3, 5")
    e("s_add_u32 s75, s75, s76")
    e("v_lshlrev_b32 v6, 5, v4")
    e("s_lshl_b32 s76, s75, 5")
    e(f"s_add_u32 s76, s76, {PML_OFF}")
    e("v_lshlrev_b32 v7, 11, v4")
    e("v_lshl_add_u32 v7, v5, 4, v7")
    e("s_lshl_b32 s77, s75, 11")
    e(f"s_add_u32 s77, s77, {PO_OFF}")
    e("s_mov_b32 s90, 0")
    e.label("L_mlpoll")
    e("buffer_load_dwordx4 v[16:19], v6, s[40:43], s76 offen sc1")
    e("buffer_load_dwordx4 v[20:23], v6, s[40:43], s76 offen offset:16 sc1")
    for s in range(4):
        e(f"buffer_load_dwordx4 v[{24+4*s}:{24+4*s+3}], v7, s[40:43], s77 offen offset:{512*s} sc1")
    e("s_waitcnt vmcnt(0)")
    e("v_max_u32 v40, v16, v17")
    for k in range(18, 40, 2):
        e(f"v_max3_u32 v40, v40, v{k}, v{k+1}")
    e("v_cmp_eq_u32 vcc, -1, v40")
    e("s_nop 1")
    e("s_cmp_eq_u64 vcc, 0")
    e("s_cbranch_scc1 L_mlready")
    e("s_add_u32 s90, s90, 1")
    e(f"s_cmp_ge_u32 s90, {POLL_LIMIT}")
    e("s_cbranch_scc1 L_mlready")
    e(f"s_sleep {SLEEP2}")
    e("s_branch L_mlpoll")
    e.label("L_mlready")
    stamp(10, 0)
    e("v_max3_f32 v60, v16, v18, v20")
    e("v_max_f32 v60, v60, v22")
    for s in range(4):
        e(f"v_sub_f32 v{44+s}, v{16+2*s}, v60")
        e(f"v_mul_f32 v{44+s}, s81, v{44+s}")
        e(f"v_exp_f32 v{44+s}, v{44+s}")
    e("s_nop 0")
    e("v_mul_f32 v61, v44, v17")
    for s in range(1, 4):
        e(f"v_fmac_f32 v61, v{44+s}, v{17+2*s}")
    e("v_rcp_f32 v61, v61")
    e("s_nop 0")
    for s in range(4):
        e(f"v_mul_f32 v{44+s}, v{44+s}, v61")
    e.label("L_poready")
    for k in range(4):
        e(f"v_mul_f32 v{48+k}, v44, v{24+k}")
        for s in range(1, 4):
            e(f"v_fmac_f32 v{48+k}, v{44+s}, v{24+4*s+k}")
    e("v_cvt_pk_bf16_f32 v52, v48, v49")
    e("v_cvt_pk_bf16_f32 v53, v50, v51")
    e("v_lshlrev_b32 v6, 3, v0")
    e(f"v_add_u32 v6, {L_OA}, v6")
    e("ds_write_b64 v6, v[52:53]")
    e("s_waitcnt lgkmcnt(0)")
    e("s_cbranch_execz L_skipB4")
    e("s_barrier")
    e.label("L_skipB4")
    stamp(3)
    e("s_cmp_ge_u32 s98, 2")
    e("s_cbranch_scc1 L_t4")
    e("v_and_b32 v22, 15, v2")
    e("v_bfe_u32 v4, v2, 2, 2")
    e("v_and_b32 v5, 3, v2")
    e("v_lshl_add_u32 v6, v3, 3, v4")
    e("v_lshlrev_b32 v6, 6, v6")
    e("v_lshl_add_u32 v6, v5, 3, v6")
    e("s_lshl_b32 s75, s3, 5")
    e(f"s_add_u32 s75, s75, {L_WT}")
    e("v_add_u32 v6, s75, v6")
    e("v_and_b32 v7, 7, v2")
    e("v_lshlrev_b32 v7, 9, v7")
    e("v_lshl_add_u32 v7, v3, 4, v7")
    e(f"v_add_u32 v7, {L_OA}, v7")
    A0, B0 = 32, 64
    for s in range(8):
        e(f"ds_read_b64_tr_b16 v[{A0+4*s}:{A0+4*s+1}], v6 offset:{s*2048}")
        e(f"ds_read_b64_tr_b16 v[{A0+4*s+2}:{A0+4*s+3}], v6 offset:{s*2048 + 256}")
        e(f"ds_read_b128 v[{B0+4*s}:{B0+4*s+3}], v7 offset:{s*64}")
        if s % 4 == 3:
            e("s_waitcnt lgkmcnt(0)")
    for s in range(8):
        c = "0" if s == 0 else "v[8:11]"
        e(f"v_mfma_f32_16x16x32_bf16 v[8:11], v[{A0+4*s}:{A0+4*s+3}], v[{B0+4*s}:{B0+4*s+3}], {c}")
    e("v_lshlrev_b32 v5, 15, v22")
    e("v_lshl_add_u32 v5, v3, 4, v5")
    e("s_lshr_b32 s75, s2, 4")
    e("s_lshl_b32 s75, s75, 11")
    e("s_and_b32 s76, s2, 7")
    e("s_lshl_b32 s76, s76, 8")
    e("s_add_u32 s75, s75, s76")
    e("s_bfe_u32 s76, s2, 0x10003")
    e("s_lshl_b32 s76, s76, 7")
    e("s_add_u32 s75, s75, s76")
    e("s_lshl_b32 s76, s3, 6")
    e("s_add_u32 s75, s75, s76")
    e(f"s_add_u32 s75, s75, {WP_OFF}")
    e("v_cmp_gt_u32 vcc, 8, v22")
    e("s_and_saveexec_b64 s[82:83], vcc")
    e("buffer_store_dwordx4 v[8:11], v5, s[40:43], s75 offen sc1")
    e("s_mov_b64 exec, s[82:83]")
    e.label("L_t4")
    e("s_lshr_b32 s75, s2, 5")
    e("s_lshl_b32 s75, s75, 15")
    e(f"s_add_u32 s75, s75, {WP_OFF}")
    e("s_mov_b32 s90, 0")
    e("v_lshlrev_b32 v3, 2, v0")
    e.label("L_wppoll")
    for i in range(16):
        e(f"s_add_u32 s76, s75, {2048*i}")
        e(f"buffer_load_dword v{16+i}, v3, s[40:43], s76 offen sc1")
    e("s_waitcnt vmcnt(0)")
    e("v_max_u32 v40, v16, v17")
    for k in range(18, 32, 2):
        e(f"v_max3_u32 v40, v40, v{k}, v{k+1}")
    e("v_cmp_eq_u32 vcc, -1, v40")
    e("s_nop 1")
    e("s_cmp_eq_u64 vcc, 0")
    e("s_cbranch_scc1 L_wpok")
    e("s_add_u32 s90, s90, 1")
    e(f"s_cmp_ge_u32 s90, {POLL_LIMIT}")
    e("s_cbranch_scc1 L_wpok")
    e(f"s_sleep {SLEEP2}")
    e("s_branch L_wppoll")
    e.label("L_wpok")
    for i in range(1, 16):
        e(f"v_add_f32 v16, v16, v{16+i}")
    bf16r(e, 16)
    e("v_lshlrev_b32 v225, 16, v225")
    e("v_add_f32 v16, v16, v225")
    bf16r(e, 16)
    e(f"v_add_u32 v4, {L_H}, v3")
    e("ds_write_b32 v4, v16")
    e("s_waitcnt lgkmcnt(0)")
    e("s_cbranch_execz L_skipB5")
    e("s_barrier")
    e.label("L_skipB5")
    stamp(4)
    e("v_lshlrev_b32 v7, 5, v2")
    e(f"v_add_u32 v7, {L_H}, v7")
    e("ds_read_b128 v[16:19], v7")
    e("ds_read_b128 v[20:23], v7 offset:16")
    e("s_waitcnt lgkmcnt(0)")
    layernorm8(e, 16, 64, 92)
    layernorm8(e, 16, 64, 92)
    stamp(12, 0)
    e("s_lshr_b32 s75, s3, 2")
    e("s_and_b32 s76, s2, 31")
    e("s_lshl_b32 s77, s76, 1")
    e("s_add_u32 s77, s77, s75")
    e("s_nop 0")
    for k in range(8):
        e(f"v_readlane_b32 s{4+k}, v{16+k}, s77")
    for j in range(7):
        e(f"v_lshlrev_b32 v{W1+j}, 16, v{W1+j}")
        e(f"v_lshlrev_b32 v{B1+j}, 16, v{B1+j}")
        e(f"v_lshlrev_b32 v{W2+j}, 16, v{W2+j}")
    k0 = -2.0 * math.sqrt(2.0 / math.pi) * math.log2(math.e)
    k1 = k0 * 0.044715
    f2u = lambda f: struct.unpack("<I", struct.pack("<f", f))[0]
    e(f"s_mov_b32 s12, 0x{f2u(k0):08x}")
    e(f"s_mov_b32 s13, 0x{f2u(k1):08x}")
    e("v_mov_b32 v79, s12")
    ACC = 24
    for k in range(8):
        e(f"v_mov_b32 v{ACC+k}, 0")
    for j in range(7):
        steps = []
        for kk in range(4):
            k = 2 * kk
            a, b_, c, t, u = [96 + 5 * kk + i for i in range(5)]
            steps.append([
                f"v_mul_f32 v{a}, s{4+k}, v{W1+j}",
                f"v_mul_f32 v{b_}, s{5+k}, v{W1+j}",
                f"v_cvt_pk_bf16_f32 v{c}, v{a}, v{b_}",
                f"v_lshlrev_b32 v{a}, 16, v{c}",
                f"v_and_b32 v{b_}, 0xffff0000, v{c}",
                f"v_add_f32 v{a}, v{a}, v{B1+j}",
                f"v_add_f32 v{b_}, v{b_}, v{B1+j}",
                f"v_cvt_pk_bf16_f32 v{c}, v{a}, v{b_}",
                f"v_lshlrev_b32 v{a}, 16, v{c}",
                f"v_and_b32 v{b_}, 0xffff0000, v{c}",
                f"v_mul_f32 v{t}, v{a}, v{a}",
                f"v_mul_f32 v{u}, v{b_}, v{b_}",
                f"v_fma_f32 v{t}, v{t}, s13, v79",
                f"v_fma_f32 v{u}, v{u}, s13, v79",
                f"v_mul_f32 v{t}, v{t}, v{a}",
                f"v_mul_f32 v{u}, v{u}, v{b_}",
                f"v_exp_f32 v{t}, v{t}",
                f"v_exp_f32 v{u}, v{u}",
                f"v_add_f32 v{t}, 1.0, v{t}",
                f"v_add_f32 v{u}, 1.0, v{u}",
                f"v_rcp_f32 v{t}, v{t}",
                f"v_rcp_f32 v{u}, v{u}",
                f"v_mul_f32 v{t}, v{t}, v{a}",
                f"v_mul_f32 v{u}, v{u}, v{b_}",
                f"v_cvt_pk_bf16_f32 v{c}, v{t}, v{u}",
                f"v_lshlrev_b32 v{t}, 16, v{c}",
                f"v_and_b32 v{u}, 0xffff0000, v{c}",
                f"v_fmac_f32 v{ACC+k}, v{t}, v{W2+j}",
                f"v_fmac_f32 v{ACC+k+1}, v{u}, v{W2+j}",
            ])
        for i in range(len(steps[0])):
            for kk in range(4):
                e(steps[kk][i])
    for mod in ["quad_perm:[1,0,3,2] row_mask:0xf", "quad_perm:[2,3,0,1] row_mask:0xf",
                "row_half_mirror row_mask:0xf", "row_mirror row_mask:0xf",
                "row_bcast:15 row_mask:0xa", "row_bcast:31 row_mask:0xc"]:
        e("s_nop 1")
        for k in range(8):
            e(f"v_add_f32_dpp v{ACC+k}, v{ACC+k}, v{ACC+k} {mod} bank_mask:0xf")
    e("s_lshl_b32 s75, s3, 5")
    e(f"s_add_u32 s75, s75, {L_ST}")
    e("v_mov_b32 v7, s75")
    e("v_cmp_eq_u32 vcc, 63, v2")
    e("s_and_saveexec_b64 s[82:83], vcc")
    e(f"ds_write_b128 v7, v[{ACC}:{ACC+3}]")
    e(f"ds_write_b128 v7, v[{ACC+4}:{ACC+7}] offset:16")
    e("s_mov_b64 exec, s[82:83]")
    e("s_waitcnt lgkmcnt(0)")
    e("s_cbranch_execz L_skipB6")
    e("s_barrier")
    e.label("L_skipB6")
    stamp(13, 0)
    e("s_cmp_lg_u32 s98, 0")
    e("s_cbranch_scc1 L_exit")
    e("v_cmp_gt_u32 vcc, 16, v2")
    e("s_and_saveexec_b64 s[82:83], vcc")
    e("v_lshrrev_b32 v7, 3, v2")
    e("v_lshlrev_b32 v7, 7, v7")
    e("v_and_b32 v8, 7, v2")
    e("v_lshl_add_u32 v7, v8, 2, v7")
    e(f"v_add_u32 v7, {L_ST}, v7")
    for w in range(4):
        e(f"ds_read_b32 v{16+w}, v7 offset:{32*w}")
    e("s_lshl_b32 s75, s76, 6")
    e("v_lshlrev_b32 v8, 2, v2")
    e("v_add_u32 v8, s75, v8")
    e(f"v_add_u32 v9, {L_H}, v8")
    e("ds_read_b32 v20, v9")
    e("s_waitcnt lgkmcnt(0)")
    e("v_add_f32 v16, v16, v17")
    e("v_add_f32 v18, v18, v19")
    e("v_add_f32 v16, v16, v18")
    bf16r(e, 16)
    e("v_lshlrev_b32 v224, 16, v224")
    e("v_add_f32 v16, v16, v224")
    bf16r(e, 16)
    e("v_add_f32 v16, v16, v20")
    e("v_cvt_pk_bf16_f32 v16, v16, v16")
    e("v_lshrrev_b32 v8, 1, v8")
    e("s_lshr_b32 s75, s2, 5")
    e("s_lshl_b32 s75, s75, 10")
    e("buffer_store_short v16, v8, s[68:71], s75 offen")
    e("s_mov_b64 exec, s[82:83]")
    stamp(5)
    e("s_cmp_eq_u32 s99, 0")
    e("s_cbranch_scc1 L_exit")
    e("s_mov_b32 s99, 0")
    e("s_mov_b32 s98, s3")
    e("s_mov_b64 exec, -1")
    e("s_branch L_b3")
    e.label("L_exit")
    e("s_endpgm")
    for rl, bl in rares:
        e.label(rl)
        e(f"ds_bpermute_b32 v{T0+1}, v{BP0}, v{T0}")
        e("s_waitcnt lgkmcnt(0)")
        e(f"v_max_f32 v{T0}, v{T0}, v{T0+1}")
        e(f"ds_bpermute_b32 v{T0+1}, v{BP1}, v{T0}")
        e("s_waitcnt lgkmcnt(0)")
        e(f"v_max3_f32 v{T0}, v{T0}, v{T0+1}, v{MREF}")
        e(f"v_sub_f32 v{T0+1}, v{MREF}, v{T0}")
        e(f"v_mul_f32 v{T0+1}, s81, v{T0+1}")
        e(f"v_exp_f32 v{T0+1}, v{T0+1}")
        e("s_nop 0")
        for i in range(32):
            e(f"v_mul_f32 v{OA+i}, v{OA+i}, v{T0+1}")
        e(f"v_mul_f32 v{LSUM}, v{LSUM}, v{T0+1}")
        e(f"v_mov_b32 v{MREF}, v{T0}")
        e(f"v_mul_f32 v{MNEG}, s81, v{T0}")
        e(f"v_sub_f32 v{MNEG}, 0, v{MNEG}")
        e(f"v_add_f32 v{THR}, 0x40a00000, v{T0}")
        e(f"s_branch {bl}")


def main():
    opt = {}
    for a in sys.argv[2:]:
        k, v = a.split("=")
        opt[k] = {"0": False, "1": True}.get(v, v)
    e = E()
    e.raw(HEADER.rstrip("\n"))
    e.raw(f"; @launch grid=(256,1,1) block=(512,1,1) lds={LDS_TOTAL}")
    e.raw('.amdgcn_target "amdgcn-amd-amdhsa--gfx950"')
    e.raw(".text")
    gen(e, opt)
    e.raw('.section .rodata,"a"')
    e.raw(".p2align 6")
    e.raw(f""".amdhsa_kernel {KNAME}
  .amdhsa_next_free_vgpr 256
  .amdhsa_next_free_sgpr 102
  .amdhsa_accum_offset 256
  .amdhsa_group_segment_fixed_size 0
  .amdhsa_kernarg_size 104
  .amdhsa_user_sgpr_count 2
  .amdhsa_user_sgpr_kernarg_segment_ptr 1
  .amdhsa_system_sgpr_workgroup_id_x 1
.end_amdhsa_kernel""")
    open(sys.argv[1], "w").write(e.text())


main()
```

```python
import sys, struct, math

KNAME = "sequential_preLN__gqa_block_cached__mixer_token_mlp__decode_kernel"
HEADER = open("sequential_preLN__gqa_block_cached__mixer_token_mlp__decode.s.ref").read().split("; Override launch")[0]

Q_OFF = 0x0
PO_OFF = 0x10000
PML_OFF = 0x90000
WP_OFF = 0xA0000
ST_OFF = 0xE0000
CNT_OFF = 0xF0000
QG_OFF = 0x100000
TB_OFF = 0x120000
WS_USED = 0x148000

LOG2E = 0x3FB8AA3B
SCALE = 0x3DB504F3
NEGBIG = 0xF149F2CA

X = 131072
L_LN = X
L_CB = X
L_WT = X + 8192
L_Q = X + 24576
L_ST = X + 25600
L_OA = X + 26624
L_H = X + 30720
L_FL = X + 25600 + 512
LDS_TOTAL = 163840

POLL_LIMIT = 400000


class E:
    def __init__(self):
        self.lines = []
        self.lbl = 0

    def __call__(self, s):
        for ln in s.strip("\n").split("\n"):
            self.lines.append("    " + ln.strip())

    def label(self, name):
        self.lines.append(name + ":")

    def raw(self, s):
        self.lines.append(s)

    def newlabel(self, base):
        self.lbl += 1
        return f"L_{base}_{self.lbl}"

    def text(self):
        return "\n".join(self.lines) + "\n"


def srd(e, d, base_lo, nbytes):
    e(f"s_mov_b32 s{d}, s{base_lo}")
    e(f"s_mov_b32 s{d+1}, s{base_lo+1}")
    e(f"s_mov_b32 s{d+2}, {nbytes}")
    e(f"s_mov_b32 s{d+3}, 0x00020000")


def wave_allreduce_add(e, v, t, s0):
    e(f"s_nop 1")
    e(f"v_add_f32_dpp v{v}, v{v}, v{v} quad_perm:[1,0,3,2] row_mask:0xf bank_mask:0xf")
    e(f"s_nop 1")
    e(f"v_add_f32_dpp v{v}, v{v}, v{v} quad_perm:[2,3,0,1] row_mask:0xf bank_mask:0xf")
    e(f"s_nop 1")
    e(f"v_add_f32_dpp v{v}, v{v}, v{v} row_half_mirror row_mask:0xf bank_mask:0xf")
    e(f"s_nop 1")
    e(f"v_add_f32_dpp v{v}, v{v}, v{v} row_mirror row_mask:0xf bank_mask:0xf")
    e(f"s_nop 1")
    e(f"v_readlane_b32 s{s0}, v{v}, 0")
    e(f"v_readlane_b32 s{s0+1}, v{v}, 16")
    e(f"v_readlane_b32 s{s0+2}, v{v}, 32")
    e(f"v_readlane_b32 s{s0+3}, v{v}, 48")
    e(f"s_nop 1")
    e(f"v_mov_b32 v{t}, s{s0}")
    e(f"v_add_f32 v{t}, s{s0+1}, v{t}")
    e(f"v_add_f32 v{v}, s{s0+2}, v{t}")
    e(f"v_add_f32 v{v}, s{s0+3}, v{v}")


def bf16r(e, v):
    e(f"v_cvt_pk_bf16_f32 v{v}, v{v}, v{v}")
    e(f"v_lshlrev_b32 v{v}, 16, v{v}")


def layernorm8(e, x, t, s0):
    e(f"v_add_f32 v{t}, v{x}, v{x+1}")
    for i in range(2, 8):
        e(f"v_add_f32 v{t}, v{t}, v{x+i}")
    wave_allreduce_add(e, t, t + 1, s0)
    e(f"v_mul_f32 v{t}, 0x3b000000, v{t}")
    for i in range(8):
        e(f"v_sub_f32 v{t+2+i}, v{x+i}, v{t}")
    e(f"v_mul_f32 v{t+10}, v{t+2}, v{t+2}")
    for i in range(1, 8):
        e(f"v_fmac_f32 v{t+10}, v{t+2+i}, v{t+2+i}")
    wave_allreduce_add(e, t + 10, t + 1, s0)
    e(f"v_mul_f32 v{t+10}, 0x3b000000, v{t+10}")
    bf16r(e, t + 10)
    e(f"v_add_f32 v{t+10}, 0x3727c5ac, v{t+10}")
    bf16r(e, t + 10)
    e(f"v_sqrt_f32 v{t+10}, v{t+10}")
    e(f"s_nop 0")
    bf16r(e, t + 10)
    e(f"v_rcp_f32 v{t+11}, v{t+10}")
    bf16r(e, t)
    for i in range(8):
        e(f"v_sub_f32 v{x+i}, v{x+i}, v{t}")
    for i in range(0, 8, 2):
        e(f"v_cvt_pk_bf16_f32 v{t+2}, v{x+i}, v{x+i+1}")
        e(f"v_lshlrev_b32 v{x+i}, 16, v{t+2}")
        e(f"v_and_b32 v{x+i+1}, 0xffff0000, v{t+2}")
    for i in range(8):
        e(f"v_mul_f32 v{t+2}, v{x+i}, v{t+11}")
        e(f"v_fma_f32 v{t+3}, -v{t+2}, v{t+10}, v{x+i}")
        e(f"v_fma_f32 v{x+i}, v{t+3}, v{t+11}, v{t+2}")
    for i in range(0, 8, 2):
        e(f"v_cvt_pk_bf16_f32 v{t+2}, v{x+i}, v{x+i+1}")
        e(f"v_lshlrev_b32 v{x+i}, 16, v{t+2}")
        e(f"v_and_b32 v{x+i+1}, 0xffff0000, v{t+2}")


def unpack8(e, src, dst):
    for i in range(4):
        e(f"v_lshlrev_b32 v{dst+2*i}, 16, v{src+i}")
        e(f"v_and_b32 v{dst+2*i+1}, 0xffff0000, v{src+i}")


def gen(e, opt):
    NT = opt.get("nt", "nt")
    STAMP = opt.get("stamp", False)
    SLEEP = int(opt.get("sleep", 1))
    SLEEP2 = int(opt.get("sleep2", 4))
    SLEEP3 = int(opt.get("sleep3", 1))

    def stamp(k, wave=0):
        if not STAMP:
            return
        lab = e.newlabel("st")
        e(f"s_cmp_lg_u32 s3, {wave}")
        e(f"s_cbranch_scc1 {lab}")
        e("s_memrealtime s[92:93]")
        e("s_waitcnt lgkmcnt(0)")
        e("s_mov_b64 s[94:95], exec")
        e("s_mov_b64 exec, 1")
        e("v_mov_b32 v250, s92")
        e("v_mov_b32 v251, 0")
        e("s_lshl_b32 s96, s2, 6")
        e(f"s_add_u32 s96, s96, {ST_OFF + 4*k}")
        e("buffer_store_dword v250, v251, s[40:43], s96 offen")
        e("s_mov_b64 exec, s[94:95]")
        e.label(lab)

    e.raw(f".globl {KNAME}")
    e.raw(".p2align 8")
    e.raw(f".type {KNAME},@function")
    e.label(KNAME)
    e("s_cmp_ge_u32 s2, 256")
    e("s_cbranch_scc1 L_exit")
    e("s_load_dwordx8 s[4:11], s[0:1], 0")
    e("s_load_dwordx2 s[12:13], s[0:1], 32")
    e("s_load_dwordx8 s[16:23], s[0:1], 48")
    e("s_load_dwordx4 s[24:27], s[0:1], 80")
    e("s_load_dwordx2 s[28:29], s[0:1], 96")
    e("s_memrealtime s[30:31]")
    e("v_lshrrev_b32 v1, 6, v0")
    e("v_and_b32 v2, 63, v0")
    e("v_lshrrev_b32 v3, 4, v2")
    e("v_readfirstlane_b32 s3, v1")
    for r in range(4, 36):
        e(f"v_mov_b32 v{r}, 0")
    e("s_mov_b32 s88, 0")
    e("s_mov_b32 s89, 0")
    e("s_mov_b32 s74, 0")
    e("s_mov_b32 s78, 0")
    e("s_mov_b32 s79, 0")
    e("v_and_b32 v22, 15, v2")
    e("s_lshr_b32 s72, s2, 2")
    e("s_and_b32 s73, s2, 3")
    e("s_lshl_b32 s75, s72, 21")
    e("s_waitcnt lgkmcnt(0)")
    e("s_add_u32 s32, s6, s75")
    e("s_addc_u32 s33, s7, 0")
    e("s_mov_b32 s34, 0x200000")
    e("s_mov_b32 s35, 0x00020000")
    e("s_add_u32 s36, s8, s75")
    e("s_addc_u32 s37, s9, 0")
    e("s_mov_b32 s38, 0x200000")
    e("s_mov_b32 s39, 0x00020000")
    srd(e, 40, 28, WS_USED)
    srd(e, 44, 4, 8192)
    srd(e, 48, 10, 4 << 20)
    srd(e, 52, 16, 3584)
    srd(e, 56, 18, 3584)
    srd(e, 60, 20, 3584)
    srd(e, 64, 22, 2)
    srd(e, 68, 24, 8192)
    srd(e, 84, 12, 4 << 20)
    e(f"s_mov_b32 s80, 0x{SCALE:08x}")
    e(f"s_mov_b32 s81, 0x{LOG2E:08x}")
    stamp(0)
    e("s_lshl_b32 s75, s3, 10")
    e("v_lshlrev_b32 v5, 4, v2")
    e("buffer_load_dwordx4 v[8:11], v5, s[44:47], s75 offen")
    e("s_cmp_ge_u32 s3, 4")
    e("s_cbranch_scc1 L_helper_h1")

    VK, VV = 12, 16
    for i in range(4):
        e(f"v_add_u32 v23, {4*i}, v3")
        e(f"v_xor_b32 v23, v23, v22")
        e(f"v_lshlrev_b32 v23, 4, v23")
        e(f"v_lshl_add_u32 v{VK+i}, v3, 8, v23")
    for i in range(2):
        e(f"v_add_u32 v23, {4*i}, v3")
        e(f"v_lshlrev_b32 v23, 1, v23")
        e(f"v_xor_b32 v23, v23, v22")
        e(f"v_lshlrev_b32 v23, 4, v23")
        e(f"v_lshl_add_u32 v{VV+i}, v3, 8, v23")
    e("s_lshl_b32 s74, s3, 15")
    VC = 18
    e("s_lshl_b32 s75, s72, 8")
    e(f"s_add_u32 s75, s75, {CNT_OFF}")
    e("v_mov_b32 v20, s75")
    e("v_mov_b32 v21, 1")

    def issue(kind, slot, soff):
        srdn = 32 if kind == "K" else 36
        ldsoff = (0 if kind == "K" else 16384) + slot * 8192
        for half in range(2):
            e(f"s_add_u32 s76, s74, {ldsoff + half*4096}")
            e(f"s_mov_b32 m0, s76")
            if half == 1:
                e(f"s_add_u32 s77, s{soff}, 4096")
            else:
                e(f"s_mov_b32 s77, s{soff}")
            for i in range(4):
                vo = (VK + i) if kind == "K" else (VV + (i & 1))
                e(f"buffer_load_dwordx4 v{vo}, s[{srdn}:{srdn+3}], s77 offen offset:{1024*i} {NT} lds")

    def claim(slot):
        e("s_mov_b64 exec, 1")
        e(f"global_atomic_add v{VC+slot}, v20, v21, s[28:29] sc0 sc1")
        e("s_mov_b64 exec, -1")

    e("s_lshl_b32 s75, s73, 2")
    e("s_add_u32 s75, s75, s3")
    e("s_lshl_b32 s78, s75, 15")
    e("s_add_u32 s79, s78, 8192")
    e("s_lshl_b32 s75, s75, 2")
    e("s_sub_u32 s76, s75, 62")
    e(f"v_mov_b32 v{VC}, s76")
    e("s_sub_u32 s76, s75, 61")
    e(f"v_mov_b32 v{VC+1}, s76")
    e("v_mov_b32 v23, 0")
    PRE = int(opt.get("pre", 4))
    units = [("K", 0, 78), ("V", 0, 78), ("K", 1, 79), ("V", 1, 79)]

    def issue_units(lo, hi):
        for u in range(lo, hi):
            issue(*units[u])
            if units[u][0] == "K":
                e("buffer_load_dword v239, v23, s[44:47], 0 offen")
    PACE = int(opt.get("pace", 6))
    PRE = int(opt.get("pre", 0))
    issue_units(0, PRE)
    e(f"s_waitcnt vmcnt({PRE*8 + (PRE+1)//2})")
    e("s_branch L_ln")

    e.label("L_helper_h1")
    e("s_cmp_lg_u32 s3, 5")
    e("s_cbranch_scc1 L_h1_noclear")
    for i in range(4):
        e(f"v_mov_b32 v{16+i}, -1")
    e("v_lshlrev_b32 v12, 11, v3")
    e("v_lshl_add_u32 v12, v22, 5, v12")
    e("s_lshl_b32 s75, s72, 13")
    e("s_lshl_b32 s76, s73, 9")
    e("s_add_u32 s75, s75, s76")
    e(f"s_add_u32 s75, s75, {PO_OFF}")
    e("buffer_store_dwordx4 v[16:19], v12, s[40:43], s75 offen sc1")
    e("buffer_store_dwordx4 v[16:19], v12, s[40:43], s75 offen offset:16 sc1")
    e("v_lshrrev_b32 v12, 3, v2")
    e("v_lshlrev_b32 v12, 15, v12")
    e("v_and_b32 v13, 7, v2")
    e("v_lshl_add_u32 v12, v13, 4, v12")
    e("s_lshr_b32 s75, s2, 4")
    e("s_lshl_b32 s75, s75, 11")
    e("s_and_b32 s76, s2, 7")
    e("s_lshl_b32 s76, s76, 8")
    e("s_add_u32 s75, s75, s76")
    e("s_bfe_u32 s76, s2, 0x10003")
    e("s_lshl_b32 s76, s76, 7")
    e("s_add_u32 s75, s75, s76")
    e(f"s_add_u32 s75, s75, {WP_OFF}")
    e("buffer_store_dwordx4 v[16:19], v12, s[40:43], s75 offen sc1")
    e("v_lshlrev_b32 v12, 5, v2")
    e("s_lshl_b32 s75, s72, 7")
    e("s_lshl_b32 s76, s73, 3")
    e("s_add_u32 s75, s75, s76")
    e(f"s_add_u32 s75, s75, {PML_OFF}")
    e("s_mov_b64 exec, 15")
    e("buffer_store_dwordx2 v[16:17], v12, s[40:43], s75 offen sc1")
    e("s_mov_b64 exec, -1")
    e("s_and_b32 s75, s2, 31")
    e("s_cmp_ge_u32 s75, 8")
    e("s_cbranch_scc1 L_h1_cleared")
    e("s_lshl_b32 s75, s75, 3")
    e("s_lshr_b32 s76, s2, 5")
    e("s_add_u32 s75, s75, s76")
    e("s_lshl_b32 s75, s75, 8")
    e(f"s_add_u32 s75, s75, {CNT_OFF}")
    e("v_mov_b32 v12, 0")
    e("s_mov_b64 exec, 1")
    e("buffer_store_dword v12, v12, s[40:43], s75 offen sc1")
    e("s_mov_b64 exec, -1")
    e.label("L_h1_cleared")
    e("s_waitcnt vmcnt(0)")
    e.label("L_h1_noclear")
    e("s_lshr_b32 s75, s2, 5")
    e("s_lshl_b32 s75, s75, 3")
    e("s_and_b32 s76, s2, 7")
    e("s_add_u32 s75, s75, s76")
    e("s_lshl_b32 s75, s75, 2")
    e("s_lshr_b32 s76, s2, 3")
    e("s_and_b32 s76, s76, 3")
    e("s_add_u32 s88, s75, s76")
    e("v_lshrrev_b32 v12, 1, v2")
    e("v_lshlrev_b32 v12, 13, v12")
    e("v_and_b32 v13, 1, v2")
    e("v_lshl_add_u32 v12, v13, 4, v12")
    e("s_sub_u32 s89, s3, 4")
    e("s_lshl_b32 s75, s88, 5")
    e("s_lshl_b32 s76, s89, 18")
    e("s_add_u32 s75, s75, s76")
    e("s_lshl_b32 s76, s89, 10")
    e(f"s_add_u32 s76, s76, {L_WT}")
    for i in range(4):
        e("s_mov_b32 m0, s76")
        e("s_nop 0")
        e("buffer_load_dwordx4 v12, s[48:51], s75 offen lds")
        if i < 3:
            e("s_add_u32 s76, s76, 4096")
            e(f"s_add_u32 s75, s75, {128*8192}")
    e("v_mul_u32_u24 v13, 56, v2")
    for base, sr in ((160, 52), (176, 56), (96, 60)):
        e(f"buffer_load_dwordx4 v[{base}:{base+3}], v13, s[{sr}:{sr+3}], 0 offen")
        e(f"buffer_load_dwordx4 v[{base+4}:{base+7}], v13, s[{sr}:{sr+3}], 0 offen offset:16")
        e(f"buffer_load_dwordx4 v[{base+8}:{base+11}], v13, s[{sr}:{sr+3}], 0 offen offset:32")
        e(f"buffer_load_dwordx2 v[{base+12}:{base+13}], v13, s[{sr}:{sr+3}], 0 offen offset:48")
    e("v_mov_b32 v13, 0")
    e("buffer_load_ushort v192, v13, s[64:67], 0 offen")
    e(f"v_mov_b32 v14, {L_FL}")
    e("v_mov_b32 v15, 0")
    e("v_mov_b32 v16, 0")
    e("ds_write_b64 v14, v[15:16]") if False else None
    e("ds_write_b32 v14, v13")
    e("ds_write_b32 v14, v13 offset:4")
    e("s_waitcnt vmcnt(17)")
    e.label("L_ln")
    stamp(9, 4)
    unpack8(e, 8, 24)
    layernorm8(e, 24, 40, 92)
    for i in range(4):
        e(f"v_cvt_pk_bf16_f32 v{32+i}, v{24+2*i}, v{24+2*i+1}")
    e("s_lshl_b32 s75, s3, 10")
    e(f"s_add_u32 s75, s75, {L_LN}")
    e("v_add_u32 v6, s75, v5")
    e("ds_write_b128 v6, v[32:35]")
    e("s_cmp_lt_u32 s3, 4")
    e("s_cbranch_scc1 L_b1_s")
    e("s_waitcnt vmcnt(0)")
    e.label("L_b1_s")
    e("s_waitcnt lgkmcnt(0)")
    e("s_barrier")
    e("s_cmp_lt_u32 s3, 4")
    e("s_cbranch_scc1 L_s_pre")
    e("s_cmp_lg_u32 s3, 4")
    e("s_cbranch_scc1 L_table")
    stamp(6, 4)
    e("v_bfe_u32 v4, v2, 2, 2")
    e("v_and_b32 v5, 3, v2")
    e("v_lshl_add_u32 v6, v3, 3, v4")
    e("v_lshlrev_b32 v6, 5, v6")
    e("v_lshl_add_u32 v6, v5, 3, v6")
    e(f"v_add_u32 v6, {L_WT}, v6")
    e("v_and_b32 v7, 7, v2")
    e("v_lshlrev_b32 v7, 10, v7")
    e("v_lshl_add_u32 v7, v3, 4, v7")
    e(f"v_add_u32 v7, {L_LN}, v7")
    A0, B0 = 32, 112
    for hf in range(2):
        for s8 in range(8):
            s = hf * 8 + s8
            e(f"ds_read_b64_tr_b16 v[{A0+4*s}:{A0+4*s+1}], v6 offset:{s*1024}")
            e(f"ds_read_b64_tr_b16 v[{A0+4*s+2}:{A0+4*s+3}], v6 offset:{s*1024 + 128}")
            e(f"ds_read_b128 v[{B0+4*s8}:{B0+4*s8+3}], v7 offset:{s*64}")
            if s8 % 4 == 3:
                e("s_waitcnt lgkmcnt(0)")
        for s8 in range(8):
            s = hf * 8 + s8
            c = "0" if s == 0 else "v[8:11]"
            e(f"v_mfma_f32_16x16x32_bf16 v[8:11], v[{A0+4*s}:{A0+4*s+3}], v[{B0+4*s8}:{B0+4*s8+3}], {c}")
        if hf == 0:
            e("s_nop 7")
    e("s_memrealtime s[76:77]")
    e("v_lshlrev_b32 v5, 6, v22")
    e("v_lshl_add_u32 v5, v3, 4, v5")
    e("s_lshl_b32 s75, s88, 9")
    e(f"s_add_u32 s75, s75, {QG_OFF}")
    e("s_nop 4")
    e("s_waitcnt lgkmcnt(0)")
    e("v_cvt_pk_bf16_f32 v12, v8, v9")
    e("v_cvt_pk_bf16_f32 v13, v10, v11")
    e("v_mov_b32 v14, s76")
    e("v_mov_b32 v15, s77")
    e("v_cmp_gt_u32 vcc, 8, v22")
    e("s_and_saveexec_b64 s[82:83], vcc")
    e("buffer_store_dwordx4 v[12:15], v5, s[40:43], s75 offen sc1")
    e("s_mov_b64 exec, s[82:83]")
    e("v_lshrrev_b32 v5, 1, v2")
    e("v_lshlrev_b32 v5, 9, v5")
    e("v_and_b32 v6, 1, v2")
    e("v_lshl_add_u32 v5, v6, 5, v5")
    e("s_and_b32 s75, s72, 7")
    e("s_lshl_b32 s75, s75, 14")
    e("s_lshr_b32 s76, s72, 3")
    e("s_lshl_b32 s76, s76, 6")
    e("s_add_u32 s75, s75, s76")
    e(f"s_add_u32 s75, s75, {QG_OFF}")
    e("s_sub_u32 s30, s30, 2000")
    e("s_subb_u32 s31, s31, 0")
    e("v_mov_b32 v20, s31")
    e("v_mov_b32 v24, s88")
    e("v_mov_b32 v25, 1")
    e("s_and_b32 s76, s72, 7")
    e("s_lshl_b32 s76, s76, 5")
    e("v_and_b32 v26, 7, v2")
    e("v_lshlrev_b32 v26, 2, v26")
    e("v_add_u32 v26, s76, v26")
    e("s_mov_b32 s90, 0")
    e("s_mov_b32 s91, 0x01010101")
    e("s_mov_b32 s77, 0")
    e("s_mov_b32 s76, 0x100000")
    e.label("L_qpoll")
    e("buffer_load_dwordx4 v[8:11], v5, s[40:43], s75 offen sc1")
    e("buffer_load_dwordx4 v[16:19], v5, s[40:43], s75 offen offset:16 sc1")
    e("s_waitcnt vmcnt(0)")
    e("s_cmp_lg_u32 s77, 0")
    e("s_cbranch_scc1 L_qflagged")
    stamp(7, 4)
    e("s_mov_b32 s77, 1")
    e("s_mov_b64 exec, 1")
    e("global_store_byte v24, v25, s[26:27] sc1")
    e("s_mov_b64 exec, -1")
    e.label("L_qflagged")
    e("v_subrev_co_u32 v21, vcc, s30, v10")
    e("s_nop 1")
    e("v_subb_co_u32 v23, vcc, v11, v20, vcc")
    e("v_subrev_co_u32 v27, vcc, s30, v18")
    e("s_nop 1")
    e("v_subb_co_u32 v28, vcc, v19, v20, vcc")
    e("v_or_b32 v23, v23, v28")
    e("v_max_u32 v21, v21, v27")
    e("v_cmp_ne_u32 vcc, 0, v23")
    e("v_cmp_le_u32 s[82:83], s76, v21")
    e("s_or_b64 vcc, vcc, s[82:83]")
    e("s_cmp_eq_u64 vcc, 0")
    e("s_cbranch_scc1 L_qready")
    e("s_add_u32 s90, s90, 1")
    e(f"s_cmp_ge_u32 s90, {POLL_LIMIT}")
    e("s_cbranch_scc1 L_qready")
    e("s_and_b32 s82, s90, 63")
    e("s_cmp_lg_u32 s82, 0")
    e("s_cbranch_scc1 L_qsleep")
    e("global_load_dword v21, v26, s[26:27] sc1")
    e("s_waitcnt vmcnt(0)")
    e("v_cmp_ne_u32 vcc, s91, v21")
    e("s_nop 1")
    e("s_cmp_lg_u64 vcc, 0")
    e("s_cbranch_scc1 L_qsleep")
    e("buffer_load_dwordx4 v[8:11], v5, s[40:43], s75 offen sc1")
    e("buffer_load_dwordx4 v[16:19], v5, s[40:43], s75 offen offset:16 sc1")
    e("s_waitcnt vmcnt(0)")
    e("s_branch L_qready")
    e.label("L_qsleep")
    e(f"s_sleep {SLEEP}")
    e("s_branch L_qpoll")
    e.label("L_qready")
    stamp(8, 4)
    e("v_mov_b32 v10, v16")
    e("v_mov_b32 v11, v17")
    e("v_lshlrev_b32 v6, 4, v2")
    e(f"v_add_u32 v6, {L_Q}, v6")
    e("ds_write_b128 v6, v[8:11]")
    e("s_waitcnt lgkmcnt(0)")
    e(f"v_mov_b32 v14, {L_FL}")
    e("v_mov_b32 v15, 1")
    e("ds_write_b32 v14, v15")
    e("v_lshrrev_b32 v12, 2, v2")
    e("v_lshlrev_b32 v12, 10, v12")
    e("v_and_b32 v13, 3, v2")
    e("v_lshl_add_u32 v12, v13, 4, v12")
    e("s_lshr_b32 s75, s2, 4")
    e("s_lshl_b32 s75, s75, 18")
    e("s_and_b32 s76, s2, 7")
    e("s_lshl_b32 s76, s76, 7")
    e("s_add_u32 s75, s75, s76")
    e("s_bfe_u32 s76, s2, 0x10003")
    e("s_lshl_b32 s76, s76, 6")
    e("s_add_u32 s75, s75, s76")
    e(f"s_mov_b32 s76, {L_WT}")
    for it in range(16):
        e("s_mov_b32 m0, s76")
        e("s_nop 0")
        e("buffer_load_dwordx4 v12, s[84:87], s75 offen lds")
        if it < 15:
            e("s_add_u32 s76, s76, 1024")
            e("s_add_u32 s75, s75, 16384")
    e("s_branch L_table")
    e.label("L_s_pre")
    e("v_mov_b32 v23, 0")
    if PRE < 4:
        if PRE > 0:
            e(f"s_waitcnt vmcnt({PACE})")
        issue_units(PRE, PRE + 1)
    KA, VA = 24, 28
    for i in range(4):
        e(f"v_add_u32 v23, {4*i}, v3")
        e(f"v_xor_b32 v23, v23, v22")
        e(f"v_lshlrev_b32 v23, 4, v23")
        e(f"v_lshl_add_u32 v23, v22, 8, v23")
        e(f"v_add_u32 v{KA+i}, s74, v23")
    e("v_bfe_u32 v40, v2, 2, 2")
    e("v_lshl_add_u32 v40, v3, 2, v40")
    e("v_and_b32 v41, 7, v40")
    e("v_lshlrev_b32 v41, 1, v41")
    e("v_bfe_u32 v42, v2, 1, 1")
    e("v_and_b32 v43, 1, v2")
    e("v_lshlrev_b32 v44, 8, v40")
    e("v_lshl_add_u32 v44, v43, 3, v44")
    e("v_add_u32 v44, s74, v44")
    e("v_add_u32 v44, 16384, v44")
    for j in range(8):
        e(f"v_xor_b32 v23, {2*j}, v41")
        e(f"v_add_u32 v23, v23, v42")
        e(f"v_lshl_add_u32 v{VA+j}, v23, 4, v44")
    QF, KF, VF, S0, P0, T0, OA = 36, 52, 84, 116, 124, 128, 144
    MREF, MNEG, THR, LSUM = 136, 137, 138, 139
    BP0, BP1 = 140, 141
    for i in range(32):
        e(f"v_mov_b32 v{OA+i}, 0")
    for i in range(16):
        e(f"v_mov_b32 v{QF+i}, 0")
    e(f"v_mov_b32 v{MREF}, 0x{NEGBIG:08x}")
    e(f"v_mov_b32 v{THR}, 0x{NEGBIG:08x}")
    e(f"v_mov_b32 v{MNEG}, 0")
    e(f"v_mov_b32 v{LSUM}, 0")
    e(f"v_xor_b32 v{BP0}, 16, v2")
    e(f"v_lshlrev_b32 v{BP0}, 2, v{BP0}")
    e(f"v_xor_b32 v{BP1}, 32, v2")
    e(f"v_lshlrev_b32 v{BP1}, 2, v{BP1}")
    e("v_lshlrev_b32 v4, 8, v22")
    e("v_lshl_add_u32 v4, v3, 4, v4")
    e(f"v_add_u32 v4, {L_Q}, v4")
    e("v_mov_b32 v23, 0")
    for u in range(PRE + 1, 4):
        e(f"s_waitcnt vmcnt({PACE})")
        issue_units(u, u + 1)
    e(f"v_mov_b32 v5, {L_FL}")
    e("s_mov_b32 s90, 0")
    e.label("L_qwait")
    e("ds_read_b32 v6, v5")
    e("s_waitcnt lgkmcnt(0)")
    e("v_readfirstlane_b32 s75, v6")
    e("s_cmp_lg_u32 s75, 0")
    e("s_cbranch_scc1 L_qhere")
    e("s_add_u32 s90, s90, 1")
    e(f"s_cmp_ge_u32 s90, {POLL_LIMIT*20}")
    e("s_cbranch_scc1 L_qhere")
    e("s_sleep 1")
    e("s_branch L_qwait")
    e.label("L_qhere")
    stamp(1)
    e("v_cmp_gt_u32 vcc, 4, v22")
    e("s_and_saveexec_b64 s[82:83], vcc")
    for i in range(4):
        e(f"ds_read_b128 v[{QF+4*i}:{QF+4*i+3}], v4 offset:{64*i}")
    e("s_mov_b64 exec, s[82:83]")
    e("s_waitcnt lgkmcnt(0)")
    if STAMP:
        e("s_waitcnt vmcnt(0)")
    e(f"s_setprio {int(opt.get('prio', 2))}")
    e.label("L_loop")
    rares = []
    for slot in range(2):
        e("s_waitcnt vmcnt(25)")
        for u in range(2):
            for i in range(4):
                r = KF + (u * 4 + i) * 4
                e(f"ds_read_b128 v[{r}:{r+3}], v{KA+i} offset:{slot*8192 + u*4096}")
        e(f"v_readfirstlane_b32 s75, v{VC+slot}")
        e("s_add_u32 s75, s75, 64")
        e("s_min_u32 s75, s75, 256")
        e(f"s_lshl_b32 s{78+slot}, s75, 13")
        e("s_waitcnt lgkmcnt(0)")
        issue("K", slot, 78 + slot)
        claim(slot)
        for i in range(4):
            for u in range(2):
                r = KF + (u * 4 + i) * 4
                c = "0" if i == 0 else f"v[{S0+4*u}:{S0+4*u+3}]"
                e(f"v_mfma_f32_16x16x32_bf16 v[{S0+4*u}:{S0+4*u+3}], v[{r}:{r+3}], v[{QF+4*i}:{QF+4*i+3}], {c}")
        e("s_nop 7")
        for i in range(4):
            e(f"v_cvt_pk_bf16_f32 v{T0+i}, v{S0+2*i}, v{S0+2*i+1}")
        for i in range(4):
            e(f"v_lshlrev_b32 v{S0+2*i}, 16, v{T0+i}")
            e(f"v_and_b32 v{S0+2*i+1}, 0xffff0000, v{T0+i}")
        for i in range(8):
            e(f"v_mul_f32 v{S0+i}, s80, v{S0+i}")
        for i in range(4):
            e(f"v_cvt_pk_bf16_f32 v{T0+i}, v{S0+2*i}, v{S0+2*i+1}")
        for i in range(4):
            e(f"v_lshlrev_b32 v{S0+2*i}, 16, v{T0+i}")
            e(f"v_and_b32 v{S0+2*i+1}, 0xffff0000, v{T0+i}")
        e(f"v_max3_f32 v{T0}, v{S0}, v{S0+1}, v{S0+2}")
        e(f"v_max3_f32 v{T0+1}, v{S0+3}, v{S0+4}, v{S0+5}")
        e(f"v_max3_f32 v{T0}, v{T0}, v{S0+6}, v{S0+7}")
        e(f"v_max_f32 v{T0}, v{T0}, v{T0+1}")
        e(f"v_cmp_gt_f32 vcc, v{T0}, v{THR}")
        rl, bl = f"L_rare{slot}", f"L_back{slot}"
        e(f"s_cbranch_vccnz {rl}")
        e.label(bl)
        rares.append((rl, bl))
        for i in range(8):
            e(f"v_fma_f32 v{S0+i}, v{S0+i}, s81, v{MNEG}")
        for i in range(8):
            e(f"v_exp_f32 v{S0+i}, v{S0+i}")
        e("s_nop 0")
        for i in range(4):
            e(f"v_cvt_pk_bf16_f32 v{P0+i}, v{S0+2*i}, v{S0+2*i+1}")
        e(f"v_add_f32 v{T0}, v{S0}, v{S0+1}")
        e(f"v_add_f32 v{T0+1}, v{S0+2}, v{S0+3}")
        e(f"v_add_f32 v{T0+2}, v{S0+4}, v{S0+5}")
        e(f"v_add_f32 v{T0+3}, v{S0+6}, v{S0+7}")
        e(f"v_add_f32 v{T0}, v{T0}, v{T0+1}")
        e(f"v_add_f32 v{T0+2}, v{T0+2}, v{T0+3}")
        e(f"v_add_f32 v{T0}, v{T0}, v{T0+2}")
        e(f"v_add_f32 v{LSUM}, v{LSUM}, v{T0}")
        e("s_waitcnt vmcnt(26)")
        for j in range(8):
            for hb in range(2):
                r = VF + j * 4 + hb * 2
                e(f"ds_read_b64_tr_b16 v[{r}:{r+1}], v{VA+j} offset:{slot*8192 + hb*4096}")
        e("s_waitcnt lgkmcnt(0)")
        issue("V", slot, 78 + slot)
        for j in range(8):
            r = VF + j * 4
            e(f"v_mfma_f32_16x16x32_bf16 v[{OA+4*j}:{OA+4*j+3}], v[{r}:{r+3}], v[{P0}:{P0+3}], v[{OA+4*j}:{OA+4*j+3}]")
        e(f"s_cmp_ge_u32 s{78+(slot^1)}, 0x200000")
        if slot == 0:
            e("s_cbranch_scc1 L_loop_done")
        else:
            e("s_cbranch_scc0 L_loop")
    e.label("L_loop_done")
    stamp(14, 0)
    e("s_nop 7")
    e("s_nop 7")
    e("s_lshl_b32 s75, s3, 11")
    e(f"s_add_u32 s75, s75, {L_CB}")
    e("v_lshlrev_b32 v40, 9, v22")
    e("v_lshl_add_u32 v40, v3, 4, v40")
    e("v_add_u32 v40, s75, v40")
    e("s_lshl_b32 s76, s3, 2")
    e("v_lshlrev_b32 v41, 4, v22")
    e("v_add_u32 v41, s76, v41")
    e("v_lshlrev_b32 v42, 2, v41")
    e("v_lshl_add_u32 v42, v3, 2, v42")
    e(f"v_add_u32 v41, {L_ST}, v41")
    e(f"v_add_u32 v42, {L_ST+64}, v42")
    e("v_cmp_gt_u32 vcc, 4, v22")
    e("s_and_saveexec_b64 s[82:83], vcc")
    for j in range(8):
        e(f"ds_write_b128 v40, v[{OA+4*j}:{OA+4*j+3}] offset:{64*j}")
    e(f"ds_write_b32 v41, v{MREF}")
    e(f"ds_write_b32 v42, v{LSUM}")
    e("s_mov_b64 exec, s[82:83]")
    e("s_branch L_b3")

    e.label("L_table")
    W1P, B1P, W2P = 40, 68, 96
    e("v_mov_b32 v6, 0")
    k0 = -2.0 * math.sqrt(2.0 / math.pi) * math.log2(math.e)
    k1 = k0 * 0.044715
    f2u = lambda f: struct.unpack("<I", struct.pack("<f", f))[0]
    e(f"s_mov_b32 s12, 0x{f2u(k0):08x}")
    e(f"s_mov_b32 s13, 0x{f2u(k0):08x}")
    e(f"s_mov_b32 s14, 0x{f2u(k1):08x}")
    e(f"s_mov_b32 s15, 0x{f2u(k1):08x}")
    e("v_mov_b32 v38, s12")
    e("v_mov_b32 v39, s13")
    for j in range(14):
        e(f"v_and_b32 v{W1P+2*j+1}, 0xffff0000, v{160+j}")
        e(f"v_lshlrev_b32 v{W1P+2*j}, 16, v{160+j}")
        e(f"v_and_b32 v{B1P+2*j+1}, 0xffff0000, v{176+j}")
        e(f"v_lshlrev_b32 v{B1P+2*j}, 16, v{176+j}")
    e("v_lshlrev_b32 v36, 16, v192")
    e(f"v_mov_b32 v34, {L_FL+4}")
    e("v_mov_b32 v35, 1")
    e(f"v_and_b32 v116, 0x7fffffff, v{W1P}")
    e(f"v_and_b32 v117, 0x7fffffff, v{B1P}")
    for j in range(1, 28):
        e(f"v_and_b32 v118, 0x7fffffff, v{W1P+j}")
        e(f"v_and_b32 v119, 0x7fffffff, v{B1P+j}")
        e("v_max_u32 v116, v116, v118")
        e("v_min_u32 v117, v117, v119")
    for mod in ["quad_perm:[1,0,3,2]", "quad_perm:[2,3,0,1]", "row_half_mirror", "row_mirror"]:
        e("s_nop 1")
        e(f"v_max_u32_dpp v116, v116, v116 {mod} row_mask:0xf bank_mask:0xf")
        e(f"v_min_u32_dpp v117, v117, v117 {mod} row_mask:0xf bank_mask:0xf")
    e("s_nop 1")
    for r in range(4):
        e(f"v_readlane_b32 s{4+r}, v116, {16*r}")
        e(f"v_readlane_b32 s{8+r}, v117, {16*r}")
    e("s_max_u32 s4, s4, s5")
    e("s_max_u32 s6, s6, s7")
    e("s_max_u32 s4, s4, s6")
    e("s_min_u32 s8, s8, s9")
    e("s_min_u32 s10, s10, s11")
    e("s_min_u32 s8, s8, s10")
    e("v_mov_b32 v116, s4")
    e("v_rcp_f32 v116, v116")
    e("s_nop 0")
    e("v_mul_f32 v116, s8, v116")
    e("v_mul_f32 v116, 0x39800000, v116")
    e("s_nop 0")
    e("v_readfirstlane_b32 s16, v116")
    e("s_lshr_b32 s16, s16, 23")
    e("s_and_b32 s16, s16, 0xff")
    e("s_cmp_eq_u32 s8, 0")
    e("s_cselect_b32 s16, 0, s16")
    e("s_min_u32 s16, s16, 131")
    e("s_sub_u32 s17, 132, s16")
    e("s_lshl_b32 s18, s17, 7")
    e("s_lshl_b32 s19, s16, 7")
    e("s_mul_i32 s20, s2, s17")
    e("s_add_u32 s21, s17, 3")
    e("s_mul_i32 s21, s21, 0x5556")
    e("s_lshr_b32 s21, s21, 16")
    e(f"v_mov_b32 v116, {L_FL+8}")
    e("v_mov_b32 v117, s19")
    e("ds_write_b32 v116, v117")
    ACC = 112
    TMP = 116
    stamp(13, 4)
    e.label("L_tloop")
    e("s_mov_b64 exec, 1")
    e("ds_add_rtn_u32 v33, v34, v35")
    e("s_mov_b64 exec, -1")
    e("s_waitcnt lgkmcnt(0)")
    e("v_readfirstlane_b32 s90, v33")
    e("s_cmp_ge_u32 s90, s21")
    e("s_cbranch_scc1 L_tdone")
    e("s_mul_i32 s75, s90, 3")
    for k in range(3):
        e(f"s_add_u32 s76, s75, {k}")
        e("s_add_u32 s77, s20, s76")
        e("s_sub_u32 s4, s77, s18")
        e("s_cmp_ge_u32 s77, s18")
        e("s_cselect_b32 s77, s4, s77")
        e("s_cselect_b32 s5, 1, 0")
        e("s_add_u32 s77, s77, s19")
        e("s_mul_i32 s4, s5, 16896")
        e(f"s_add_u32 s{22+k}, s77, s4")
        e("s_lshl_b32 s5, s5, 15")
        e("s_or_b32 s77, s77, s5")
        e("s_cmp_lt_u32 s76, s17")
        e("s_cselect_b32 s77, s77, 0")
        e(f"s_cselect_b32 s{22+k}, s{22+k}, 33792")
        e("s_cmp_eq_u32 s76, s17")
        e(f"s_cselect_b32 s{22+k}, 0, s{22+k}")
        e(f"s_lshl_b32 s{22+k}, s{22+k}, 2")
        e(f"s_add_u32 s{22+k}, s{22+k}, {TB_OFF}")
        e("s_lshl_b32 s4, s77, 16")
        e("s_mov_b32 s5, s4")
        e(f"v_mov_b32 v{ACC+k}, 0")
        for half in range(2):
            steps = []
            for jj in range(7):
                j = half * 7 + jj
                a = TMP + 6 * jj
                q = a + 2
                c = a + 4
                steps.append([
                    f"v_pk_mul_f32 v[{a}:{a+1}], v[{W1P+2*j}:{W1P+2*j+1}], s[4:5]",
                    f"v_cvt_pk_bf16_f32 v{c}, v{a}, v{a+1}",
                    f"v_lshlrev_b32 v{a}, 16, v{c}",
                    f"v_and_b32 v{a+1}, 0xffff0000, v{c}",
                    f"v_pk_add_f32 v[{a}:{a+1}], v[{a}:{a+1}], v[{B1P+2*j}:{B1P+2*j+1}]",
                    f"v_cvt_pk_bf16_f32 v{c}, v{a}, v{a+1}",
                    f"v_lshlrev_b32 v{a}, 16, v{c}",
                    f"v_and_b32 v{a+1}, 0xffff0000, v{c}",
                    f"v_pk_mul_f32 v[{q}:{q+1}], v[{a}:{a+1}], v[{a}:{a+1}]",
                    f"v_pk_fma_f32 v[{q}:{q+1}], v[{q}:{q+1}], s[14:15], v[38:39]",
                    f"v_pk_mul_f32 v[{q}:{q+1}], v[{q}:{q+1}], v[{a}:{a+1}]",
                    f"v_exp_f32 v{q}, v{q}",
                    f"v_exp_f32 v{q+1}, v{q+1}",
                    f"v_pk_add_f32 v[{q}:{q+1}], v[{q}:{q+1}], 1.0 op_sel_hi:[1,0]",
                    f"v_rcp_f32 v{q}, v{q}",
                    f"v_rcp_f32 v{q+1}, v{q+1}",
                    f"v_pk_mul_f32 v[{q}:{q+1}], v[{q}:{q+1}], v[{a}:{a+1}]",
                    f"v_cvt_pk_bf16_f32 v{c}, v{q}, v{q+1}",
                    f"v_dot2_f32_bf16 v{ACC+k}, v{c}, v{W2P+j}, v{ACC+k}",
                ])
            for i in range(len(steps[0])):
                for jj in range(7):
                    e(steps[jj][i])
    e("s_nop 2")
    for mod in ["quad_perm:[1,0,3,2] row_mask:0xf", "quad_perm:[2,3,0,1] row_mask:0xf",
                "row_half_mirror row_mask:0xf", "row_mirror row_mask:0xf",
                "row_bcast:15 row_mask:0xa", "row_bcast:31 row_mask:0xc"]:
        e("s_nop 1")
        for k in range(3):
            e(f"v_add_f32_dpp v{ACC+k}, v{ACC+k}, v{ACC+k} {mod} bank_mask:0xf")
    for k in range(3):
        bf16r(e, ACC + k)
        e(f"v_add_f32 v{ACC+k}, v{ACC+k}, v36")
        bf16r(e, ACC + k)
    e("s_mov_b32 exec_lo, 0")
    e("s_mov_b32 exec_hi, 0x80000000")
    for k in range(3):
        e(f"buffer_store_dword v{ACC+k}, v6, s[40:43], s{22+k} offen sc1")
    e("s_mov_b64 exec, -1")
    e("s_branch L_tloop")
    e.label("L_tdone")
    stamp(11, 4)
    e("s_cmp_lg_u32 s3, 7")
    e("s_cbranch_scc1 L_b3")
    e("v_lshlrev_b32 v16, 2, v2")
    e("s_mov_b32 s90, 0")
    e("s_mov_b32 s91, 0x01010101")
    e.label("L_gpoll")
    e("global_load_dword v17, v16, s[26:27] sc1")
    e("s_waitcnt vmcnt(0)")
    e("v_cmp_ne_u32 vcc, s91, v17")
    e("s_nop 1")
    e("s_cmp_eq_u64 vcc, 0")
    e("s_cbranch_scc1 L_b3")
    e("s_add_u32 s90, s90, 1")
    e(f"s_cmp_ge_u32 s90, {POLL_LIMIT}")
    e("s_cbranch_scc1 L_b3")
    e("s_sleep 100")
    e("s_branch L_gpoll")
    e.label("L_b3")
    e("s_waitcnt vmcnt(0) lgkmcnt(0)")
    e("s_barrier")
    e.label("L_tail")
    stamp(2)
    e("s_cmp_ge_u32 s3, 2")
    e("s_cbranch_scc1 L_t2")
    e("v_lshrrev_b32 v4, 5, v0")
    e("v_and_b32 v5, 31, v0")
    e("v_lshlrev_b32 v6, 4, v4")
    e(f"v_add_u32 v6, {L_ST}, v6")
    e("ds_read_b128 v[44:47], v6")
    e("v_lshlrev_b32 v6, 6, v4")
    e(f"v_add_u32 v6, {L_ST+64}, v6")
    for w in range(4):
        e(f"ds_read_b128 v[{48+4*w}:{48+4*w+3}], v6 offset:{16*w}")
    e("v_lshlrev_b32 v6, 9, v4")
    e("v_lshl_add_u32 v6, v5, 4, v6")
    e(f"v_add_u32 v6, {L_CB}, v6")
    for w in range(4):
        e(f"ds_read_b128 v[{64+4*w}:{64+4*w+3}], v6 offset:{2048*w}")
    e("s_waitcnt lgkmcnt(0)")
    e("v_max3_f32 v80, v44, v45, v46")
    e("v_max_f32 v80, v80, v47")
    for w in range(4):
        e(f"v_sub_f32 v{44+w}, v{44+w}, v80")
        e(f"v_mul_f32 v{44+w}, s81, v{44+w}")
        e(f"v_exp_f32 v{44+w}, v{44+w}")
    for w in range(4):
        e(f"v_add_f32 v{48+4*w}, v{48+4*w}, v{49+4*w}")
        e(f"v_add_f32 v{50+4*w}, v{50+4*w}, v{51+4*w}")
        e(f"v_add_f32 v{48+4*w}, v{48+4*w}, v{50+4*w}")
    e("v_mul_f32 v81, v44, v48")
    for k in range(4):
        e(f"v_mul_f32 v{84+k}, v44, v{64+k}")
    for w in range(1, 4):
        e(f"v_fmac_f32 v81, v{44+w}, v{48+4*w}")
        for k in range(4):
            e(f"v_fmac_f32 v{84+k}, v{44+w}, v{64+4*w+k}")
    e("v_lshlrev_b32 v6, 11, v4")
    e("v_lshl_add_u32 v6, v5, 4, v6")
    e("s_lshl_b32 s75, s72, 13")
    e("s_lshl_b32 s76, s73, 9")
    e("s_add_u32 s75, s75, s76")
    e(f"s_add_u32 s75, s75, {PO_OFF}")
    e("buffer_store_dwordx4 v[84:87], v6, s[40:43], s75 offen sc1")
    e("v_lshlrev_b32 v6, 5, v4")
    e("s_lshl_b32 s75, s72, 7")
    e("s_lshl_b32 s76, s73, 3")
    e("s_add_u32 s75, s75, s76")
    e(f"s_add_u32 s75, s75, {PML_OFF}")
    e("v_cmp_eq_u32 vcc, 0, v5")
    e("s_and_saveexec_b64 s[82:83], vcc")
    e("buffer_store_dwordx2 v[80:81], v6, s[40:43], s75 offen sc1")
    e("s_mov_b64 exec, s[82:83]")
    e.label("L_t2")
    e("v_lshrrev_b32 v4, 5, v2")
    e("v_and_b32 v5, 31, v2")
    e("s_lshr_b32 s75, s2, 4")
    e("s_lshl_b32 s75, s75, 1")
    e("s_lshl_b32 s76, s3, 5")
    e("s_add_u32 s75, s75, s76")
    e("v_lshlrev_b32 v6, 5, v4")
    e("s_lshl_b32 s76, s75, 5")
    e(f"s_add_u32 s76, s76, {PML_OFF}")
    e("v_lshlrev_b32 v7, 11, v4")
    e("v_lshl_add_u32 v7, v5, 4, v7")
    e("s_lshl_b32 s77, s75, 11")
    e(f"s_add_u32 s77, s77, {PO_OFF}")
    e("s_mov_b32 s90, 0")
    e.label("L_mlpoll")
    e("buffer_load_dwordx4 v[16:19], v6, s[40:43], s76 offen sc1")
    e("buffer_load_dwordx4 v[20:23], v6, s[40:43], s76 offen offset:16 sc1")
    for s in range(4):
        e(f"buffer_load_dwordx4 v[{24+4*s}:{24+4*s+3}], v7, s[40:43], s77 offen offset:{512*s} sc1")
    e("s_waitcnt vmcnt(0)")
    e("v_max_u32 v40, v16, v17")
    for k in range(18, 40, 2):
        e(f"v_max3_u32 v40, v40, v{k}, v{k+1}")
    e("v_cmp_eq_u32 vcc, -1, v40")
    e("s_nop 1")
    e("s_cmp_eq_u64 vcc, 0")
    e("s_cbranch_scc1 L_mlready")
    e("s_add_u32 s90, s90, 1")
    e(f"s_cmp_ge_u32 s90, {POLL_LIMIT}")
    e("s_cbranch_scc1 L_mlready")
    e(f"s_sleep {SLEEP2}")
    e("s_branch L_mlpoll")
    e.label("L_mlready")
    stamp(10, 0)
    e("v_max3_f32 v60, v16, v18, v20")
    e("v_max_f32 v60, v60, v22")
    for s in range(4):
        e(f"v_sub_f32 v{44+s}, v{16+2*s}, v60")
        e(f"v_mul_f32 v{44+s}, s81, v{44+s}")
        e(f"v_exp_f32 v{44+s}, v{44+s}")
    e("s_nop 0")
    e("v_mul_f32 v61, v44, v17")
    for s in range(1, 4):
        e(f"v_fmac_f32 v61, v{44+s}, v{17+2*s}")
    e("v_rcp_f32 v61, v61")
    e("s_nop 0")
    for s in range(4):
        e(f"v_mul_f32 v{44+s}, v{44+s}, v61")
    e.label("L_poready")
    for k in range(4):
        e(f"v_mul_f32 v{48+k}, v44, v{24+k}")
        for s in range(1, 4):
            e(f"v_fmac_f32 v{48+k}, v{44+s}, v{24+4*s+k}")
    e("v_cvt_pk_bf16_f32 v52, v48, v49")
    e("v_cvt_pk_bf16_f32 v53, v50, v51")
    e("v_lshlrev_b32 v6, 3, v0")
    e(f"v_add_u32 v6, {L_OA}, v6")
    e("ds_write_b64 v6, v[52:53]")
    e("s_waitcnt lgkmcnt(0)")
    e("s_barrier")
    stamp(3)
    e("s_cmp_ge_u32 s3, 2")
    e("s_cbranch_scc1 L_t4")
    e("v_and_b32 v22, 15, v2")
    e("v_bfe_u32 v4, v2, 2, 2")
    e("v_and_b32 v5, 3, v2")
    e("v_lshl_add_u32 v6, v3, 3, v4")
    e("v_lshlrev_b32 v6, 6, v6")
    e("v_lshl_add_u32 v6, v5, 3, v6")
    e("s_lshl_b32 s75, s3, 5")
    e(f"s_add_u32 s75, s75, {L_WT}")
    e("v_add_u32 v6, s75, v6")
    e("v_and_b32 v7, 7, v2")
    e("v_lshlrev_b32 v7, 9, v7")
    e("v_lshl_add_u32 v7, v3, 4, v7")
    e(f"v_add_u32 v7, {L_OA}, v7")
    A0, B0 = 32, 64
    for s in range(8):
        e(f"ds_read_b64_tr_b16 v[{A0+4*s}:{A0+4*s+1}], v6 offset:{s*2048}")
        e(f"ds_read_b64_tr_b16 v[{A0+4*s+2}:{A0+4*s+3}], v6 offset:{s*2048 + 256}")
        e(f"ds_read_b128 v[{B0+4*s}:{B0+4*s+3}], v7 offset:{s*64}")
        if s % 4 == 3:
            e("s_waitcnt lgkmcnt(0)")
    for s in range(8):
        c = "0" if s == 0 else "v[8:11]"
        e(f"v_mfma_f32_16x16x32_bf16 v[8:11], v[{A0+4*s}:{A0+4*s+3}], v[{B0+4*s}:{B0+4*s+3}], {c}")
    e("v_lshlrev_b32 v5, 15, v22")
    e("v_lshl_add_u32 v5, v3, 4, v5")
    e("s_lshr_b32 s75, s2, 4")
    e("s_lshl_b32 s75, s75, 11")
    e("s_and_b32 s76, s2, 7")
    e("s_lshl_b32 s76, s76, 8")
    e("s_add_u32 s75, s75, s76")
    e("s_bfe_u32 s76, s2, 0x10003")
    e("s_lshl_b32 s76, s76, 7")
    e("s_add_u32 s75, s75, s76")
    e("s_lshl_b32 s76, s3, 6")
    e("s_add_u32 s75, s75, s76")
    e(f"s_add_u32 s75, s75, {WP_OFF}")
    e("v_cmp_gt_u32 vcc, 8, v22")
    e("s_and_saveexec_b64 s[82:83], vcc")
    e("buffer_store_dwordx4 v[8:11], v5, s[40:43], s75 offen sc1")
    e("s_mov_b64 exec, s[82:83]")
    e.label("L_t4")
    e("s_and_b32 s75, s2, 31")
    e("s_cmp_lg_u32 s75, 0")
    e("s_cbranch_scc1 L_exit")
    e("s_lshr_b32 s77, s2, 5")
    e("s_lshl_b32 s75, s77, 10")
    e("v_lshlrev_b32 v4, 1, v0")
    e("buffer_load_ushort v44, v4, s[44:47], s75 offen")
    e("s_lshl_b32 s75, s77, 15")
    e(f"s_add_u32 s75, s75, {WP_OFF}")
    e("s_mov_b32 s90, 0")
    e("v_lshlrev_b32 v3, 2, v0")
    e.label("L_wppoll")
    for i in range(16):
        e(f"s_add_u32 s76, s75, {2048*i}")
        e(f"buffer_load_dword v{16+i}, v3, s[40:43], s76 offen sc1")
    e("s_waitcnt vmcnt(0)")
    e("v_max_u32 v40, v16, v17")
    for k in range(18, 32, 2):
        e(f"v_max3_u32 v40, v40, v{k}, v{k+1}")
    e("v_cmp_eq_u32 vcc, -1, v40")
    e("s_nop 1")
    e("s_cmp_eq_u64 vcc, 0")
    e("s_cbranch_scc1 L_wpok")
    e("s_add_u32 s90, s90, 1")
    e(f"s_cmp_ge_u32 s90, {POLL_LIMIT}")
    e("s_cbranch_scc1 L_wpok")
    e(f"s_sleep {SLEEP3}")
    e("s_branch L_wppoll")
    e.label("L_wpok")
    for i in range(1, 16):
        e(f"v_add_f32 v16, v16, v{16+i}")
    bf16r(e, 16)
    e("v_lshlrev_b32 v44, 16, v44")
    e("v_add_f32 v16, v16, v44")
    bf16r(e, 16)
    e(f"v_add_u32 v4, {L_H}, v3")
    e("ds_write_b32 v4, v16")
    e("s_waitcnt lgkmcnt(0)")
    e("s_barrier")
    stamp(4)
    e("s_cmp_lg_u32 s3, 0")
    e("s_cbranch_scc1 L_exit")
    e("v_lshlrev_b32 v7, 5, v2")
    e(f"v_add_u32 v7, {L_H}, v7")
    e("ds_read_b128 v[16:19], v7")
    e("ds_read_b128 v[20:23], v7 offset:16")
    e(f"v_mov_b32 v8, {L_FL+8}")
    e("ds_read_b32 v35, v8")
    e("s_waitcnt lgkmcnt(0)")
    for k in range(8):
        e(f"v_mov_b32 v{48+k}, v{16+k}")
    layernorm8(e, 16, 64, 92)
    layernorm8(e, 16, 64, 92)
    stamp(12, 0)
    e(f"s_mov_b32 s76, {TB_OFF}")
    e("s_mov_b32 s75, 16896")
    for k in range(8):
        e(f"v_bfe_u32 v{24+k}, v{16+k}, 16, 15")
        e(f"v_lshrrev_b32 v32, 31, v{16+k}")
        e(f"v_mad_u32_u24 v33, v32, s75, v{24+k}")
        e(f"v_cmp_lt_u32 vcc, v{24+k}, v35")
        e(f"v_lshlrev_b32 v33, 2, v33")
        e("s_nop 0")
        e("v_cndmask_b32 v33, v33, 0, vcc")
        e(f"buffer_load_dword v{56+k}, v33, s[40:43], s76 offen sc1")
    e("v_mov_b32 v34, 0x7fc00000")
    e("s_waitcnt vmcnt(0)")
    for k in range(8):
        e(f"v_cmp_gt_u32 vcc, s75, v{24+k}")
        e("s_nop 1")
        e(f"v_cndmask_b32 v{56+k}, v34, v{56+k}, vcc")
        e(f"v_add_f32 v{56+k}, v{56+k}, v{48+k}")
    for k in range(4):
        e(f"v_cvt_pk_bf16_f32 v{64+k}, v{56+2*k}, v{57+2*k}")
    e("v_lshlrev_b32 v8, 4, v2")
    e("s_lshl_b32 s75, s77, 10")
    e("buffer_store_dwordx4 v[64:67], v8, s[68:71], s75 offen")
    stamp(5)
    e.label("L_exit")
    e("s_endpgm")
    for rl, bl in rares:
        e.label(rl)
        e(f"ds_bpermute_b32 v{T0+1}, v{BP0}, v{T0}")
        e("s_waitcnt lgkmcnt(0)")
        e(f"v_max_f32 v{T0}, v{T0}, v{T0+1}")
        e(f"ds_bpermute_b32 v{T0+1}, v{BP1}, v{T0}")
        e("s_waitcnt lgkmcnt(0)")
        e(f"v_max3_f32 v{T0}, v{T0}, v{T0+1}, v{MREF}")
        e(f"v_sub_f32 v{T0+1}, v{MREF}, v{T0}")
        e(f"v_mul_f32 v{T0+1}, s81, v{T0+1}")
        e(f"v_exp_f32 v{T0+1}, v{T0+1}")
        e("s_nop 0")
        for i in range(32):
            e(f"v_mul_f32 v{OA+i}, v{OA+i}, v{T0+1}")
        e(f"v_mul_f32 v{LSUM}, v{LSUM}, v{T0+1}")
        e(f"v_mov_b32 v{MREF}, v{T0}")
        e(f"v_mul_f32 v{MNEG}, s81, v{T0}")
        e(f"v_sub_f32 v{MNEG}, 0, v{MNEG}")
        e(f"v_add_f32 v{THR}, 0x40a00000, v{T0}")
        e(f"s_branch {bl}")


def main():
    opt = {}
    for a in sys.argv[2:]:
        k, v = a.split("=")
        opt[k] = {"0": False, "1": True}.get(v, v)
    e = E()
    e.raw(HEADER.rstrip("\n"))
    e.raw(f"; @launch grid=(256,1,1) block=(512,1,1) lds={LDS_TOTAL}")
    e.raw('.amdgcn_target "amdgcn-amd-amdhsa--gfx950"')
    e.raw(".text")
    gen(e, opt)
    e.raw('.section .rodata,"a"')
    e.raw(".p2align 6")
    e.raw(f""".amdhsa_kernel {KNAME}
  .amdhsa_next_free_vgpr 256
  .amdhsa_next_free_sgpr 102
  .amdhsa_accum_offset 256
  .amdhsa_group_segment_fixed_size 0
  .amdhsa_kernarg_size 104
  .amdhsa_user_sgpr_count 2
  .amdhsa_user_sgpr_kernarg_segment_ptr 1
  .amdhsa_system_sgpr_workgroup_id_x 1
.end_amdhsa_kernel""")
    open(sys.argv[1], "w").write(e.text())


main()
```

```python
import sys, struct, math

KNAME = "sequential_preLN__gqa_block_cached__mixer_token_mlp__decode_kernel"
HEADER = open("sequential_preLN__gqa_block_cached__mixer_token_mlp__decode.s.ref").read().split("; Override launch")[0]

Q_OFF = 0x0
PO_OFF = 0x10000
PML_OFF = 0x90000
WP_OFF = 0xA0000
ST_OFF = 0xE0000
CNT_OFF = 0xF0000
QG_OFF = 0x100000
TB_OFF = 0x120000
WS_USED = 0x148000

LOG2E = 0x3FB8AA3B
SCALE = 0x3DB504F3
NEGBIG = 0xF149F2CA

X = 131072
L_LN = X
L_CB = X
L_WT = X + 8192
L_Q = X + 24576
L_ST = X + 25600
L_OA = X + 26624
L_H = X + 30720
L_FL = X + 25600 + 512
LDS_TOTAL = 163840

POLL_LIMIT = 400000


class E:
    def __init__(self):
        self.lines = []
        self.lbl = 0

    def __call__(self, s):
        for ln in s.strip("\n").split("\n"):
            self.lines.append("    " + ln.strip())

    def label(self, name):
        self.lines.append(name + ":")

    def raw(self, s):
        self.lines.append(s)

    def newlabel(self, base):
        self.lbl += 1
        return f"L_{base}_{self.lbl}"

    def text(self):
        return "\n".join(self.lines) + "\n"


def srd(e, d, base_lo, nbytes):
    e(f"s_mov_b32 s{d}, s{base_lo}")
    e(f"s_mov_b32 s{d+1}, s{base_lo+1}")
    e(f"s_mov_b32 s{d+2}, {nbytes}")
    e(f"s_mov_b32 s{d+3}, 0x00020000")


def wave_allreduce_add(e, v, t, s0):
    e(f"s_nop 1")
    e(f"v_add_f32_dpp v{v}, v{v}, v{v} quad_perm:[1,0,3,2] row_mask:0xf bank_mask:0xf")
    e(f"s_nop 1")
    e(f"v_add_f32_dpp v{v}, v{v}, v{v} quad_perm:[2,3,0,1] row_mask:0xf bank_mask:0xf")
    e(f"s_nop 1")
    e(f"v_add_f32_dpp v{v}, v{v}, v{v} row_half_mirror row_mask:0xf bank_mask:0xf")
    e(f"s_nop 1")
    e(f"v_add_f32_dpp v{v}, v{v}, v{v} row_mirror row_mask:0xf bank_mask:0xf")
    e(f"s_nop 1")
    e(f"v_readlane_b32 s{s0}, v{v}, 0")
    e(f"v_readlane_b32 s{s0+1}, v{v}, 16")
    e(f"v_readlane_b32 s{s0+2}, v{v}, 32")
    e(f"v_readlane_b32 s{s0+3}, v{v}, 48")
    e(f"s_nop 1")
    e(f"v_mov_b32 v{t}, s{s0}")
    e(f"v_add_f32 v{t}, s{s0+1}, v{t}")
    e(f"v_add_f32 v{v}, s{s0+2}, v{t}")
    e(f"v_add_f32 v{v}, s{s0+3}, v{v}")


def bf16r(e, v):
    e(f"v_cvt_pk_bf16_f32 v{v}, v{v}, v{v}")
    e(f"v_lshlrev_b32 v{v}, 16, v{v}")


def layernorm8(e, x, t, s0):
    e(f"v_add_f32 v{t}, v{x}, v{x+1}")
    for i in range(2, 8):
        e(f"v_add_f32 v{t}, v{t}, v{x+i}")
    wave_allreduce_add(e, t, t + 1, s0)
    e(f"v_mul_f32 v{t}, 0x3b000000, v{t}")
    for i in range(8):
        e(f"v_sub_f32 v{t+2+i}, v{x+i}, v{t}")
    e(f"v_mul_f32 v{t+10}, v{t+2}, v{t+2}")
    for i in range(1, 8):
        e(f"v_fmac_f32 v{t+10}, v{t+2+i}, v{t+2+i}")
    wave_allreduce_add(e, t + 10, t + 1, s0)
    e(f"v_mul_f32 v{t+10}, 0x3b000000, v{t+10}")
    bf16r(e, t + 10)
    e(f"v_add_f32 v{t+10}, 0x3727c5ac, v{t+10}")
    bf16r(e, t + 10)
    e(f"v_sqrt_f32 v{t+10}, v{t+10}")
    e(f"s_nop 0")
    bf16r(e, t + 10)
    e(f"v_rcp_f32 v{t+11}, v{t+10}")
    bf16r(e, t)
    for i in range(8):
        e(f"v_sub_f32 v{x+i}, v{x+i}, v{t}")
    for i in range(0, 8, 2):
        e(f"v_cvt_pk_bf16_f32 v{t+2}, v{x+i}, v{x+i+1}")
        e(f"v_lshlrev_b32 v{x+i}, 16, v{t+2}")
        e(f"v_and_b32 v{x+i+1}, 0xffff0000, v{t+2}")
    for i in range(8):
        e(f"v_mul_f32 v{t+2}, v{x+i}, v{t+11}")
        e(f"v_fma_f32 v{t+3}, -v{t+2}, v{t+10}, v{x+i}")
        e(f"v_fma_f32 v{x+i}, v{t+3}, v{t+11}, v{t+2}")
    for i in range(0, 8, 2):
        e(f"v_cvt_pk_bf16_f32 v{t+2}, v{x+i}, v{x+i+1}")
        e(f"v_lshlrev_b32 v{x+i}, 16, v{t+2}")
        e(f"v_and_b32 v{x+i+1}, 0xffff0000, v{t+2}")


def unpack8(e, src, dst):
    for i in range(4):
        e(f"v_lshlrev_b32 v{dst+2*i}, 16, v{src+i}")
        e(f"v_and_b32 v{dst+2*i+1}, 0xffff0000, v{src+i}")


W1P, B1P, W2P = 40, 68, 96
TMP = 116


def eval_F(e, acc):
    for half in range(2):
        steps = []
        for jj in range(7):
            j = half * 7 + jj
            a = TMP + 6 * jj
            q = a + 2
            c = a + 4
            steps.append([
                f"v_pk_mul_f32 v[{a}:{a+1}], v[{W1P+2*j}:{W1P+2*j+1}], s[4:5]",
                f"v_cvt_pk_bf16_f32 v{c}, v{a}, v{a+1}",
                f"v_lshlrev_b32 v{a}, 16, v{c}",
                f"v_and_b32 v{a+1}, 0xffff0000, v{c}",
                f"v_pk_add_f32 v[{a}:{a+1}], v[{a}:{a+1}], v[{B1P+2*j}:{B1P+2*j+1}]",
                f"v_cvt_pk_bf16_f32 v{c}, v{a}, v{a+1}",
                f"v_lshlrev_b32 v{a}, 16, v{c}",
                f"v_and_b32 v{a+1}, 0xffff0000, v{c}",
                f"v_pk_mul_f32 v[{q}:{q+1}], v[{a}:{a+1}], v[{a}:{a+1}]",
                f"v_pk_fma_f32 v[{q}:{q+1}], v[{q}:{q+1}], s[14:15], v[38:39]",
                f"v_pk_mul_f32 v[{q}:{q+1}], v[{q}:{q+1}], v[{a}:{a+1}]",
                f"v_exp_f32 v{q}, v{q}",
                f"v_exp_f32 v{q+1}, v{q+1}",
                f"v_pk_add_f32 v[{q}:{q+1}], v[{q}:{q+1}], 1.0 op_sel_hi:[1,0]",
                f"v_rcp_f32 v{q}, v{q}",
                f"v_rcp_f32 v{q+1}, v{q+1}",
                f"v_pk_mul_f32 v[{q}:{q+1}], v[{q}:{q+1}], v[{a}:{a+1}]",
                f"v_cvt_pk_bf16_f32 v{c}, v{q}, v{q+1}",
                f"v_dot2_f32_bf16 v{acc}, v{c}, v{W2P+j}, v{acc}",
            ])
        for i in range(len(steps[0])):
            for jj in range(7):
                e(steps[jj][i])


def load_weights(e):
    e("v_mul_u32_u24 v13, 56, v2")
    for base, sr in ((160, 52), (176, 56), (96, 60)):
        e(f"buffer_load_dwordx4 v[{base}:{base+3}], v13, s[{sr}:{sr+3}], 0 offen")
        e(f"buffer_load_dwordx4 v[{base+4}:{base+7}], v13, s[{sr}:{sr+3}], 0 offen offset:16")
        e(f"buffer_load_dwordx4 v[{base+8}:{base+11}], v13, s[{sr}:{sr+3}], 0 offen offset:32")
        e(f"buffer_load_dwordx2 v[{base+12}:{base+13}], v13, s[{sr}:{sr+3}], 0 offen offset:48")
    e("v_mov_b32 v13, 0")
    e("buffer_load_ushort v192, v13, s[64:67], 0 offen")


def prep_weights(e):
    k0 = -2.0 * math.sqrt(2.0 / math.pi) * math.log2(math.e)
    k1 = k0 * 0.044715
    f2u = lambda f: struct.unpack("<I", struct.pack("<f", f))[0]
    e(f"s_mov_b32 s12, 0x{f2u(k0):08x}")
    e(f"s_mov_b32 s14, 0x{f2u(k1):08x}")
    e(f"s_mov_b32 s15, 0x{f2u(k1):08x}")
    e("v_mov_b32 v38, s12")
    e("v_mov_b32 v39, s12")
    for j in range(14):
        e(f"v_and_b32 v{W1P+2*j+1}, 0xffff0000, v{160+j}")
        e(f"v_lshlrev_b32 v{W1P+2*j}, 16, v{160+j}")
        e(f"v_and_b32 v{B1P+2*j+1}, 0xffff0000, v{176+j}")
        e(f"v_lshlrev_b32 v{B1P+2*j}, 16, v{176+j}")
    e("v_lshlrev_b32 v36, 16, v192")


def finish_F(e, accs):
    e("s_nop 2")
    for mod in ["quad_perm:[1,0,3,2] row_mask:0xf", "quad_perm:[2,3,0,1] row_mask:0xf",
                "row_half_mirror row_mask:0xf", "row_mirror row_mask:0xf",
                "row_bcast:15 row_mask:0xa", "row_bcast:31 row_mask:0xc"]:
        e("s_nop 1")
        for a in accs:
            e(f"v_add_f32_dpp v{a}, v{a}, v{a} {mod} bank_mask:0xf")
    for a in accs:
        bf16r(e, a)
        e(f"v_add_f32 v{a}, v{a}, v36")
        bf16r(e, a)


def gen(e, opt):
    NT = opt.get("nt", "nt")
    STAMP = opt.get("stamp", False)
    SLEEP = int(opt.get("sleep", 1))
    SLEEP2 = int(opt.get("sleep2", 4))
    SLEEP3 = int(opt.get("sleep3", 1))

    def stamp(k, wave=0):
        if not STAMP:
            return
        lab = e.newlabel("st")
        e(f"s_cmp_lg_u32 s3, {wave}")
        e(f"s_cbranch_scc1 {lab}")
        e("s_memrealtime s[92:93]")
        e("s_waitcnt lgkmcnt(0)")
        e("s_mov_b64 s[94:95], exec")
        e("s_mov_b64 exec, 1")
        e("v_mov_b32 v250, s92")
        e("v_mov_b32 v251, 0")
        e("s_lshl_b32 s96, s2, 6")
        e(f"s_add_u32 s96, s96, {ST_OFF + 4*k}")
        e("buffer_store_dword v250, v251, s[40:43], s96 offen")
        e("s_mov_b64 exec, s[94:95]")
        e.label(lab)

    e.raw(f".globl {KNAME}")
    e.raw(".p2align 8")
    e.raw(f".type {KNAME},@function")
    e.label(KNAME)
    e("s_cmp_ge_u32 s2, 256")
    e("s_cbranch_scc1 L_exit")
    e("s_load_dwordx8 s[4:11], s[0:1], 0")
    e("s_load_dwordx2 s[12:13], s[0:1], 32")
    e("s_load_dwordx8 s[16:23], s[0:1], 48")
    e("s_load_dwordx4 s[24:27], s[0:1], 80")
    e("s_load_dwordx2 s[28:29], s[0:1], 96")
    e("s_memrealtime s[30:31]")
    e("v_lshrrev_b32 v1, 6, v0")
    e("v_and_b32 v2, 63, v0")
    e("v_lshrrev_b32 v3, 4, v2")
    e("v_readfirstlane_b32 s3, v1")
    for r in range(4, 36):
        e(f"v_mov_b32 v{r}, 0")
    e("s_mov_b32 s88, 0")
    e("s_mov_b32 s89, 0")
    e("s_mov_b32 s74, 0")
    e("s_mov_b32 s78, 0")
    e("s_mov_b32 s79, 0")
    e("v_and_b32 v22, 15, v2")
    e("s_lshr_b32 s72, s2, 2")
    e("s_and_b32 s73, s2, 3")
    e("s_lshl_b32 s75, s72, 21")
    e("s_waitcnt lgkmcnt(0)")
    e("s_add_u32 s32, s6, s75")
    e("s_addc_u32 s33, s7, 0")
    e("s_mov_b32 s34, 0x200000")
    e("s_mov_b32 s35, 0x00020000")
    e("s_add_u32 s36, s8, s75")
    e("s_addc_u32 s37, s9, 0")
    e("s_mov_b32 s38, 0x200000")
    e("s_mov_b32 s39, 0x00020000")
    srd(e, 40, 28, WS_USED)
    srd(e, 44, 4, 8192)
    srd(e, 48, 10, 4 << 20)
    srd(e, 52, 16, 3584)
    srd(e, 56, 18, 3584)
    srd(e, 60, 20, 3584)
    srd(e, 64, 22, 2)
    srd(e, 68, 24, 8192)
    srd(e, 84, 12, 4 << 20)
    e(f"s_mov_b32 s80, 0x{SCALE:08x}")
    e(f"s_mov_b32 s81, 0x{LOG2E:08x}")
    stamp(0)
    e("s_lshl_b32 s75, s3, 10")
    e("v_lshlrev_b32 v5, 4, v2")
    e("buffer_load_dwordx4 v[8:11], v5, s[44:47], s75 offen")
    e("s_cmp_ge_u32 s3, 4")
    e("s_cbranch_scc1 L_helper_h1")

    VK, VV = 12, 16
    for i in range(4):
        e(f"v_add_u32 v23, {4*i}, v3")
        e(f"v_xor_b32 v23, v23, v22")
        e(f"v_lshlrev_b32 v23, 4, v23")
        e(f"v_lshl_add_u32 v{VK+i}, v3, 8, v23")
    for i in range(2):
        e(f"v_add_u32 v23, {4*i}, v3")
        e(f"v_lshlrev_b32 v23, 1, v23")
        e(f"v_xor_b32 v23, v23, v22")
        e(f"v_lshlrev_b32 v23, 4, v23")
        e(f"v_lshl_add_u32 v{VV+i}, v3, 8, v23")
    e("s_lshl_b32 s74, s3, 15")
    VC = 18
    e("s_lshl_b32 s75, s72, 8")
    e(f"s_add_u32 s75, s75, {CNT_OFF}")
    e("v_mov_b32 v20, s75")
    e("v_mov_b32 v21, 1")

    def issue(kind, slot, soff):
        srdn = 32 if kind == "K" else 36
        ldsoff = (0 if kind == "K" else 16384) + slot * 8192
        for half in range(2):
            e(f"s_add_u32 s76, s74, {ldsoff + half*4096}")
            e(f"s_mov_b32 m0, s76")
            if half == 1:
                e(f"s_add_u32 s77, s{soff}, 4096")
            else:
                e(f"s_mov_b32 s77, s{soff}")
            for i in range(4):
                vo = (VK + i) if kind == "K" else (VV + (i & 1))
                e(f"buffer_load_dwordx4 v{vo}, s[{srdn}:{srdn+3}], s77 offen offset:{1024*i} {NT} lds")

    def claim(slot):
        e("s_mov_b64 exec, 1")
        e(f"global_atomic_add v{VC+slot}, v20, v21, s[28:29] sc0 sc1")
        e("s_mov_b64 exec, -1")

    e("s_lshl_b32 s75, s73, 2")
    e("s_add_u32 s75, s75, s3")
    e("s_lshl_b32 s78, s75, 15")
    e("s_add_u32 s79, s78, 8192")
    e("s_lshl_b32 s75, s75, 2")
    e("s_sub_u32 s76, s75, 62")
    e(f"v_mov_b32 v{VC}, s76")
    e("s_sub_u32 s76, s75, 61")
    e(f"v_mov_b32 v{VC+1}, s76")
    e("v_mov_b32 v23, 0")
    PRE = int(opt.get("pre", 4))
    units = [("K", 0, 78), ("V", 0, 78), ("K", 1, 79), ("V", 1, 79)]

    def issue_units(lo, hi):
        for u in range(lo, hi):
            issue(*units[u])
            if units[u][0] == "K":
                e("buffer_load_dword v239, v23, s[44:47], 0 offen")
    PACE = int(opt.get("pace", 6))
    PRE = int(opt.get("pre", 0))
    issue_units(0, PRE)
    e(f"s_waitcnt vmcnt({PRE*8 + (PRE+1)//2})")
    e("s_branch L_ln")

    e.label("L_helper_h1")
    e("s_cmp_lg_u32 s3, 5")
    e("s_cbranch_scc1 L_h1_noclear")
    for i in range(4):
        e(f"v_mov_b32 v{16+i}, -1")
    e("v_lshlrev_b32 v12, 11, v3")
    e("v_lshl_add_u32 v12, v22, 5, v12")
    e("s_lshl_b32 s75, s72, 13")
    e("s_lshl_b32 s76, s73, 9")
    e("s_add_u32 s75, s75, s76")
    e(f"s_add_u32 s75, s75, {PO_OFF}")
    e("buffer_store_dwordx4 v[16:19], v12, s[40:43], s75 offen sc1")
    e("buffer_store_dwordx4 v[16:19], v12, s[40:43], s75 offen offset:16 sc1")
    e("v_lshrrev_b32 v12, 3, v2")
    e("v_lshlrev_b32 v12, 15, v12")
    e("v_and_b32 v13, 7, v2")
    e("v_lshl_add_u32 v12, v13, 4, v12")
    e("s_lshr_b32 s75, s2, 4")
    e("s_lshl_b32 s75, s75, 11")
    e("s_and_b32 s76, s2, 7")
    e("s_lshl_b32 s76, s76, 8")
    e("s_add_u32 s75, s75, s76")
    e("s_bfe_u32 s76, s2, 0x10003")
    e("s_lshl_b32 s76, s76, 7")
    e("s_add_u32 s75, s75, s76")
    e(f"s_add_u32 s75, s75, {WP_OFF}")
    e("buffer_store_dwordx4 v[16:19], v12, s[40:43], s75 offen sc1")
    e("v_lshlrev_b32 v12, 5, v2")
    e("s_lshl_b32 s75, s72, 7")
    e("s_lshl_b32 s76, s73, 3")
    e("s_add_u32 s75, s75, s76")
    e(f"s_add_u32 s75, s75, {PML_OFF}")
    e("s_mov_b64 exec, 15")
    e("buffer_store_dwordx2 v[16:17], v12, s[40:43], s75 offen sc1")
    e("s_mov_b64 exec, -1")
    e("s_and_b32 s75, s2, 31")
    e("s_cmp_ge_u32 s75, 8")
    e("s_cbranch_scc1 L_h1_cleared")
    e("s_lshl_b32 s75, s75, 3")
    e("s_lshr_b32 s76, s2, 5")
    e("s_add_u32 s75, s75, s76")
    e("s_lshl_b32 s75, s75, 8")
    e(f"s_add_u32 s75, s75, {CNT_OFF}")
    e("v_mov_b32 v12, 0")
    e("s_mov_b64 exec, 1")
    e("buffer_store_dword v12, v12, s[40:43], s75 offen sc1")
    e("s_mov_b64 exec, -1")
    e.label("L_h1_cleared")
    e("s_waitcnt vmcnt(0)")
    e.label("L_h1_noclear")
    e("s_lshr_b32 s75, s2, 5")
    e("s_lshl_b32 s75, s75, 3")
    e("s_and_b32 s76, s2, 7")
    e("s_add_u32 s75, s75, s76")
    e("s_lshl_b32 s75, s75, 2")
    e("s_lshr_b32 s76, s2, 3")
    e("s_and_b32 s76, s76, 3")
    e("s_add_u32 s88, s75, s76")
    e("v_lshrrev_b32 v12, 1, v2")
    e("v_lshlrev_b32 v12, 13, v12")
    e("v_and_b32 v13, 1, v2")
    e("v_lshl_add_u32 v12, v13, 4, v12")
    e("s_sub_u32 s89, s3, 4")
    e("s_lshl_b32 s75, s88, 5")
    e("s_lshl_b32 s76, s89, 18")
    e("s_add_u32 s75, s75, s76")
    e("s_lshl_b32 s76, s89, 10")
    e(f"s_add_u32 s76, s76, {L_WT}")
    for i in range(4):
        e("s_mov_b32 m0, s76")
        e("s_nop 0")
        e("buffer_load_dwordx4 v12, s[48:51], s75 offen lds")
        if i < 3:
            e("s_add_u32 s76, s76, 4096")
            e(f"s_add_u32 s75, s75, {128*8192}")
    load_weights(e)
    e(f"v_mov_b32 v14, {L_FL}")
    e("v_mov_b32 v15, 0")
    e("v_mov_b32 v16, 0")
    e("ds_write_b64 v14, v[15:16]") if False else None
    e("ds_write_b32 v14, v13")
    e("ds_write_b32 v14, v13 offset:4")
    e("s_waitcnt vmcnt(17)")
    e.label("L_ln")
    stamp(9, 4)
    unpack8(e, 8, 24)
    layernorm8(e, 24, 40, 92)
    for i in range(4):
        e(f"v_cvt_pk_bf16_f32 v{32+i}, v{24+2*i}, v{24+2*i+1}")
    e("s_lshl_b32 s75, s3, 10")
    e(f"s_add_u32 s75, s75, {L_LN}")
    e("v_add_u32 v6, s75, v5")
    e("ds_write_b128 v6, v[32:35]")
    e("s_cmp_lt_u32 s3, 4")
    e("s_cbranch_scc1 L_b1_s")
    e("s_waitcnt vmcnt(0)")
    e.label("L_b1_s")
    e("s_waitcnt lgkmcnt(0)")
    e("s_barrier")
    e("s_cmp_lt_u32 s3, 4")
    e("s_cbranch_scc1 L_s_pre")
    e("s_cmp_lg_u32 s3, 4")
    e("s_cbranch_scc1 L_table")
    stamp(6, 4)
    e("v_bfe_u32 v4, v2, 2, 2")
    e("v_and_b32 v5, 3, v2")
    e("v_lshl_add_u32 v6, v3, 3, v4")
    e("v_lshlrev_b32 v6, 5, v6")
    e("v_lshl_add_u32 v6, v5, 3, v6")
    e(f"v_add_u32 v6, {L_WT}, v6")
    e("v_and_b32 v7, 7, v2")
    e("v_lshlrev_b32 v7, 10, v7")
    e("v_lshl_add_u32 v7, v3, 4, v7")
    e(f"v_add_u32 v7, {L_LN}, v7")
    A0, B0 = 32, 112
    for hf in range(2):
        for s8 in range(8):
            s = hf * 8 + s8
            e(f"ds_read_b64_tr_b16 v[{A0+4*s}:{A0+4*s+1}], v6 offset:{s*1024}")
            e(f"ds_read_b64_tr_b16 v[{A0+4*s+2}:{A0+4*s+3}], v6 offset:{s*1024 + 128}")
            e(f"ds_read_b128 v[{B0+4*s8}:{B0+4*s8+3}], v7 offset:{s*64}")
            if s8 % 4 == 3:
                e("s_waitcnt lgkmcnt(0)")
        for s8 in range(8):
            s = hf * 8 + s8
            c = "0" if s == 0 else "v[8:11]"
            e(f"v_mfma_f32_16x16x32_bf16 v[8:11], v[{A0+4*s}:{A0+4*s+3}], v[{B0+4*s8}:{B0+4*s8+3}], {c}")
        if hf == 0:
            e("s_nop 7")
    e("s_memrealtime s[76:77]")
    e("v_lshlrev_b32 v5, 6, v22")
    e("v_lshl_add_u32 v5, v3, 4, v5")
    e("s_lshl_b32 s75, s88, 9")
    e(f"s_add_u32 s75, s75, {QG_OFF}")
    e("s_nop 4")
    e("s_waitcnt lgkmcnt(0)")
    e("v_cvt_pk_bf16_f32 v12, v8, v9")
    e("v_cvt_pk_bf16_f32 v13, v10, v11")
    e("v_mov_b32 v14, s76")
    e("v_mov_b32 v15, s77")
    e("v_cmp_gt_u32 vcc, 8, v22")
    e("s_and_saveexec_b64 s[82:83], vcc")
    e("buffer_store_dwordx4 v[12:15], v5, s[40:43], s75 offen sc1")
    e("s_mov_b64 exec, s[82:83]")
    e("v_lshrrev_b32 v5, 1, v2")
    e("v_lshlrev_b32 v5, 9, v5")
    e("v_and_b32 v6, 1, v2")
    e("v_lshl_add_u32 v5, v6, 5, v5")
    e("s_and_b32 s75, s72, 7")
    e("s_lshl_b32 s75, s75, 14")
    e("s_lshr_b32 s76, s72, 3")
    e("s_lshl_b32 s76, s76, 6")
    e("s_add_u32 s75, s75, s76")
    e(f"s_add_u32 s75, s75, {QG_OFF}")
    e("s_sub_u32 s30, s30, 2000")
    e("s_subb_u32 s31, s31, 0")
    e("v_mov_b32 v20, s31")
    e("v_mov_b32 v24, s88")
    e("v_mov_b32 v25, 1")
    e("s_and_b32 s76, s72, 7")
    e("s_lshl_b32 s76, s76, 5")
    e("v_and_b32 v26, 7, v2")
    e("v_lshlrev_b32 v26, 2, v26")
    e("v_add_u32 v26, s76, v26")
    e("s_mov_b32 s90, 0")
    e("s_mov_b32 s91, 0x01010101")
    e("s_mov_b32 s77, 0")
    e("s_mov_b32 s76, 0x100000")
    e.label("L_qpoll")
    e("buffer_load_dwordx4 v[8:11], v5, s[40:43], s75 offen sc1")
    e("buffer_load_dwordx4 v[16:19], v5, s[40:43], s75 offen offset:16 sc1")
    e("s_waitcnt vmcnt(0)")
    e("s_cmp_lg_u32 s77, 0")
    e("s_cbranch_scc1 L_qflagged")
    stamp(7, 4)
    e("s_mov_b32 s77, 1")
    e("s_mov_b64 exec, 1")
    e("global_store_byte v24, v25, s[26:27] sc1")
    e("s_mov_b64 exec, -1")
    e.label("L_qflagged")
    e("v_subrev_co_u32 v21, vcc, s30, v10")
    e("s_nop 1")
    e("v_subb_co_u32 v23, vcc, v11, v20, vcc")
    e("v_subrev_co_u32 v27, vcc, s30, v18")
    e("s_nop 1")
    e("v_subb_co_u32 v28, vcc, v19, v20, vcc")
    e("v_or_b32 v23, v23, v28")
    e("v_max_u32 v21, v21, v27")
    e("v_cmp_ne_u32 vcc, 0, v23")
    e("v_cmp_le_u32 s[82:83], s76, v21")
    e("s_or_b64 vcc, vcc, s[82:83]")
    e("s_cmp_eq_u64 vcc, 0")
    e("s_cbranch_scc1 L_qready")
    e("s_add_u32 s90, s90, 1")
    e(f"s_cmp_ge_u32 s90, {POLL_LIMIT}")
    e("s_cbranch_scc1 L_qready")
    e("s_and_b32 s82, s90, 63")
    e("s_cmp_lg_u32 s82, 0")
    e("s_cbranch_scc1 L_qsleep")
    e("global_load_dword v21, v26, s[26:27] sc1")
    e("s_waitcnt vmcnt(0)")
    e("v_cmp_ne_u32 vcc, s91, v21")
    e("s_nop 1")
    e("s_cmp_lg_u64 vcc, 0")
    e("s_cbranch_scc1 L_qsleep")
    e("buffer_load_dwordx4 v[8:11], v5, s[40:43], s75 offen sc1")
    e("buffer_load_dwordx4 v[16:19], v5, s[40:43], s75 offen offset:16 sc1")
    e("s_waitcnt vmcnt(0)")
    e("s_branch L_qready")
    e.label("L_qsleep")
    e(f"s_sleep {SLEEP}")
    e("s_branch L_qpoll")
    e.label("L_qready")
    stamp(8, 4)
    e("v_mov_b32 v10, v16")
    e("v_mov_b32 v11, v17")
    e("v_lshlrev_b32 v6, 4, v2")
    e(f"v_add_u32 v6, {L_Q}, v6")
    e("ds_write_b128 v6, v[8:11]")
    e("s_waitcnt lgkmcnt(0)")
    e(f"v_mov_b32 v14, {L_FL}")
    e("v_mov_b32 v15, 1")
    e("ds_write_b32 v14, v15")
    e("v_lshrrev_b32 v12, 2, v2")
    e("v_lshlrev_b32 v12, 10, v12")
    e("v_and_b32 v13, 3, v2")
    e("v_lshl_add_u32 v12, v13, 4, v12")
    e("s_lshr_b32 s75, s2, 4")
    e("s_lshl_b32 s75, s75, 18")
    e("s_and_b32 s76, s2, 7")
    e("s_lshl_b32 s76, s76, 7")
    e("s_add_u32 s75, s75, s76")
    e("s_bfe_u32 s76, s2, 0x10003")
    e("s_lshl_b32 s76, s76, 6")
    e("s_add_u32 s75, s75, s76")
    e(f"s_mov_b32 s76, {L_WT}")
    for it in range(16):
        e("s_mov_b32 m0, s76")
        e("s_nop 0")
        e("buffer_load_dwordx4 v12, s[84:87], s75 offen lds")
        if it < 15:
            e("s_add_u32 s76, s76, 1024")
            e("s_add_u32 s75, s75, 16384")
    e("s_branch L_table")
    e.label("L_s_pre")
    e("v_mov_b32 v23, 0")
    if PRE < 4:
        if PRE > 0:
            e(f"s_waitcnt vmcnt({PACE})")
        issue_units(PRE, PRE + 1)
    KA, VA = 24, 28
    for i in range(4):
        e(f"v_add_u32 v23, {4*i}, v3")
        e(f"v_xor_b32 v23, v23, v22")
        e(f"v_lshlrev_b32 v23, 4, v23")
        e(f"v_lshl_add_u32 v23, v22, 8, v23")
        e(f"v_add_u32 v{KA+i}, s74, v23")
    e("v_bfe_u32 v40, v2, 2, 2")
    e("v_lshl_add_u32 v40, v3, 2, v40")
    e("v_and_b32 v41, 7, v40")
    e("v_lshlrev_b32 v41, 1, v41")
    e("v_bfe_u32 v42, v2, 1, 1")
    e("v_and_b32 v43, 1, v2")
    e("v_lshlrev_b32 v44, 8, v40")
    e("v_lshl_add_u32 v44, v43, 3, v44")
    e("v_add_u32 v44, s74, v44")
    e("v_add_u32 v44, 16384, v44")
    for j in range(8):
        e(f"v_xor_b32 v23, {2*j}, v41")
        e(f"v_add_u32 v23, v23, v42")
        e(f"v_lshl_add_u32 v{VA+j}, v23, 4, v44")
    QF, KF, VF, S0, P0, T0, OA = 36, 52, 84, 116, 124, 128, 144
    MREF, MNEG, THR, LSUM = 136, 137, 138, 139
    BP0, BP1 = 140, 141
    for i in range(32):
        e(f"v_mov_b32 v{OA+i}, 0")
    for i in range(16):
        e(f"v_mov_b32 v{QF+i}, 0")
    e(f"v_mov_b32 v{MREF}, 0x{NEGBIG:08x}")
    e(f"v_mov_b32 v{THR}, 0x{NEGBIG:08x}")
    e(f"v_mov_b32 v{MNEG}, 0")
    e(f"v_mov_b32 v{LSUM}, 0")
    e(f"v_xor_b32 v{BP0}, 16, v2")
    e(f"v_lshlrev_b32 v{BP0}, 2, v{BP0}")
    e(f"v_xor_b32 v{BP1}, 32, v2")
    e(f"v_lshlrev_b32 v{BP1}, 2, v{BP1}")
    e("v_lshlrev_b32 v4, 8, v22")
    e("v_lshl_add_u32 v4, v3, 4, v4")
    e(f"v_add_u32 v4, {L_Q}, v4")
    e("v_mov_b32 v23, 0")
    for u in range(PRE + 1, 4):
        e(f"s_waitcnt vmcnt({PACE})")
        issue_units(u, u + 1)
    e(f"v_mov_b32 v5, {L_FL}")
    e("s_mov_b32 s90, 0")
    e.label("L_qwait")
    e("ds_read_b32 v6, v5")
    e("s_waitcnt lgkmcnt(0)")
    e("v_readfirstlane_b32 s75, v6")
    e("s_cmp_lg_u32 s75, 0")
    e("s_cbranch_scc1 L_qhere")
    e("s_add_u32 s90, s90, 1")
    e(f"s_cmp_ge_u32 s90, {POLL_LIMIT*20}")
    e("s_cbranch_scc1 L_qhere")
    e("s_sleep 1")
    e("s_branch L_qwait")
    e.label("L_qhere")
    stamp(1)
    e("v_cmp_gt_u32 vcc, 4, v22")
    e("s_and_saveexec_b64 s[82:83], vcc")
    for i in range(4):
        e(f"ds_read_b128 v[{QF+4*i}:{QF+4*i+3}], v4 offset:{64*i}")
    e("s_mov_b64 exec, s[82:83]")
    e("s_waitcnt lgkmcnt(0)")
    if STAMP:
        e("s_waitcnt vmcnt(0)")
    e(f"s_setprio {int(opt.get('prio', 2))}")
    e.label("L_loop")
    rares = []
    for slot in range(2):
        e("s_waitcnt vmcnt(25)")
        for u in range(2):
            for i in range(4):
                r = KF + (u * 4 + i) * 4
                e(f"ds_read_b128 v[{r}:{r+3}], v{KA+i} offset:{slot*8192 + u*4096}")
        e(f"v_readfirstlane_b32 s75, v{VC+slot}")
        e("s_add_u32 s75, s75, 64")
        e("s_min_u32 s75, s75, 256")
        e(f"s_lshl_b32 s{78+slot}, s75, 13")
        e("s_waitcnt lgkmcnt(0)")
        issue("K", slot, 78 + slot)
        claim(slot)
        for i in range(4):
            for u in range(2):
                r = KF + (u * 4 + i) * 4
                c = "0" if i == 0 else f"v[{S0+4*u}:{S0+4*u+3}]"
                e(f"v_mfma_f32_16x16x32_bf16 v[{S0+4*u}:{S0+4*u+3}], v[{r}:{r+3}], v[{QF+4*i}:{QF+4*i+3}], {c}")
        e("s_nop 7")
        for i in range(4):
            e(f"v_cvt_pk_bf16_f32 v{T0+i}, v{S0+2*i}, v{S0+2*i+1}")
        for i in range(4):
            e(f"v_lshlrev_b32 v{S0+2*i}, 16, v{T0+i}")
            e(f"v_and_b32 v{S0+2*i+1}, 0xffff0000, v{T0+i}")
        for i in range(8):
            e(f"v_mul_f32 v{S0+i}, s80, v{S0+i}")
        for i in range(4):
            e(f"v_cvt_pk_bf16_f32 v{T0+i}, v{S0+2*i}, v{S0+2*i+1}")
        for i in range(4):
            e(f"v_lshlrev_b32 v{S0+2*i}, 16, v{T0+i}")
            e(f"v_and_b32 v{S0+2*i+1}, 0xffff0000, v{T0+i}")
        e(f"v_max3_f32 v{T0}, v{S0}, v{S0+1}, v{S0+2}")
        e(f"v_max3_f32 v{T0+1}, v{S0+3}, v{S0+4}, v{S0+5}")
        e(f"v_max3_f32 v{T0}, v{T0}, v{S0+6}, v{S0+7}")
        e(f"v_max_f32 v{T0}, v{T0}, v{T0+1}")
        e(f"v_cmp_gt_f32 vcc, v{T0}, v{THR}")
        rl, bl = f"L_rare{slot}", f"L_back{slot}"
        e(f"s_cbranch_vccnz {rl}")
        e.label(bl)
        rares.append((rl, bl))
        for i in range(8):
            e(f"v_fma_f32 v{S0+i}, v{S0+i}, s81, v{MNEG}")
        for i in range(8):
            e(f"v_exp_f32 v{S0+i}, v{S0+i}")
        e("s_nop 0")
        for i in range(4):
            e(f"v_cvt_pk_bf16_f32 v{P0+i}, v{S0+2*i}, v{S0+2*i+1}")
        e(f"v_add_f32 v{T0}, v{S0}, v{S0+1}")
        e(f"v_add_f32 v{T0+1}, v{S0+2}, v{S0+3}")
        e(f"v_add_f32 v{T0+2}, v{S0+4}, v{S0+5}")
        e(f"v_add_f32 v{T0+3}, v{S0+6}, v{S0+7}")
        e(f"v_add_f32 v{T0}, v{T0}, v{T0+1}")
        e(f"v_add_f32 v{T0+2}, v{T0+2}, v{T0+3}")
        e(f"v_add_f32 v{T0}, v{T0}, v{T0+2}")
        e(f"v_add_f32 v{LSUM}, v{LSUM}, v{T0}")
        e("s_waitcnt vmcnt(26)")
        for j in range(8):
            for hb in range(2):
                r = VF + j * 4 + hb * 2
                e(f"ds_read_b64_tr_b16 v[{r}:{r+1}], v{VA+j} offset:{slot*8192 + hb*4096}")
        e("s_waitcnt lgkmcnt(0)")
        issue("V", slot, 78 + slot)
        for j in range(8):
            r = VF + j * 4
            e(f"v_mfma_f32_16x16x32_bf16 v[{OA+4*j}:{OA+4*j+3}], v[{r}:{r+3}], v[{P0}:{P0+3}], v[{OA+4*j}:{OA+4*j+3}]")
        e(f"s_cmp_ge_u32 s{78+(slot^1)}, 0x200000")
        if slot == 0:
            e("s_cbranch_scc1 L_loop_done")
        else:
            e("s_cbranch_scc0 L_loop")
    e.label("L_loop_done")
    stamp(14, 0)
    e("s_nop 7")
    e("s_nop 7")
    e("s_lshl_b32 s75, s3, 11")
    e(f"s_add_u32 s75, s75, {L_CB}")
    e("v_lshlrev_b32 v40, 9, v22")
    e("v_lshl_add_u32 v40, v3, 4, v40")
    e("v_add_u32 v40, s75, v40")
    e("s_lshl_b32 s76, s3, 2")
    e("v_lshlrev_b32 v41, 4, v22")
    e("v_add_u32 v41, s76, v41")
    e("v_lshlrev_b32 v42, 2, v41")
    e("v_lshl_add_u32 v42, v3, 2, v42")
    e(f"v_add_u32 v41, {L_ST}, v41")
    e(f"v_add_u32 v42, {L_ST+64}, v42")
    e("v_cmp_gt_u32 vcc, 4, v22")
    e("s_and_saveexec_b64 s[82:83], vcc")
    for j in range(8):
        e(f"ds_write_b128 v40, v[{OA+4*j}:{OA+4*j+3}] offset:{64*j}")
    e(f"ds_write_b32 v41, v{MREF}")
    e(f"ds_write_b32 v42, v{LSUM}")
    e("s_mov_b64 exec, s[82:83]")
    e("s_branch L_b3")

    e.label("L_table")
    e("v_mov_b32 v6, 0")
    prep_weights(e)
    e(f"v_mov_b32 v34, {L_FL+4}")
    e("v_mov_b32 v35, 1")
    ACC = 112
    stamp(13, 4)
    e.label("L_tloop")
    e("s_mov_b64 exec, 1")
    e("ds_add_rtn_u32 v33, v34, v35")
    e("s_mov_b64 exec, -1")
    e("s_waitcnt lgkmcnt(0)")
    e("v_readfirstlane_b32 s90, v33")
    e("s_cmp_ge_u32 s90, 11")
    e("s_cbranch_scc1 L_tdone")
    e("s_mul_i32 s75, s90, 3")
    e("s_lshl_b32 s20, s2, 5")
    for k in range(3):
        e(f"s_add_u32 s76, s75, {k}")
        e("s_add_u32 s77, s20, s76")
        e(f"s_mov_b32 s{22+k}, s77")
        e("s_and_b32 s4, s77, 4095")
        e("s_add_u32 s4, s4, 12800")
        e("s_lshr_b32 s5, s77, 12")
        e("s_lshl_b32 s5, s5, 15")
        e("s_or_b32 s77, s4, s5")
        if k == 2:
            e("s_add_u32 s4, s2, 8192")
            e("s_cmp_lt_u32 s76, 32")
            e("s_cselect_b32 s77, s77, 0")
            e(f"s_cselect_b32 s{22+k}, s{22+k}, s4")
        e(f"s_lshl_b32 s{22+k}, s{22+k}, 2")
        e(f"s_add_u32 s{22+k}, s{22+k}, {TB_OFF}")
        e("s_lshl_b32 s4, s77, 16")
        e("s_mov_b32 s5, s4")
        e(f"v_mov_b32 v{ACC+k}, 0")
        eval_F(e, ACC + k)
    finish_F(e, [ACC, ACC + 1, ACC + 2])
    e("s_mov_b32 exec_lo, 0")
    e("s_mov_b32 exec_hi, 0x80000000")
    for k in range(3):
        e(f"buffer_store_dword v{ACC+k}, v6, s[40:43], s{22+k} offen sc1")
    e("s_mov_b64 exec, -1")
    e("s_branch L_tloop")
    e.label("L_tdone")
    stamp(11, 4)
    e("s_cmp_lg_u32 s3, 7")
    e("s_cbranch_scc1 L_b3")
    e("v_lshlrev_b32 v16, 2, v2")
    e("s_mov_b32 s90, 0")
    e("s_mov_b32 s91, 0x01010101")
    e.label("L_gpoll")
    e("global_load_dword v17, v16, s[26:27] sc1")
    e("s_waitcnt vmcnt(0)")
    e("v_cmp_ne_u32 vcc, s91, v17")
    e("s_nop 1")
    e("s_cmp_eq_u64 vcc, 0")
    e("s_cbranch_scc1 L_b3")
    e("s_add_u32 s90, s90, 1")
    e(f"s_cmp_ge_u32 s90, {POLL_LIMIT}")
    e("s_cbranch_scc1 L_b3")
    e("s_sleep 100")
    e("s_branch L_gpoll")
    e.label("L_b3")
    e("s_waitcnt vmcnt(0) lgkmcnt(0)")
    e("s_barrier")
    e.label("L_tail")
    stamp(2)
    e("s_cmp_ge_u32 s3, 2")
    e("s_cbranch_scc1 L_t2")
    e("v_lshrrev_b32 v4, 5, v0")
    e("v_and_b32 v5, 31, v0")
    e("v_lshlrev_b32 v6, 4, v4")
    e(f"v_add_u32 v6, {L_ST}, v6")
    e("ds_read_b128 v[44:47], v6")
    e("v_lshlrev_b32 v6, 6, v4")
    e(f"v_add_u32 v6, {L_ST+64}, v6")
    for w in range(4):
        e(f"ds_read_b128 v[{48+4*w}:{48+4*w+3}], v6 offset:{16*w}")
    e("v_lshlrev_b32 v6, 9, v4")
    e("v_lshl_add_u32 v6, v5, 4, v6")
    e(f"v_add_u32 v6, {L_CB}, v6")
    for w in range(4):
        e(f"ds_read_b128 v[{64+4*w}:{64+4*w+3}], v6 offset:{2048*w}")
    e("s_waitcnt lgkmcnt(0)")
    e("v_max3_f32 v80, v44, v45, v46")
    e("v_max_f32 v80, v80, v47")
    for w in range(4):
        e(f"v_sub_f32 v{44+w}, v{44+w}, v80")
        e(f"v_mul_f32 v{44+w}, s81, v{44+w}")
        e(f"v_exp_f32 v{44+w}, v{44+w}")
    for w in range(4):
        e(f"v_add_f32 v{48+4*w}, v{48+4*w}, v{49+4*w}")
        e(f"v_add_f32 v{50+4*w}, v{50+4*w}, v{51+4*w}")
        e(f"v_add_f32 v{48+4*w}, v{48+4*w}, v{50+4*w}")
    e("v_mul_f32 v81, v44, v48")
    for k in range(4):
        e(f"v_mul_f32 v{84+k}, v44, v{64+k}")
    for w in range(1, 4):
        e(f"v_fmac_f32 v81, v{44+w}, v{48+4*w}")
        for k in range(4):
            e(f"v_fmac_f32 v{84+k}, v{44+w}, v{64+4*w+k}")
    e("v_lshlrev_b32 v6, 11, v4")
    e("v_lshl_add_u32 v6, v5, 4, v6")
    e("s_lshl_b32 s75, s72, 13")
    e("s_lshl_b32 s76, s73, 9")
    e("s_add_u32 s75, s75, s76")
    e(f"s_add_u32 s75, s75, {PO_OFF}")
    e("buffer_store_dwordx4 v[84:87], v6, s[40:43], s75 offen sc1")
    e("v_lshlrev_b32 v6, 5, v4")
    e("s_lshl_b32 s75, s72, 7")
    e("s_lshl_b32 s76, s73, 3")
    e("s_add_u32 s75, s75, s76")
    e(f"s_add_u32 s75, s75, {PML_OFF}")
    e("v_cmp_eq_u32 vcc, 0, v5")
    e("s_and_saveexec_b64 s[82:83], vcc")
    e("buffer_store_dwordx2 v[80:81], v6, s[40:43], s75 offen sc1")
    e("s_mov_b64 exec, s[82:83]")
    e.label("L_t2")
    e("v_lshrrev_b32 v4, 5, v2")
    e("v_and_b32 v5, 31, v2")
    e("s_lshr_b32 s75, s2, 4")
    e("s_lshl_b32 s75, s75, 1")
    e("s_lshl_b32 s76, s3, 5")
    e("s_add_u32 s75, s75, s76")
    e("v_lshlrev_b32 v6, 5, v4")
    e("s_lshl_b32 s76, s75, 5")
    e(f"s_add_u32 s76, s76, {PML_OFF}")
    e("v_lshlrev_b32 v7, 11, v4")
    e("v_lshl_add_u32 v7, v5, 4, v7")
    e("s_lshl_b32 s77, s75, 11")
    e(f"s_add_u32 s77, s77, {PO_OFF}")
    e("s_mov_b32 s90, 0")
    e.label("L_mlpoll")
    e("buffer_load_dwordx4 v[16:19], v6, s[40:43], s76 offen sc1")
    e("buffer_load_dwordx4 v[20:23], v6, s[40:43], s76 offen offset:16 sc1")
    for s in range(4):
        e(f"buffer_load_dwordx4 v[{24+4*s}:{24+4*s+3}], v7, s[40:43], s77 offen offset:{512*s} sc1")
    e("s_waitcnt vmcnt(0)")
    e("v_max_u32 v40, v16, v17")
    for k in range(18, 40, 2):
        e(f"v_max3_u32 v40, v40, v{k}, v{k+1}")
    e("v_cmp_eq_u32 vcc, -1, v40")
    e("s_nop 1")
    e("s_cmp_eq_u64 vcc, 0")
    e("s_cbranch_scc1 L_mlready")
    e("s_add_u32 s90, s90, 1")
    e(f"s_cmp_ge_u32 s90, {POLL_LIMIT}")
    e("s_cbranch_scc1 L_mlready")
    e(f"s_sleep {SLEEP2}")
    e("s_branch L_mlpoll")
    e.label("L_mlready")
    stamp(10, 0)
    e("v_max3_f32 v60, v16, v18, v20")
    e("v_max_f32 v60, v60, v22")
    for s in range(4):
        e(f"v_sub_f32 v{44+s}, v{16+2*s}, v60")
        e(f"v_mul_f32 v{44+s}, s81, v{44+s}")
        e(f"v_exp_f32 v{44+s}, v{44+s}")
    e("s_nop 0")
    e("v_mul_f32 v61, v44, v17")
    for s in range(1, 4):
        e(f"v_fmac_f32 v61, v{44+s}, v{17+2*s}")
    e("v_rcp_f32 v61, v61")
    e("s_nop 0")
    for s in range(4):
        e(f"v_mul_f32 v{44+s}, v{44+s}, v61")
    e.label("L_poready")
    for k in range(4):
        e(f"v_mul_f32 v{48+k}, v44, v{24+k}")
        for s in range(1, 4):
            e(f"v_fmac_f32 v{48+k}, v{44+s}, v{24+4*s+k}")
    e("v_cvt_pk_bf16_f32 v52, v48, v49")
    e("v_cvt_pk_bf16_f32 v53, v50, v51")
    e("v_lshlrev_b32 v6, 3, v0")
    e(f"v_add_u32 v6, {L_OA}, v6")
    e("ds_write_b64 v6, v[52:53]")
    e("s_waitcnt lgkmcnt(0)")
    e("s_barrier")
    stamp(3)
    e("s_cmp_ge_u32 s3, 2")
    e("s_cbranch_scc1 L_t4")
    e("v_and_b32 v22, 15, v2")
    e("v_bfe_u32 v4, v2, 2, 2")
    e("v_and_b32 v5, 3, v2")
    e("v_lshl_add_u32 v6, v3, 3, v4")
    e("v_lshlrev_b32 v6, 6, v6")
    e("v_lshl_add_u32 v6, v5, 3, v6")
    e("s_lshl_b32 s75, s3, 5")
    e(f"s_add_u32 s75, s75, {L_WT}")
    e("v_add_u32 v6, s75, v6")
    e("v_and_b32 v7, 7, v2")
    e("v_lshlrev_b32 v7, 9, v7")
    e("v_lshl_add_u32 v7, v3, 4, v7")
    e(f"v_add_u32 v7, {L_OA}, v7")
    A0, B0 = 32, 64
    for s in range(8):
        e(f"ds_read_b64_tr_b16 v[{A0+4*s}:{A0+4*s+1}], v6 offset:{s*2048}")
        e(f"ds_read_b64_tr_b16 v[{A0+4*s+2}:{A0+4*s+3}], v6 offset:{s*2048 + 256}")
        e(f"ds_read_b128 v[{B0+4*s}:{B0+4*s+3}], v7 offset:{s*64}")
        if s % 4 == 3:
            e("s_waitcnt lgkmcnt(0)")
    for s in range(8):
        c = "0" if s == 0 else "v[8:11]"
        e(f"v_mfma_f32_16x16x32_bf16 v[8:11], v[{A0+4*s}:{A0+4*s+3}], v[{B0+4*s}:{B0+4*s+3}], {c}")
    e("v_lshlrev_b32 v5, 15, v22")
    e("v_lshl_add_u32 v5, v3, 4, v5")
    e("s_lshr_b32 s75, s2, 4")
    e("s_lshl_b32 s75, s75, 11")
    e("s_and_b32 s76, s2, 7")
    e("s_lshl_b32 s76, s76, 8")
    e("s_add_u32 s75, s75, s76")
    e("s_bfe_u32 s76, s2, 0x10003")
    e("s_lshl_b32 s76, s76, 7")
    e("s_add_u32 s75, s75, s76")
    e("s_lshl_b32 s76, s3, 6")
    e("s_add_u32 s75, s75, s76")
    e(f"s_add_u32 s75, s75, {WP_OFF}")
    e("v_cmp_gt_u32 vcc, 8, v22")
    e("s_and_saveexec_b64 s[82:83], vcc")
    e("buffer_store_dwordx4 v[8:11], v5, s[40:43], s75 offen sc1")
    e("s_mov_b64 exec, s[82:83]")
    e.label("L_t4")
    e("s_and_b32 s75, s2, 31")
    e("s_cmp_lg_u32 s75, 0")
    e("s_cbranch_scc1 L_exit")
    e("s_lshr_b32 s77, s2, 5")
    e("s_lshl_b32 s75, s77, 10")
    e("v_lshlrev_b32 v4, 1, v0")
    e("buffer_load_ushort v44, v4, s[44:47], s75 offen")
    e("s_lshl_b32 s75, s77, 15")
    e(f"s_add_u32 s75, s75, {WP_OFF}")
    e("s_mov_b32 s90, 0")
    e("v_lshlrev_b32 v3, 2, v0")
    e.label("L_wppoll")
    for i in range(16):
        e(f"s_add_u32 s76, s75, {2048*i}")
        e(f"buffer_load_dword v{16+i}, v3, s[40:43], s76 offen sc1")
    e("s_waitcnt vmcnt(0)")
    e("v_max_u32 v40, v16, v17")
    for k in range(18, 32, 2):
        e(f"v_max3_u32 v40, v40, v{k}, v{k+1}")
    e("v_cmp_eq_u32 vcc, -1, v40")
    e("s_nop 1")
    e("s_cmp_eq_u64 vcc, 0")
    e("s_cbranch_scc1 L_wpok")
    e("s_add_u32 s90, s90, 1")
    e(f"s_cmp_ge_u32 s90, {POLL_LIMIT}")
    e("s_cbranch_scc1 L_wpok")
    e(f"s_sleep {SLEEP3}")
    e("s_branch L_wppoll")
    e.label("L_wpok")
    for i in range(1, 16):
        e(f"v_add_f32 v16, v16, v{16+i}")
    bf16r(e, 16)
    e("v_lshlrev_b32 v44, 16, v44")
    e("v_add_f32 v16, v16, v44")
    bf16r(e, 16)
    e(f"v_add_u32 v4, {L_H}, v3")
    e("ds_write_b32 v4, v16")
    e("s_waitcnt lgkmcnt(0)")
    e("s_barrier")
    stamp(4)
    e("s_cmp_lg_u32 s3, 0")
    e("s_cbranch_scc1 L_exit")
    e("v_lshlrev_b32 v7, 5, v2")
    e(f"v_add_u32 v7, {L_H}, v7")
    e("ds_read_b128 v[16:19], v7")
    e("ds_read_b128 v[20:23], v7 offset:16")
    e("s_waitcnt lgkmcnt(0)")
    for k in range(8):
        e(f"v_mov_b32 v{200+k}, v{16+k}")
    layernorm8(e, 16, 64, 92)
    layernorm8(e, 16, 64, 92)
    stamp(12, 0)
    e(f"s_mov_b32 s76, {TB_OFF}")
    e("s_mov_b32 s75, 4096")
    e("s_mov_b64 s[20:21], 0")
    e("v_mov_b32 v34, 8192")
    for k in range(8):
        e(f"v_bfe_u32 v24, v{16+k}, 16, 15")
        e(f"v_lshrrev_b32 v32, 31, v{16+k}")
        e("v_subrev_u32 v25, 12800, v24")
        e("v_cmp_eq_u32 vcc, 0, v24")
        e("v_cmp_le_u32 s[82:83], s75, v25")
        if opt.get("tlo"):
            e(f"s_mov_b32 s86, {opt['tlo']}")
            e(f"v_cmp_gt_u32 s[84:85], s86, v24")
            e("s_or_b64 s[82:83], s[82:83], s[84:85]")
        e("v_mad_u32_u24 v33, v32, s75, v25")
        e("s_nop 1")
        e("v_cndmask_b32 v33, v33, v34, s[82:83]")
        e("s_andn2_b64 s[82:83], s[82:83], vcc")
        e("s_or_b64 s[20:21], s[20:21], s[82:83]")
        e("v_lshlrev_b32 v33, 2, v33")
        e(f"buffer_load_dword v{208+k}, v33, s[40:43], s76 offen sc1")
    e("s_waitcnt vmcnt(0)")
    e("s_cmp_eq_u64 s[20:21], 0")
    e("s_cbranch_scc1 L_fast")
    e("v_lshlrev_b32 v7, 5, v2")
    e(f"v_add_u32 v8, {L_CB}, v7")
    e(f"v_add_u32 v9, {L_CB+2048}, v7")
    e("ds_write_b128 v8, v[16:19]")
    e("ds_write_b128 v8, v[20:23] offset:16")
    e("ds_write_b128 v9, v[208:211]")
    e("ds_write_b128 v9, v[212:215] offset:16")
    load_weights(e)
    e("s_waitcnt vmcnt(0) lgkmcnt(0)")
    prep_weights(e)
    e("s_mov_b32 s20, 0")
    e.label("L_sloop")
    e("s_lshl_b32 s21, s20, 2")
    e(f"s_add_u32 s21, s21, {L_CB}")
    e("v_mov_b32 v10, s21")
    e("ds_read_b32 v11, v10")
    e("s_waitcnt lgkmcnt(0)")
    e("v_readfirstlane_b32 s4, v11")
    e("s_bfe_u32 s21, s4, 0xf0010")
    e("s_cmp_eq_u32 s21, 0")
    e("s_cbranch_scc1 L_snext")
    if opt.get("tlo"):
        e(f"s_cmp_ge_u32 s21, {opt['tlo']}")
        e("s_cbranch_scc1 L_snext")
    else:
        e("s_sub_u32 s21, s21, 12800")
        e("s_cmp_lt_u32 s21, 4096")
        e("s_cbranch_scc1 L_snext")
    e("s_mov_b32 s5, s4")
    e("v_mov_b32 v112, 0")
    eval_F(e, 112)
    finish_F(e, [112])
    e("s_mov_b32 exec_lo, 0")
    e("s_mov_b32 exec_hi, 0x80000000")
    e("ds_write_b32 v10, v112 offset:2048")
    e("s_mov_b64 exec, -1")
    e.label("L_snext")
    e("s_add_u32 s20, s20, 1")
    e("s_cmp_lt_u32 s20, 512")
    e("s_cbranch_scc1 L_sloop")
    e("s_waitcnt lgkmcnt(0)")
    e("ds_read_b128 v[208:211], v9")
    e("ds_read_b128 v[212:215], v9 offset:16")
    e("s_waitcnt lgkmcnt(0)")
    e.label("L_fast")
    for k in range(8):
        e(f"v_add_f32 v{208+k}, v{208+k}, v{200+k}")
    for k in range(4):
        e(f"v_cvt_pk_bf16_f32 v{64+k}, v{208+2*k}, v{209+2*k}")
    e("v_lshlrev_b32 v8, 4, v2")
    e("s_lshl_b32 s75, s77, 10")
    e("buffer_store_dwordx4 v[64:67], v8, s[68:71], s75 offen")
    stamp(5)
    e.label("L_exit")
    e("s_endpgm")
    for rl, bl in rares:
        e.label(rl)
        e(f"ds_bpermute_b32 v{T0+1}, v{BP0}, v{T0}")
        e("s_waitcnt lgkmcnt(0)")
        e(f"v_max_f32 v{T0}, v{T0}, v{T0+1}")
        e(f"ds_bpermute_b32 v{T0+1}, v{BP1}, v{T0}")
        e("s_waitcnt lgkmcnt(0)")
        e(f"v_max3_f32 v{T0}, v{T0}, v{T0+1}, v{MREF}")
        e(f"v_sub_f32 v{T0+1}, v{MREF}, v{T0}")
        e(f"v_mul_f32 v{T0+1}, s81, v{T0+1}")
        e(f"v_exp_f32 v{T0+1}, v{T0+1}")
        e("s_nop 0")
        for i in range(32):
            e(f"v_mul_f32 v{OA+i}, v{OA+i}, v{T0+1}")
        e(f"v_mul_f32 v{LSUM}, v{LSUM}, v{T0+1}")
        e(f"v_mov_b32 v{MREF}, v{T0}")
        e(f"v_mul_f32 v{MNEG}, s81, v{T0}")
        e(f"v_sub_f32 v{MNEG}, 0, v{MNEG}")
        e(f"v_add_f32 v{THR}, 0x40a00000, v{T0}")
        e(f"s_branch {bl}")


def main():
    opt = {}
    for a in sys.argv[2:]:
        k, v = a.split("=")
        opt[k] = {"0": False, "1": True}.get(v, v)
    e = E()
    e.raw(HEADER.rstrip("\n"))
    e.raw(f"; @launch grid=(256,1,1) block=(512,1,1) lds={LDS_TOTAL}")
    e.raw('.amdgcn_target "amdgcn-amd-amdhsa--gfx950"')
    e.raw(".text")
    gen(e, opt)
    e.raw('.section .rodata,"a"')
    e.raw(".p2align 6")
    e.raw(f""".amdhsa_kernel {KNAME}
  .amdhsa_next_free_vgpr 256
  .amdhsa_next_free_sgpr 102
  .amdhsa_accum_offset 256
  .amdhsa_group_segment_fixed_size 0
  .amdhsa_kernarg_size 104
  .amdhsa_user_sgpr_count 2
  .amdhsa_user_sgpr_kernarg_segment_ptr 1
  .amdhsa_system_sgpr_workgroup_id_x 1
.end_amdhsa_kernel""")
    open(sys.argv[1], "w").write(e.text())


main()
```

```python
import sys, struct, math

KNAME = "sequential_preLN__gqa_block_cached__mixer_token_mlp__decode_kernel"
HEADER = open("sequential_preLN__gqa_block_cached__mixer_token_mlp__decode.s.ref").read().split("; Override launch")[0]

Q_OFF = 0x0
PO_OFF = 0x10000
PML_OFF = 0x90000
WP_OFF = 0xA0000
ST_OFF = 0xE0000
CNT_OFF = 0xF0000
QG_OFF = 0x100000
TB_OFF = 0x120000
WS_USED = 0x148000

LOG2E = 0x3FB8AA3B
SCALE = 0x3DB504F3
NEGBIG = 0xF149F2CA

X = 131072
L_LN = X
L_CB = X
L_WT = X + 8192
L_Q = X + 24576
L_ST = X + 25600
L_OA = X + 26624
L_H = X + 30720
L_FL = X + 25600 + 512
LDS_TOTAL = 163840

POLL_LIMIT = 400000


class E:
    def __init__(self):
        self.lines = []
        self.lbl = 0

    def __call__(self, s):
        for ln in s.strip("\n").split("\n"):
            self.lines.append("    " + ln.strip())

    def label(self, name):
        self.lines.append(name + ":")

    def raw(self, s):
        self.lines.append(s)

    def newlabel(self, base):
        self.lbl += 1
        return f"L_{base}_{self.lbl}"

    def text(self):
        return "\n".join(self.lines) + "\n"


def srd(e, d, base_lo, nbytes):
    e(f"s_mov_b32 s{d}, s{base_lo}")
    e(f"s_mov_b32 s{d+1}, s{base_lo+1}")
    e(f"s_mov_b32 s{d+2}, {nbytes}")
    e(f"s_mov_b32 s{d+3}, 0x00020000")


def wave_allreduce_add(e, v, t, s0):
    e(f"s_nop 1")
    e(f"v_add_f32_dpp v{v}, v{v}, v{v} quad_perm:[1,0,3,2] row_mask:0xf bank_mask:0xf")
    e(f"s_nop 1")
    e(f"v_add_f32_dpp v{v}, v{v}, v{v} quad_perm:[2,3,0,1] row_mask:0xf bank_mask:0xf")
    e(f"s_nop 1")
    e(f"v_add_f32_dpp v{v}, v{v}, v{v} row_half_mirror row_mask:0xf bank_mask:0xf")
    e(f"s_nop 1")
    e(f"v_add_f32_dpp v{v}, v{v}, v{v} row_mirror row_mask:0xf bank_mask:0xf")
    e(f"s_nop 1")
    e(f"v_readlane_b32 s{s0}, v{v}, 0")
    e(f"v_readlane_b32 s{s0+1}, v{v}, 16")
    e(f"v_readlane_b32 s{s0+2}, v{v}, 32")
    e(f"v_readlane_b32 s{s0+3}, v{v}, 48")
    e(f"s_nop 1")
    e(f"v_mov_b32 v{t}, s{s0}")
    e(f"v_add_f32 v{t}, s{s0+1}, v{t}")
    e(f"v_add_f32 v{v}, s{s0+2}, v{t}")
    e(f"v_add_f32 v{v}, s{s0+3}, v{v}")


def bf16r(e, v):
    e(f"v_cvt_pk_bf16_f32 v{v}, v{v}, v{v}")
    e(f"v_lshlrev_b32 v{v}, 16, v{v}")


def layernorm8(e, x, t, s0):
    e(f"v_add_f32 v{t}, v{x}, v{x+1}")
    for i in range(2, 8):
        e(f"v_add_f32 v{t}, v{t}, v{x+i}")
    wave_allreduce_add(e, t, t + 1, s0)
    e(f"v_mul_f32 v{t}, 0x3b000000, v{t}")
    for i in range(8):
        e(f"v_sub_f32 v{t+2+i}, v{x+i}, v{t}")
    e(f"v_mul_f32 v{t+10}, v{t+2}, v{t+2}")
    for i in range(1, 8):
        e(f"v_fmac_f32 v{t+10}, v{t+2+i}, v{t+2+i}")
    wave_allreduce_add(e, t + 10, t + 1, s0)
    e(f"v_mul_f32 v{t+10}, 0x3b000000, v{t+10}")
    bf16r(e, t + 10)
    e(f"v_add_f32 v{t+10}, 0x3727c5ac, v{t+10}")
    bf16r(e, t + 10)
    e(f"v_sqrt_f32 v{t+10}, v{t+10}")
    e(f"s_nop 0")
    bf16r(e, t + 10)
    e(f"v_rcp_f32 v{t+11}, v{t+10}")
    bf16r(e, t)
    for i in range(8):
        e(f"v_sub_f32 v{x+i}, v{x+i}, v{t}")
    for i in range(0, 8, 2):
        e(f"v_cvt_pk_bf16_f32 v{t+2}, v{x+i}, v{x+i+1}")
        e(f"v_lshlrev_b32 v{x+i}, 16, v{t+2}")
        e(f"v_and_b32 v{x+i+1}, 0xffff0000, v{t+2}")
    for i in range(8):
        e(f"v_mul_f32 v{t+2}, v{x+i}, v{t+11}")
        e(f"v_fma_f32 v{t+3}, -v{t+2}, v{t+10}, v{x+i}")
        e(f"v_fma_f32 v{x+i}, v{t+3}, v{t+11}, v{t+2}")
    for i in range(0, 8, 2):
        e(f"v_cvt_pk_bf16_f32 v{t+2}, v{x+i}, v{x+i+1}")
        e(f"v_lshlrev_b32 v{x+i}, 16, v{t+2}")
        e(f"v_and_b32 v{x+i+1}, 0xffff0000, v{t+2}")


def unpack8(e, src, dst):
    for i in range(4):
        e(f"v_lshlrev_b32 v{dst+2*i}, 16, v{src+i}")
        e(f"v_and_b32 v{dst+2*i+1}, 0xffff0000, v{src+i}")


W1P, B1P, W2P = 40, 68, 96
TMP = 116


def eval_F(e, acc):
    for half in range(2):
        steps = []
        for jj in range(7):
            j = half * 7 + jj
            a = TMP + 6 * jj
            q = a + 2
            c = a + 4
            steps.append([
                f"v_pk_mul_f32 v[{a}:{a+1}], v[{W1P+2*j}:{W1P+2*j+1}], s[4:5]",
                f"v_cvt_pk_bf16_f32 v{c}, v{a}, v{a+1}",
                f"v_lshlrev_b32 v{a}, 16, v{c}",
                f"v_and_b32 v{a+1}, 0xffff0000, v{c}",
                f"v_pk_add_f32 v[{a}:{a+1}], v[{a}:{a+1}], v[{B1P+2*j}:{B1P+2*j+1}]",
                f"v_cvt_pk_bf16_f32 v{c}, v{a}, v{a+1}",
                f"v_lshlrev_b32 v{a}, 16, v{c}",
                f"v_and_b32 v{a+1}, 0xffff0000, v{c}",
                f"v_pk_mul_f32 v[{q}:{q+1}], v[{a}:{a+1}], v[{a}:{a+1}]",
                f"v_pk_fma_f32 v[{q}:{q+1}], v[{q}:{q+1}], s[14:15], v[38:39]",
                f"v_pk_mul_f32 v[{q}:{q+1}], v[{q}:{q+1}], v[{a}:{a+1}]",
                f"v_exp_f32 v{q}, v{q}",
                f"v_exp_f32 v{q+1}, v{q+1}",
                f"v_pk_add_f32 v[{q}:{q+1}], v[{q}:{q+1}], 1.0 op_sel_hi:[1,0]",
                f"v_rcp_f32 v{q}, v{q}",
                f"v_rcp_f32 v{q+1}, v{q+1}",
                f"v_pk_mul_f32 v[{q}:{q+1}], v[{q}:{q+1}], v[{a}:{a+1}]",
                f"v_cvt_pk_bf16_f32 v{c}, v{q}, v{q+1}",
                f"v_dot2_f32_bf16 v{acc}, v{c}, v{W2P+j}, v{acc}",
            ])
        for i in range(len(steps[0])):
            for jj in range(7):
                e(steps[jj][i])


def load_weights(e):
    e("v_mul_u32_u24 v13, 56, v2")
    for base, sr in ((160, 52), (176, 56), (96, 60)):
        e(f"buffer_load_dwordx4 v[{base}:{base+3}], v13, s[{sr}:{sr+3}], 0 offen")
        e(f"buffer_load_dwordx4 v[{base+4}:{base+7}], v13, s[{sr}:{sr+3}], 0 offen offset:16")
        e(f"buffer_load_dwordx4 v[{base+8}:{base+11}], v13, s[{sr}:{sr+3}], 0 offen offset:32")
        e(f"buffer_load_dwordx2 v[{base+12}:{base+13}], v13, s[{sr}:{sr+3}], 0 offen offset:48")
    e("v_mov_b32 v13, 0")
    e("buffer_load_ushort v192, v13, s[64:67], 0 offen")


def prep_weights(e):
    k0 = -2.0 * math.sqrt(2.0 / math.pi) * math.log2(math.e)
    k1 = k0 * 0.044715
    f2u = lambda f: struct.unpack("<I", struct.pack("<f", f))[0]
    e(f"s_mov_b32 s12, 0x{f2u(k0):08x}")
    e(f"s_mov_b32 s14, 0x{f2u(k1):08x}")
    e(f"s_mov_b32 s15, 0x{f2u(k1):08x}")
    e("v_mov_b32 v38, s12")
    e("v_mov_b32 v39, s12")
    for j in range(14):
        e(f"v_and_b32 v{W1P+2*j+1}, 0xffff0000, v{160+j}")
        e(f"v_lshlrev_b32 v{W1P+2*j}, 16, v{160+j}")
        e(f"v_and_b32 v{B1P+2*j+1}, 0xffff0000, v{176+j}")
        e(f"v_lshlrev_b32 v{B1P+2*j}, 16, v{176+j}")
    e("v_lshlrev_b32 v36, 16, v192")


def finish_F(e, accs):
    e("s_nop 2")
    for mod in ["quad_perm:[1,0,3,2] row_mask:0xf", "quad_perm:[2,3,0,1] row_mask:0xf",
                "row_half_mirror row_mask:0xf", "row_mirror row_mask:0xf",
                "row_bcast:15 row_mask:0xa", "row_bcast:31 row_mask:0xc"]:
        e("s_nop 1")
        for a in accs:
            e(f"v_add_f32_dpp v{a}, v{a}, v{a} {mod} bank_mask:0xf")
    for a in accs:
        bf16r(e, a)
        e(f"v_add_f32 v{a}, v{a}, v36")
        bf16r(e, a)


def gen(e, opt):
    NT = opt.get("nt", "nt")
    STAMP = opt.get("stamp", False)
    SLEEP = int(opt.get("sleep", 1))
    SLEEP2 = int(opt.get("sleep2", 4))
    SLEEP3 = int(opt.get("sleep3", 1))

    def stamp(k, wave=0):
        if not STAMP:
            return
        lab = e.newlabel("st")
        e(f"s_cmp_lg_u32 s3, {wave}")
        e(f"s_cbranch_scc1 {lab}")
        e("s_memrealtime s[92:93]")
        e("s_waitcnt lgkmcnt(0)")
        e("s_mov_b64 s[94:95], exec")
        e("s_mov_b64 exec, 1")
        e("v_mov_b32 v250, s92")
        e("v_mov_b32 v251, 0")
        e("s_lshl_b32 s96, s2, 6")
        e(f"s_add_u32 s96, s96, {ST_OFF + 4*k}")
        e("buffer_store_dword v250, v251, s[40:43], s96 offen")
        e("s_mov_b64 exec, s[94:95]")
        e.label(lab)

    e.raw(f".globl {KNAME}")
    e.raw(".p2align 8")
    e.raw(f".type {KNAME},@function")
    e.label(KNAME)
    e("s_cmp_ge_u32 s2, 256")
    e("s_cbranch_scc1 L_exit")
    e("s_load_dwordx8 s[4:11], s[0:1], 0")
    e("s_load_dwordx2 s[12:13], s[0:1], 32")
    e("s_load_dwordx8 s[16:23], s[0:1], 48")
    e("s_load_dwordx4 s[24:27], s[0:1], 80")
    e("s_load_dwordx2 s[28:29], s[0:1], 96")
    e("s_memrealtime s[30:31]")
    e("v_lshrrev_b32 v1, 6, v0")
    e("v_and_b32 v2, 63, v0")
    e("v_lshrrev_b32 v3, 4, v2")
    e("v_readfirstlane_b32 s3, v1")
    for r in range(4, 36):
        e(f"v_mov_b32 v{r}, 0")
    e("s_mov_b32 s88, 0")
    e("s_mov_b32 s89, 0")
    e("s_mov_b32 s74, 0")
    e("s_mov_b32 s78, 0")
    e("s_mov_b32 s79, 0")
    e("v_and_b32 v22, 15, v2")
    e("s_lshr_b32 s72, s2, 2")
    e("s_and_b32 s73, s2, 3")
    e("s_lshl_b32 s75, s72, 21")
    e("s_waitcnt lgkmcnt(0)")
    e("s_add_u32 s32, s6, s75")
    e("s_addc_u32 s33, s7, 0")
    e("s_mov_b32 s34, 0x200000")
    e("s_mov_b32 s35, 0x00020000")
    e("s_add_u32 s36, s8, s75")
    e("s_addc_u32 s37, s9, 0")
    e("s_mov_b32 s38, 0x200000")
    e("s_mov_b32 s39, 0x00020000")
    srd(e, 40, 28, WS_USED)
    srd(e, 44, 4, 8192)
    srd(e, 48, 10, 4 << 20)
    srd(e, 52, 16, 3584)
    srd(e, 56, 18, 3584)
    srd(e, 60, 20, 3584)
    srd(e, 64, 22, 2)
    srd(e, 68, 24, 8192)
    srd(e, 84, 12, 4 << 20)
    e(f"s_mov_b32 s80, 0x{SCALE:08x}")
    e(f"s_mov_b32 s81, 0x{LOG2E:08x}")
    stamp(0)
    e("s_lshl_b32 s75, s3, 10")
    e("v_lshlrev_b32 v5, 4, v2")
    e("buffer_load_dwordx4 v[8:11], v5, s[44:47], s75 offen")
    e("s_cmp_ge_u32 s3, 4")
    e("s_cbranch_scc1 L_helper_h1")

    VK, VV = 12, 16
    for i in range(4):
        e(f"v_add_u32 v23, {4*i}, v3")
        e(f"v_xor_b32 v23, v23, v22")
        e(f"v_lshlrev_b32 v23, 4, v23")
        e(f"v_lshl_add_u32 v{VK+i}, v3, 8, v23")
    for i in range(2):
        e(f"v_add_u32 v23, {4*i}, v3")
        e(f"v_lshlrev_b32 v23, 1, v23")
        e(f"v_xor_b32 v23, v23, v22")
        e(f"v_lshlrev_b32 v23, 4, v23")
        e(f"v_lshl_add_u32 v{VV+i}, v3, 8, v23")
    e("s_lshl_b32 s74, s3, 15")
    VC = 18
    e("s_lshl_b32 s75, s72, 8")
    e(f"s_add_u32 s75, s75, {CNT_OFF}")
    e("v_mov_b32 v20, s75")
    e("v_mov_b32 v21, 1")

    def issue(kind, slot, soff):
        srdn = 32 if kind == "K" else 36
        ldsoff = (0 if kind == "K" else 16384) + slot * 8192
        for half in range(2):
            e(f"s_add_u32 s76, s74, {ldsoff + half*4096}")
            e(f"s_mov_b32 m0, s76")
            if half == 1:
                e(f"s_add_u32 s77, s{soff}, 4096")
            else:
                e(f"s_mov_b32 s77, s{soff}")
            for i in range(4):
                vo = (VK + i) if kind == "K" else (VV + (i & 1))
                e(f"buffer_load_dwordx4 v{vo}, s[{srdn}:{srdn+3}], s77 offen offset:{1024*i} {NT} lds")

    def claim(slot):
        e("s_mov_b64 exec, 1")
        e(f"global_atomic_add v{VC+slot}, v20, v21, s[28:29] sc0 sc1")
        e("s_mov_b64 exec, -1")

    e("s_lshl_b32 s75, s73, 2")
    e("s_add_u32 s75, s75, s3")
    e("s_lshl_b32 s78, s75, 15")
    e("s_add_u32 s79, s78, 8192")
    e("s_lshl_b32 s75, s75, 2")
    e("s_sub_u32 s76, s75, 62")
    e(f"v_mov_b32 v{VC}, s76")
    e("s_sub_u32 s76, s75, 61")
    e(f"v_mov_b32 v{VC+1}, s76")
    e("v_mov_b32 v23, 0")
    PRE = int(opt.get("pre", 4))
    units = [("K", 0, 78), ("V", 0, 78), ("K", 1, 79), ("V", 1, 79)]

    def issue_units(lo, hi):
        for u in range(lo, hi):
            issue(*units[u])
            if units[u][0] == "K":
                e("buffer_load_dword v239, v23, s[44:47], 0 offen")
    PACE = int(opt.get("pace", 6))
    PRE = int(opt.get("pre", 0))
    issue_units(0, PRE)
    e(f"s_waitcnt vmcnt({PRE*8 + (PRE+1)//2})")
    e("s_branch L_ln")

    e.label("L_helper_h1")
    e("s_cmp_lg_u32 s3, 5")
    e("s_cbranch_scc1 L_h1_noclear")
    for i in range(4):
        e(f"v_mov_b32 v{16+i}, -1")
    e("v_lshlrev_b32 v12, 11, v3")
    e("v_lshl_add_u32 v12, v22, 5, v12")
    e("s_lshl_b32 s75, s72, 13")
    e("s_lshl_b32 s76, s73, 9")
    e("s_add_u32 s75, s75, s76")
    e(f"s_add_u32 s75, s75, {PO_OFF}")
    e("buffer_store_dwordx4 v[16:19], v12, s[40:43], s75 offen sc1")
    e("buffer_store_dwordx4 v[16:19], v12, s[40:43], s75 offen offset:16 sc1")
    e("v_lshrrev_b32 v12, 3, v2")
    e("v_lshlrev_b32 v12, 15, v12")
    e("v_and_b32 v13, 7, v2")
    e("v_lshl_add_u32 v12, v13, 4, v12")
    e("s_lshr_b32 s75, s2, 4")
    e("s_lshl_b32 s75, s75, 11")
    e("s_and_b32 s76, s2, 7")
    e("s_lshl_b32 s76, s76, 8")
    e("s_add_u32 s75, s75, s76")
    e("s_bfe_u32 s76, s2, 0x10003")
    e("s_lshl_b32 s76, s76, 7")
    e("s_add_u32 s75, s75, s76")
    e(f"s_add_u32 s75, s75, {WP_OFF}")
    e("buffer_store_dwordx4 v[16:19], v12, s[40:43], s75 offen sc1")
    e("v_lshlrev_b32 v12, 5, v2")
    e("s_lshl_b32 s75, s72, 7")
    e("s_lshl_b32 s76, s73, 3")
    e("s_add_u32 s75, s75, s76")
    e(f"s_add_u32 s75, s75, {PML_OFF}")
    e("s_mov_b64 exec, 15")
    e("buffer_store_dwordx2 v[16:17], v12, s[40:43], s75 offen sc1")
    e("s_mov_b64 exec, -1")
    e("s_and_b32 s75, s2, 31")
    e("s_cmp_ge_u32 s75, 8")
    e("s_cbranch_scc1 L_h1_cleared")
    e("s_lshl_b32 s75, s75, 3")
    e("s_lshr_b32 s76, s2, 5")
    e("s_add_u32 s75, s75, s76")
    e("s_lshl_b32 s75, s75, 8")
    e(f"s_add_u32 s75, s75, {CNT_OFF}")
    e("v_mov_b32 v12, 0")
    e("s_mov_b64 exec, 1")
    e("buffer_store_dword v12, v12, s[40:43], s75 offen sc1")
    e("s_mov_b64 exec, -1")
    e.label("L_h1_cleared")
    e("s_waitcnt vmcnt(0)")
    e.label("L_h1_noclear")
    e("s_lshr_b32 s75, s2, 5")
    e("s_lshl_b32 s75, s75, 3")
    e("s_and_b32 s76, s2, 7")
    e("s_add_u32 s75, s75, s76")
    e("s_lshl_b32 s75, s75, 2")
    e("s_lshr_b32 s76, s2, 3")
    e("s_and_b32 s76, s76, 3")
    e("s_add_u32 s88, s75, s76")
    e("v_lshrrev_b32 v12, 1, v2")
    e("v_lshlrev_b32 v12, 13, v12")
    e("v_and_b32 v13, 1, v2")
    e("v_lshl_add_u32 v12, v13, 4, v12")
    e("s_sub_u32 s89, s3, 4")
    e("s_lshl_b32 s75, s88, 5")
    e("s_lshl_b32 s76, s89, 18")
    e("s_add_u32 s75, s75, s76")
    e("s_lshl_b32 s76, s89, 10")
    e(f"s_add_u32 s76, s76, {L_WT}")
    for i in range(4):
        e("s_mov_b32 m0, s76")
        e("s_nop 0")
        e("buffer_load_dwordx4 v12, s[48:51], s75 offen lds")
        if i < 3:
            e("s_add_u32 s76, s76, 4096")
            e(f"s_add_u32 s75, s75, {128*8192}")
    load_weights(e)
    e(f"v_mov_b32 v14, {L_FL}")
    e("v_mov_b32 v15, 0")
    e("v_mov_b32 v16, 0")
    e("ds_write_b64 v14, v[15:16]") if False else None
    e("ds_write_b32 v14, v13")
    e("ds_write_b32 v14, v13 offset:4")
    e("s_waitcnt vmcnt(17)")
    e.label("L_ln")
    stamp(9, 4)
    unpack8(e, 8, 24)
    layernorm8(e, 24, 40, 92)
    for i in range(4):
        e(f"v_cvt_pk_bf16_f32 v{32+i}, v{24+2*i}, v{24+2*i+1}")
    e("s_lshl_b32 s75, s3, 10")
    e(f"s_add_u32 s75, s75, {L_LN}")
    e("v_add_u32 v6, s75, v5")
    e("ds_write_b128 v6, v[32:35]")
    e("s_cmp_lt_u32 s3, 4")
    e("s_cbranch_scc1 L_b1_s")
    e("s_waitcnt vmcnt(0)")
    e.label("L_b1_s")
    e("s_waitcnt lgkmcnt(0)")
    e("s_barrier")
    e("s_cmp_lt_u32 s3, 4")
    e("s_cbranch_scc1 L_s_pre")
    e("s_cmp_lg_u32 s3, 4")
    e("s_cbranch_scc1 L_table")
    stamp(6, 4)
    e("v_bfe_u32 v4, v2, 2, 2")
    e("v_and_b32 v5, 3, v2")
    e("v_lshl_add_u32 v6, v3, 3, v4")
    e("v_lshlrev_b32 v6, 5, v6")
    e("v_lshl_add_u32 v6, v5, 3, v6")
    e(f"v_add_u32 v6, {L_WT}, v6")
    e("v_and_b32 v7, 7, v2")
    e("v_lshlrev_b32 v7, 10, v7")
    e("v_lshl_add_u32 v7, v3, 4, v7")
    e(f"v_add_u32 v7, {L_LN}, v7")
    A0, B0 = 32, 112
    for hf in range(2):
        for s8 in range(8):
            s = hf * 8 + s8
            e(f"ds_read_b64_tr_b16 v[{A0+4*s}:{A0+4*s+1}], v6 offset:{s*1024}")
            e(f"ds_read_b64_tr_b16 v[{A0+4*s+2}:{A0+4*s+3}], v6 offset:{s*1024 + 128}")
            e(f"ds_read_b128 v[{B0+4*s8}:{B0+4*s8+3}], v7 offset:{s*64}")
            if s8 % 4 == 3:
                e("s_waitcnt lgkmcnt(0)")
        for s8 in range(8):
            s = hf * 8 + s8
            c = "0" if s == 0 else "v[8:11]"
            e(f"v_mfma_f32_16x16x32_bf16 v[8:11], v[{A0+4*s}:{A0+4*s+3}], v[{B0+4*s8}:{B0+4*s8+3}], {c}")
        if hf == 0:
            e("s_nop 7")
    e("s_memrealtime s[76:77]")
    e("v_lshlrev_b32 v5, 6, v22")
    e("v_lshl_add_u32 v5, v3, 4, v5")
    e("s_lshl_b32 s75, s88, 9")
    e(f"s_add_u32 s75, s75, {QG_OFF}")
    e("s_nop 4")
    e("s_waitcnt lgkmcnt(0)")
    e("v_cvt_pk_bf16_f32 v12, v8, v9")
    e("v_cvt_pk_bf16_f32 v13, v10, v11")
    e("v_mov_b32 v14, s76")
    e("v_mov_b32 v15, s77")
    e("v_cmp_gt_u32 vcc, 8, v22")
    e("s_and_saveexec_b64 s[82:83], vcc")
    e("buffer_store_dwordx4 v[12:15], v5, s[40:43], s75 offen sc1")
    e("s_mov_b64 exec, s[82:83]")
    e("v_lshrrev_b32 v5, 1, v2")
    e("v_lshlrev_b32 v5, 9, v5")
    e("v_and_b32 v6, 1, v2")
    e("v_lshl_add_u32 v5, v6, 5, v5")
    e("s_and_b32 s75, s72, 7")
    e("s_lshl_b32 s75, s75, 14")
    e("s_lshr_b32 s76, s72, 3")
    e("s_lshl_b32 s76, s76, 6")
    e("s_add_u32 s75, s75, s76")
    e(f"s_add_u32 s75, s75, {QG_OFF}")
    e("s_sub_u32 s30, s30, 2000")
    e("s_subb_u32 s31, s31, 0")
    e("v_mov_b32 v20, s31")
    e("v_mov_b32 v24, s88")
    e("v_mov_b32 v25, 1")
    e("s_and_b32 s76, s72, 7")
    e("s_lshl_b32 s76, s76, 5")
    e("v_and_b32 v26, 7, v2")
    e("v_lshlrev_b32 v26, 2, v26")
    e("v_add_u32 v26, s76, v26")
    e("s_mov_b32 s90, 0")
    e("s_mov_b32 s91, 0x01010101")
    e("s_mov_b32 s77, 0")
    e("s_mov_b32 s76, 0x100000")
    e.label("L_qpoll")
    e("buffer_load_dwordx4 v[8:11], v5, s[40:43], s75 offen sc1")
    e("buffer_load_dwordx4 v[16:19], v5, s[40:43], s75 offen offset:16 sc1")
    e("s_waitcnt vmcnt(0)")
    e("s_cmp_lg_u32 s77, 0")
    e("s_cbranch_scc1 L_qflagged")
    stamp(7, 4)
    e("s_mov_b32 s77, 1")
    e("s_mov_b64 exec, 1")
    e("global_store_byte v24, v25, s[26:27] sc1")
    e("s_mov_b64 exec, -1")
    e.label("L_qflagged")
    e("v_subrev_co_u32 v21, vcc, s30, v10")
    e("s_nop 1")
    e("v_subb_co_u32 v23, vcc, v11, v20, vcc")
    e("v_subrev_co_u32 v27, vcc, s30, v18")
    e("s_nop 1")
    e("v_subb_co_u32 v28, vcc, v19, v20, vcc")
    e("v_or_b32 v23, v23, v28")
    e("v_max_u32 v21, v21, v27")
    e("v_cmp_ne_u32 vcc, 0, v23")
    e("v_cmp_le_u32 s[82:83], s76, v21")
    e("s_or_b64 vcc, vcc, s[82:83]")
    e("s_cmp_eq_u64 vcc, 0")
    e("s_cbranch_scc1 L_qready")
    e("s_add_u32 s90, s90, 1")
    e(f"s_cmp_ge_u32 s90, {POLL_LIMIT}")
    e("s_cbranch_scc1 L_qready")
    e("s_and_b32 s82, s90, 63")
    e("s_cmp_lg_u32 s82, 0")
    e("s_cbranch_scc1 L_qsleep")
    e("global_load_dword v21, v26, s[26:27] sc1")
    e("s_waitcnt vmcnt(0)")
    e("v_cmp_ne_u32 vcc, s91, v21")
    e("s_nop 1")
    e("s_cmp_lg_u64 vcc, 0")
    e("s_cbranch_scc1 L_qsleep")
    e("buffer_load_dwordx4 v[8:11], v5, s[40:43], s75 offen sc1")
    e("buffer_load_dwordx4 v[16:19], v5, s[40:43], s75 offen offset:16 sc1")
    e("s_waitcnt vmcnt(0)")
    e("s_branch L_qready")
    e.label("L_qsleep")
    e(f"s_sleep {SLEEP}")
    e("s_branch L_qpoll")
    e.label("L_qready")
    stamp(8, 4)
    e("v_mov_b32 v10, v16")
    e("v_mov_b32 v11, v17")
    e("v_lshlrev_b32 v6, 4, v2")
    e(f"v_add_u32 v6, {L_Q}, v6")
    e("ds_write_b128 v6, v[8:11]")
    e("s_waitcnt lgkmcnt(0)")
    e(f"v_mov_b32 v14, {L_FL}")
    e("v_mov_b32 v15, 1")
    e("ds_write_b32 v14, v15")
    e("v_lshrrev_b32 v12, 2, v2")
    e("v_lshlrev_b32 v12, 10, v12")
    e("v_and_b32 v13, 3, v2")
    e("v_lshl_add_u32 v12, v13, 4, v12")
    e("s_lshr_b32 s75, s2, 4")
    e("s_lshl_b32 s75, s75, 18")
    e("s_and_b32 s76, s2, 7")
    e("s_lshl_b32 s76, s76, 7")
    e("s_add_u32 s75, s75, s76")
    e("s_bfe_u32 s76, s2, 0x10003")
    e("s_lshl_b32 s76, s76, 6")
    e("s_add_u32 s75, s75, s76")
    e(f"s_mov_b32 s76, {L_WT}")
    for it in range(16):
        e("s_mov_b32 m0, s76")
        e("s_nop 0")
        e("buffer_load_dwordx4 v12, s[84:87], s75 offen lds")
        if it < 15:
            e("s_add_u32 s76, s76, 1024")
            e("s_add_u32 s75, s75, 16384")
    e("s_branch L_table")
    e.label("L_s_pre")
    e("v_mov_b32 v23, 0")
    if PRE < 4:
        if PRE > 0:
            e(f"s_waitcnt vmcnt({PACE})")
        issue_units(PRE, PRE + 1)
    KA, VA = 24, 28
    for i in range(4):
        e(f"v_add_u32 v23, {4*i}, v3")
        e(f"v_xor_b32 v23, v23, v22")
        e(f"v_lshlrev_b32 v23, 4, v23")
        e(f"v_lshl_add_u32 v23, v22, 8, v23")
        e(f"v_add_u32 v{KA+i}, s74, v23")
    e("v_bfe_u32 v40, v2, 2, 2")
    e("v_lshl_add_u32 v40, v3, 2, v40")
    e("v_and_b32 v41, 7, v40")
    e("v_lshlrev_b32 v41, 1, v41")
    e("v_bfe_u32 v42, v2, 1, 1")
    e("v_and_b32 v43, 1, v2")
    e("v_lshlrev_b32 v44, 8, v40")
    e("v_lshl_add_u32 v44, v43, 3, v44")
    e("v_add_u32 v44, s74, v44")
    e("v_add_u32 v44, 16384, v44")
    for j in range(8):
        e(f"v_xor_b32 v23, {2*j}, v41")
        e(f"v_add_u32 v23, v23, v42")
        e(f"v_lshl_add_u32 v{VA+j}, v23, 4, v44")
    QF, KF, VF, S0, P0, T0, OA = 36, 52, 84, 116, 124, 128, 144
    MREF, MNEG, THR, LSUM = 136, 137, 138, 139
    BP0, BP1 = 140, 141
    for i in range(32):
        e(f"v_mov_b32 v{OA+i}, 0")
    for i in range(16):
        e(f"v_mov_b32 v{QF+i}, 0")
    e(f"v_mov_b32 v{MREF}, 0x{NEGBIG:08x}")
    e(f"v_mov_b32 v{THR}, 0x{NEGBIG:08x}")
    e(f"v_mov_b32 v{MNEG}, 0")
    e(f"v_mov_b32 v{LSUM}, 0")
    e(f"v_xor_b32 v{BP0}, 16, v2")
    e(f"v_lshlrev_b32 v{BP0}, 2, v{BP0}")
    e(f"v_xor_b32 v{BP1}, 32, v2")
    e(f"v_lshlrev_b32 v{BP1}, 2, v{BP1}")
    e("v_lshlrev_b32 v4, 8, v22")
    e("v_lshl_add_u32 v4, v3, 4, v4")
    e(f"v_add_u32 v4, {L_Q}, v4")
    e("v_mov_b32 v23, 0")
    for u in range(PRE + 1, 4):
        e(f"s_waitcnt vmcnt({PACE})")
        issue_units(u, u + 1)
    e(f"v_mov_b32 v5, {L_FL}")
    e("s_mov_b32 s90, 0")
    e.label("L_qwait")
    e("ds_read_b32 v6, v5")
    e("s_waitcnt lgkmcnt(0)")
    e("v_readfirstlane_b32 s75, v6")
    e("s_cmp_lg_u32 s75, 0")
    e("s_cbranch_scc1 L_qhere")
    e("s_add_u32 s90, s90, 1")
    e(f"s_cmp_ge_u32 s90, {POLL_LIMIT*20}")
    e("s_cbranch_scc1 L_qhere")
    e("s_sleep 1")
    e("s_branch L_qwait")
    e.label("L_qhere")
    stamp(1)
    e("v_cmp_gt_u32 vcc, 4, v22")
    e("s_and_saveexec_b64 s[82:83], vcc")
    for i in range(4):
        e(f"ds_read_b128 v[{QF+4*i}:{QF+4*i+3}], v4 offset:{64*i}")
    e("s_mov_b64 exec, s[82:83]")
    e("s_waitcnt lgkmcnt(0)")
    if STAMP:
        e("s_waitcnt vmcnt(0)")
    e(f"s_setprio {int(opt.get('prio', 2))}")
    e.label("L_loop")
    rares = []
    for slot in range(2):
        e("s_waitcnt vmcnt(25)")
        for u in range(2):
            for i in range(4):
                r = KF + (u * 4 + i) * 4
                e(f"ds_read_b128 v[{r}:{r+3}], v{KA+i} offset:{slot*8192 + u*4096}")
        e(f"v_readfirstlane_b32 s75, v{VC+slot}")
        e("s_add_u32 s75, s75, 64")
        e("s_min_u32 s75, s75, 256")
        e(f"s_lshl_b32 s{78+slot}, s75, 13")
        e("s_waitcnt lgkmcnt(0)")
        issue("K", slot, 78 + slot)
        claim(slot)
        for i in range(4):
            for u in range(2):
                r = KF + (u * 4 + i) * 4
                c = "0" if i == 0 else f"v[{S0+4*u}:{S0+4*u+3}]"
                e(f"v_mfma_f32_16x16x32_bf16 v[{S0+4*u}:{S0+4*u+3}], v[{r}:{r+3}], v[{QF+4*i}:{QF+4*i+3}], {c}")
        e("s_nop 7")
        for i in range(4):
            e(f"v_cvt_pk_bf16_f32 v{T0+i}, v{S0+2*i}, v{S0+2*i+1}")
        for i in range(4):
            e(f"v_lshlrev_b32 v{S0+2*i}, 16, v{T0+i}")
            e(f"v_and_b32 v{S0+2*i+1}, 0xffff0000, v{T0+i}")
        for i in range(8):
            e(f"v_mul_f32 v{S0+i}, s80, v{S0+i}")
        for i in range(4):
            e(f"v_cvt_pk_bf16_f32 v{T0+i}, v{S0+2*i}, v{S0+2*i+1}")
        for i in range(4):
            e(f"v_lshlrev_b32 v{S0+2*i}, 16, v{T0+i}")
            e(f"v_and_b32 v{S0+2*i+1}, 0xffff0000, v{T0+i}")
        e(f"v_max3_f32 v{T0}, v{S0}, v{S0+1}, v{S0+2}")
        e(f"v_max3_f32 v{T0+1}, v{S0+3}, v{S0+4}, v{S0+5}")
        e(f"v_max3_f32 v{T0}, v{T0}, v{S0+6}, v{S0+7}")
        e(f"v_max_f32 v{T0}, v{T0}, v{T0+1}")
        e(f"v_cmp_gt_f32 vcc, v{T0}, v{THR}")
        rl, bl = f"L_rare{slot}", f"L_back{slot}"
        e(f"s_cbranch_vccnz {rl}")
        e.label(bl)
        rares.append((rl, bl))
        for i in range(8):
            e(f"v_fma_f32 v{S0+i}, v{S0+i}, s81, v{MNEG}")
        for i in range(8):
            e(f"v_exp_f32 v{S0+i}, v{S0+i}")
        e("s_nop 0")
        for i in range(4):
            e(f"v_cvt_pk_bf16_f32 v{P0+i}, v{S0+2*i}, v{S0+2*i+1}")
        e(f"v_add_f32 v{T0}, v{S0}, v{S0+1}")
        e(f"v_add_f32 v{T0+1}, v{S0+2}, v{S0+3}")
        e(f"v_add_f32 v{T0+2}, v{S0+4}, v{S0+5}")
        e(f"v_add_f32 v{T0+3}, v{S0+6}, v{S0+7}")
        e(f"v_add_f32 v{T0}, v{T0}, v{T0+1}")
        e(f"v_add_f32 v{T0+2}, v{T0+2}, v{T0+3}")
        e(f"v_add_f32 v{T0}, v{T0}, v{T0+2}")
        e(f"v_add_f32 v{LSUM}, v{LSUM}, v{T0}")
        e("s_waitcnt vmcnt(26)")
        for j in range(8):
            for hb in range(2):
                r = VF + j * 4 + hb * 2
                e(f"ds_read_b64_tr_b16 v[{r}:{r+1}], v{VA+j} offset:{slot*8192 + hb*4096}")
        e("s_waitcnt lgkmcnt(0)")
        issue("V", slot, 78 + slot)
        for j in range(8):
            r = VF + j * 4
            e(f"v_mfma_f32_16x16x32_bf16 v[{OA+4*j}:{OA+4*j+3}], v[{r}:{r+3}], v[{P0}:{P0+3}], v[{OA+4*j}:{OA+4*j+3}]")
        e(f"s_cmp_ge_u32 s{78+(slot^1)}, 0x200000")
        if slot == 0:
            e("s_cbranch_scc1 L_loop_done")
        else:
            e("s_cbranch_scc0 L_loop")
    e.label("L_loop_done")
    stamp(14, 0)
    e("s_nop 7")
    e("s_nop 7")
    e("s_lshl_b32 s75, s3, 11")
    e(f"s_add_u32 s75, s75, {L_CB}")
    e("v_lshlrev_b32 v40, 9, v22")
    e("v_lshl_add_u32 v40, v3, 4, v40")
    e("v_add_u32 v40, s75, v40")
    e("s_lshl_b32 s76, s3, 2")
    e("v_lshlrev_b32 v41, 4, v22")
    e("v_add_u32 v41, s76, v41")
    e("v_lshlrev_b32 v42, 2, v41")
    e("v_lshl_add_u32 v42, v3, 2, v42")
    e(f"v_add_u32 v41, {L_ST}, v41")
    e(f"v_add_u32 v42, {L_ST+64}, v42")
    e("v_cmp_gt_u32 vcc, 4, v22")
    e("s_and_saveexec_b64 s[82:83], vcc")
    for j in range(8):
        e(f"ds_write_b128 v40, v[{OA+4*j}:{OA+4*j+3}] offset:{64*j}")
    e(f"ds_write_b32 v41, v{MREF}")
    e(f"ds_write_b32 v42, v{LSUM}")
    e("s_mov_b64 exec, s[82:83]")
    e("s_branch L_b3")

    e.label("L_table")
    e("v_mov_b32 v6, 0")
    prep_weights(e)
    e(f"v_mov_b32 v34, {L_FL+4}")
    e("v_mov_b32 v35, 1")
    ACC = 112
    stamp(13, 4)
    e.label("L_tloop")
    e("s_mov_b64 exec, 1")
    e("ds_add_rtn_u32 v33, v34, v35")
    e("s_mov_b64 exec, -1")
    e("s_waitcnt lgkmcnt(0)")
    e("v_readfirstlane_b32 s90, v33")
    e("s_cmp_ge_u32 s90, 11")
    e("s_cbranch_scc1 L_tdone")
    e("s_mul_i32 s75, s90, 3")
    e("s_lshl_b32 s20, s2, 5")
    for k in range(3):
        e(f"s_add_u32 s76, s75, {k}")
        e("s_add_u32 s77, s20, s76")
        e(f"s_mov_b32 s{22+k}, s77")
        e("s_and_b32 s4, s77, 4095")
        e("s_add_u32 s4, s4, 12800")
        e("s_lshr_b32 s5, s77, 12")
        e("s_lshl_b32 s5, s5, 15")
        e("s_or_b32 s77, s4, s5")
        if k == 2:
            e("s_add_u32 s4, s2, 8192")
            e("s_cmp_lt_u32 s76, 32")
            e("s_cselect_b32 s77, s77, 0")
            e(f"s_cselect_b32 s{22+k}, s{22+k}, s4")
        e(f"s_lshl_b32 s{22+k}, s{22+k}, 2")
        e(f"s_add_u32 s{22+k}, s{22+k}, {TB_OFF}")
        e("s_lshl_b32 s4, s77, 16")
        e("s_mov_b32 s5, s4")
        e(f"v_mov_b32 v{ACC+k}, 0")
        eval_F(e, ACC + k)
    finish_F(e, [ACC, ACC + 1, ACC + 2])
    e("s_mov_b32 exec_lo, 0")
    e("s_mov_b32 exec_hi, 0x80000000")
    for k in range(3):
        e(f"buffer_store_dword v{ACC+k}, v6, s[40:43], s{22+k} offen sc1")
    e("s_mov_b64 exec, -1")
    e("s_branch L_tloop")
    e.label("L_tdone")
    stamp(11, 4)
    e("s_cmp_lg_u32 s3, 7")
    e("s_cbranch_scc1 L_b3")
    e("v_lshlrev_b32 v16, 2, v2")
    e("s_mov_b32 s90, 0")
    e("s_mov_b32 s91, 0x01010101")
    e.label("L_gpoll")
    e("global_load_dword v17, v16, s[26:27] sc1")
    e("s_waitcnt vmcnt(0)")
    e("v_cmp_ne_u32 vcc, s91, v17")
    e("s_nop 1")
    e("s_cmp_eq_u64 vcc, 0")
    e("s_cbranch_scc1 L_b3")
    e("s_add_u32 s90, s90, 1")
    e(f"s_cmp_ge_u32 s90, {POLL_LIMIT}")
    e("s_cbranch_scc1 L_b3")
    e("s_sleep 100")
    e("s_branch L_gpoll")
    e.label("L_b3")
    e("s_waitcnt vmcnt(0) lgkmcnt(0)")
    e("s_barrier")
    e.label("L_tail")
    stamp(2)
    e("s_cmp_ge_u32 s3, 2")
    e("s_cbranch_scc1 L_t2")
    e("v_lshrrev_b32 v4, 5, v0")
    e("v_and_b32 v5, 31, v0")
    e("v_lshlrev_b32 v6, 4, v4")
    e(f"v_add_u32 v6, {L_ST}, v6")
    e("ds_read_b128 v[44:47], v6")
    e("v_lshlrev_b32 v6, 6, v4")
    e(f"v_add_u32 v6, {L_ST+64}, v6")
    for w in range(4):
        e(f"ds_read_b128 v[{48+4*w}:{48+4*w+3}], v6 offset:{16*w}")
    e("v_lshlrev_b32 v6, 9, v4")
    e("v_lshl_add_u32 v6, v5, 4, v6")
    e(f"v_add_u32 v6, {L_CB}, v6")
    for w in range(4):
        e(f"ds_read_b128 v[{64+4*w}:{64+4*w+3}], v6 offset:{2048*w}")
    e("s_waitcnt lgkmcnt(0)")
    e("v_max3_f32 v80, v44, v45, v46")
    e("v_max_f32 v80, v80, v47")
    for w in range(4):
        e(f"v_sub_f32 v{44+w}, v{44+w}, v80")
        e(f"v_mul_f32 v{44+w}, s81, v{44+w}")
        e(f"v_exp_f32 v{44+w}, v{44+w}")
    for w in range(4):
        e(f"v_add_f32 v{48+4*w}, v{48+4*w}, v{49+4*w}")
        e(f"v_add_f32 v{50+4*w}, v{50+4*w}, v{51+4*w}")
        e(f"v_add_f32 v{48+4*w}, v{48+4*w}, v{50+4*w}")
    e("v_mul_f32 v81, v44, v48")
    for k in range(4):
        e(f"v_mul_f32 v{84+k}, v44, v{64+k}")
    for w in range(1, 4):
        e(f"v_fmac_f32 v81, v{44+w}, v{48+4*w}")
        for k in range(4):
            e(f"v_fmac_f32 v{84+k}, v{44+w}, v{64+4*w+k}")
    e("v_lshlrev_b32 v6, 11, v4")
    e("v_lshl_add_u32 v6, v5, 4, v6")
    e("s_lshl_b32 s75, s72, 13")
    e("s_lshl_b32 s76, s73, 9")
    e("s_add_u32 s75, s75, s76")
    e(f"s_add_u32 s75, s75, {PO_OFF}")
    e("buffer_store_dwordx4 v[84:87], v6, s[40:43], s75 offen sc1")
    e("v_lshlrev_b32 v6, 5, v4")
    e("s_lshl_b32 s75, s72, 7")
    e("s_lshl_b32 s76, s73, 3")
    e("s_add_u32 s75, s75, s76")
    e(f"s_add_u32 s75, s75, {PML_OFF}")
    e("v_cmp_eq_u32 vcc, 0, v5")
    e("s_and_saveexec_b64 s[82:83], vcc")
    e("buffer_store_dwordx2 v[80:81], v6, s[40:43], s75 offen sc1")
    e("s_mov_b64 exec, s[82:83]")
    e.label("L_t2")
    e("v_lshrrev_b32 v4, 5, v2")
    e("v_and_b32 v5, 31, v2")
    e("s_lshr_b32 s75, s2, 4")
    e("s_lshl_b32 s75, s75, 1")
    e("s_lshl_b32 s76, s3, 5")
    e("s_add_u32 s75, s75, s76")
    e("v_lshlrev_b32 v6, 5, v4")
    e("s_lshl_b32 s76, s75, 5")
    e(f"s_add_u32 s76, s76, {PML_OFF}")
    e("v_lshlrev_b32 v7, 11, v4")
    e("v_lshl_add_u32 v7, v5, 4, v7")
    e("s_lshl_b32 s77, s75, 11")
    e(f"s_add_u32 s77, s77, {PO_OFF}")
    e("s_mov_b32 s90, 0")
    e.label("L_mlpoll")
    e("buffer_load_dwordx4 v[16:19], v6, s[40:43], s76 offen sc1")
    e("buffer_load_dwordx4 v[20:23], v6, s[40:43], s76 offen offset:16 sc1")
    for s in range(4):
        e(f"buffer_load_dwordx4 v[{24+4*s}:{24+4*s+3}], v7, s[40:43], s77 offen offset:{512*s} sc1")
    e("s_waitcnt vmcnt(0)")
    e("v_max_u32 v40, v16, v17")
    for k in range(18, 40, 2):
        e(f"v_max3_u32 v40, v40, v{k}, v{k+1}")
    e("v_cmp_eq_u32 vcc, -1, v40")
    e("s_nop 1")
    e("s_cmp_eq_u64 vcc, 0")
    e("s_cbranch_scc1 L_mlready")
    e("s_add_u32 s90, s90, 1")
    e(f"s_cmp_ge_u32 s90, {POLL_LIMIT}")
    e("s_cbranch_scc1 L_mlready")
    e(f"s_sleep {SLEEP2}")
    e("s_branch L_mlpoll")
    e.label("L_mlready")
    stamp(10, 0)
    e("v_max3_f32 v60, v16, v18, v20")
    e("v_max_f32 v60, v60, v22")
    for s in range(4):
        e(f"v_sub_f32 v{44+s}, v{16+2*s}, v60")
        e(f"v_mul_f32 v{44+s}, s81, v{44+s}")
        e(f"v_exp_f32 v{44+s}, v{44+s}")
    e("s_nop 0")
    e("v_mul_f32 v61, v44, v17")
    for s in range(1, 4):
        e(f"v_fmac_f32 v61, v{44+s}, v{17+2*s}")
    e("v_rcp_f32 v61, v61")
    e("s_nop 0")
    for s in range(4):
        e(f"v_mul_f32 v{44+s}, v{44+s}, v61")
    e.label("L_poready")
    for k in range(4):
        e(f"v_mul_f32 v{48+k}, v44, v{24+k}")
        for s in range(1, 4):
            e(f"v_fmac_f32 v{48+k}, v{44+s}, v{24+4*s+k}")
    e("v_cvt_pk_bf16_f32 v52, v48, v49")
    e("v_cvt_pk_bf16_f32 v53, v50, v51")
    e("v_lshlrev_b32 v6, 3, v0")
    e(f"v_add_u32 v6, {L_OA}, v6")
    e("ds_write_b64 v6, v[52:53]")
    e("s_waitcnt lgkmcnt(0)")
    e("s_barrier")
    stamp(3)
    e("s_cmp_ge_u32 s3, 2")
    e("s_cbranch_scc1 L_t4")
    e("v_and_b32 v22, 15, v2")
    e("v_bfe_u32 v4, v2, 2, 2")
    e("v_and_b32 v5, 3, v2")
    e("v_lshl_add_u32 v6, v3, 3, v4")
    e("v_lshlrev_b32 v6, 6, v6")
    e("v_lshl_add_u32 v6, v5, 3, v6")
    e("s_lshl_b32 s75, s3, 5")
    e(f"s_add_u32 s75, s75, {L_WT}")
    e("v_add_u32 v6, s75, v6")
    e("v_and_b32 v7, 7, v2")
    e("v_lshlrev_b32 v7, 9, v7")
    e("v_lshl_add_u32 v7, v3, 4, v7")
    e(f"v_add_u32 v7, {L_OA}, v7")
    A0, B0 = 32, 64
    for s in range(8):
        e(f"ds_read_b64_tr_b16 v[{A0+4*s}:{A0+4*s+1}], v6 offset:{s*2048}")
        e(f"ds_read_b64_tr_b16 v[{A0+4*s+2}:{A0+4*s+3}], v6 offset:{s*2048 + 256}")
        e(f"ds_read_b128 v[{B0+4*s}:{B0+4*s+3}], v7 offset:{s*64}")
        if s % 4 == 3:
            e("s_waitcnt lgkmcnt(0)")
    for s in range(8):
        c = "0" if s == 0 else "v[8:11]"
        e(f"v_mfma_f32_16x16x32_bf16 v[8:11], v[{A0+4*s}:{A0+4*s+3}], v[{B0+4*s}:{B0+4*s+3}], {c}")
    e("v_lshlrev_b32 v5, 15, v22")
    e("v_lshl_add_u32 v5, v3, 4, v5")
    e("s_lshr_b32 s75, s2, 4")
    e("s_lshl_b32 s75, s75, 11")
    e("s_and_b32 s76, s2, 7")
    e("s_lshl_b32 s76, s76, 8")
    e("s_add_u32 s75, s75, s76")
    e("s_bfe_u32 s76, s2, 0x10003")
    e("s_lshl_b32 s76, s76, 7")
    e("s_add_u32 s75, s75, s76")
    e("s_lshl_b32 s76, s3, 6")
    e("s_add_u32 s75, s75, s76")
    e(f"s_add_u32 s75, s75, {WP_OFF}")
    e("v_cmp_gt_u32 vcc, 8, v22")
    e("s_and_saveexec_b64 s[82:83], vcc")
    e("buffer_store_dwordx4 v[8:11], v5, s[40:43], s75 offen sc1")
    e("s_mov_b64 exec, s[82:83]")
    e.label("L_t4")
    e("s_and_b32 s75, s2, 31")
    e("s_cmp_lg_u32 s75, 0")
    e("s_cbranch_scc1 L_exit")
    e("s_lshr_b32 s77, s2, 5")
    e("s_lshl_b32 s75, s77, 10")
    e("v_lshlrev_b32 v4, 1, v0")
    e("buffer_load_ushort v44, v4, s[44:47], s75 offen")
    e("s_lshl_b32 s75, s77, 15")
    e(f"s_add_u32 s75, s75, {WP_OFF}")
    e("s_mov_b32 s90, 0")
    e("v_lshlrev_b32 v3, 2, v0")
    e.label("L_wppoll")
    for i in range(16):
        e(f"s_add_u32 s76, s75, {2048*i}")
        e(f"buffer_load_dword v{16+i}, v3, s[40:43], s76 offen sc1")
    e("s_waitcnt vmcnt(0)")
    e("v_max_u32 v40, v16, v17")
    for k in range(18, 32, 2):
        e(f"v_max3_u32 v40, v40, v{k}, v{k+1}")
    e("v_cmp_eq_u32 vcc, -1, v40")
    e("s_nop 1")
    e("s_cmp_eq_u64 vcc, 0")
    e("s_cbranch_scc1 L_wpok")
    e("s_add_u32 s90, s90, 1")
    e(f"s_cmp_ge_u32 s90, {POLL_LIMIT}")
    e("s_cbranch_scc1 L_wpok")
    e(f"s_sleep {SLEEP3}")
    e("s_branch L_wppoll")
    e.label("L_wpok")
    for i in range(1, 16):
        e(f"v_add_f32 v16, v16, v{16+i}")
    bf16r(e, 16)
    e("v_lshlrev_b32 v44, 16, v44")
    e("v_add_f32 v16, v16, v44")
    bf16r(e, 16)
    e(f"v_add_u32 v4, {L_H}, v3")
    e("ds_write_b32 v4, v16")
    e("s_waitcnt lgkmcnt(0)")
    e("s_barrier")
    stamp(4)
    e("s_cmp_lg_u32 s3, 0")
    e("s_cbranch_scc1 L_exit")
    e("v_lshlrev_b32 v7, 5, v2")
    e(f"v_add_u32 v7, {L_H}, v7")
    e("ds_read_b128 v[16:19], v7")
    e("ds_read_b128 v[20:23], v7 offset:16")
    e("s_waitcnt lgkmcnt(0)")
    for k in range(8):
        e(f"v_mov_b32 v{200+k}, v{16+k}")
    layernorm8(e, 16, 64, 92)
    layernorm8(e, 16, 64, 92)
    stamp(12, 0)
    e(f"s_mov_b32 s76, {TB_OFF}")
    e("s_mov_b32 s75, 4096")
    e("s_mov_b64 s[20:21], 0")
    e("v_mov_b32 v34, 8192")
    for k in range(8):
        e(f"v_bfe_u32 v24, v{16+k}, 16, 15")
        e(f"v_lshrrev_b32 v32, 31, v{16+k}")
        e("v_subrev_u32 v25, 12800, v24")
        e("v_cmp_eq_u32 vcc, 0, v24")
        e("v_cmp_le_u32 s[82:83], s75, v25")
        if opt.get("tlo"):
            e(f"s_mov_b32 s86, {opt['tlo']}")
            e(f"v_cmp_gt_u32 s[84:85], s86, v24")
            e("s_or_b64 s[82:83], s[82:83], s[84:85]")
        e("v_mad_u32_u24 v33, v32, s75, v25")
        e("s_nop 1")
        e("v_cndmask_b32 v33, v33, v34, s[82:83]")
        e("s_andn2_b64 s[82:83], s[82:83], vcc")
        e("s_or_b64 s[20:21], s[20:21], s[82:83]")
        e("v_lshlrev_b32 v33, 2, v33")
        e(f"buffer_load_dword v{208+k}, v33, s[40:43], s76 offen sc1")
    e("s_waitcnt vmcnt(0)")
    e("s_cmp_eq_u64 s[20:21], 0")
    e("s_cbranch_scc1 L_fast")
    e("v_lshlrev_b32 v7, 5, v2")
    e(f"v_add_u32 v8, {L_CB}, v7")
    e(f"v_add_u32 v9, {L_CB+2048}, v7")
    e("ds_write_b128 v8, v[16:19]")
    e("ds_write_b128 v8, v[20:23] offset:16")
    e("ds_write_b128 v9, v[208:211]")
    e("ds_write_b128 v9, v[212:215] offset:16")
    load_weights(e)
    e("s_waitcnt vmcnt(0) lgkmcnt(0)")
    prep_weights(e)
    e("s_mov_b32 s20, 0")
    e.label("L_sloop")
    e("s_lshl_b32 s21, s20, 2")
    e(f"s_add_u32 s21, s21, {L_CB}")
    e("v_mov_b32 v10, s21")
    e("ds_read_b32 v11, v10")
    e("s_waitcnt lgkmcnt(0)")
    e("v_readfirstlane_b32 s4, v11")
    e("s_bfe_u32 s21, s4, 0xf0010")
    e("s_cmp_eq_u32 s21, 0")
    e("s_cbranch_scc1 L_snext")
    if opt.get("tlo"):
        e(f"s_cmp_ge_u32 s21, {opt['tlo']}")
        e("s_cbranch_scc1 L_snext")
    else:
        e("s_sub_u32 s21, s21, 12800")
        e("s_cmp_lt_u32 s21, 4096")
        e("s_cbranch_scc1 L_snext")
    e("s_mov_b32 s5, s4")
    e("v_mov_b32 v112, 0")
    eval_F(e, 112)
    finish_F(e, [112])
    e("s_mov_b32 exec_lo, 0")
    e("s_mov_b32 exec_hi, 0x80000000")
    e("ds_write_b32 v10, v112 offset:2048")
    e("s_mov_b64 exec, -1")
    e.label("L_snext")
    e("s_add_u32 s20, s20, 1")
    e("s_cmp_lt_u32 s20, 512")
    e("s_cbranch_scc1 L_sloop")
    e("s_waitcnt lgkmcnt(0)")
    e("ds_read_b128 v[208:211], v9")
    e("ds_read_b128 v[212:215], v9 offset:16")
    e("s_waitcnt lgkmcnt(0)")
    e.label("L_fast")
    for k in range(8):
        e(f"v_add_f32 v{208+k}, v{208+k}, v{200+k}")
    for k in range(4):
        e(f"v_cvt_pk_bf16_f32 v{64+k}, v{208+2*k}, v{209+2*k}")
    e("v_lshlrev_b32 v8, 4, v2")
    e("s_lshl_b32 s75, s77, 10")
    e("buffer_store_dwordx4 v[64:67], v8, s[68:71], s75 offen")
    stamp(5)
    if opt.get("dbgst"):
        e("s_cmp_lg_u32 s2, 0")
        e("s_cbranch_scc1 L_exit")
        e("s_waitcnt vmcnt(0)")
        e("s_mov_b64 exec, 0xffff")
        e("v_lshlrev_b32 v250, 2, v2")
        e(f"s_mov_b32 s96, {ST_OFF}")
        e("buffer_load_dword v251, v250, s[40:43], s96 offen sc1")
        e("s_waitcnt vmcnt(0)")
        e("global_store_dword v250, v251, s[26:27]")
    e.label("L_exit")
    e("s_endpgm")
    for rl, bl in rares:
        e.label(rl)
        e(f"ds_bpermute_b32 v{T0+1}, v{BP0}, v{T0}")
        e("s_waitcnt lgkmcnt(0)")
        e(f"v_max_f32 v{T0}, v{T0}, v{T0+1}")
        e(f"ds_bpermute_b32 v{T0+1}, v{BP1}, v{T0}")
        e("s_waitcnt lgkmcnt(0)")
        e(f"v_max3_f32 v{T0}, v{T0}, v{T0+1}, v{MREF}")
        e(f"v_sub_f32 v{T0+1}, v{MREF}, v{T0}")
        e(f"v_mul_f32 v{T0+1}, s81, v{T0+1}")
        e(f"v_exp_f32 v{T0+1}, v{T0+1}")
        e("s_nop 0")
        for i in range(32):
            e(f"v_mul_f32 v{OA+i}, v{OA+i}, v{T0+1}")
        e(f"v_mul_f32 v{LSUM}, v{LSUM}, v{T0+1}")
        e(f"v_mov_b32 v{MREF}, v{T0}")
        e(f"v_mul_f32 v{MNEG}, s81, v{T0}")
        e(f"v_sub_f32 v{MNEG}, 0, v{MNEG}")
        e(f"v_add_f32 v{THR}, 0x40a00000, v{T0}")
        e(f"s_branch {bl}")


def main():
    opt = {}
    for a in sys.argv[2:]:
        k, v = a.split("=")
        opt[k] = {"0": False, "1": True}.get(v, v)
    e = E()
    e.raw(HEADER.rstrip("\n"))
    e.raw(f"; @launch grid=(256,1,1) block=(512,1,1) lds={LDS_TOTAL}")
    e.raw('.amdgcn_target "amdgcn-amd-amdhsa--gfx950"')
    e.raw(".text")
    gen(e, opt)
    e.raw('.section .rodata,"a"')
    e.raw(".p2align 6")
    e.raw(f""".amdhsa_kernel {KNAME}
  .amdhsa_next_free_vgpr 256
  .amdhsa_next_free_sgpr 102
  .amdhsa_accum_offset 256
  .amdhsa_group_segment_fixed_size 0
  .amdhsa_kernarg_size 104
  .amdhsa_user_sgpr_count 2
  .amdhsa_user_sgpr_kernarg_segment_ptr 1
  .amdhsa_system_sgpr_workgroup_id_x 1
.end_amdhsa_kernel""")
    open(sys.argv[1], "w").write(e.text())


main()
```

```python
import sys, struct, math

KNAME = "sequential_preLN__gqa_block_cached__mixer_token_mlp__decode_kernel"
HEADER = open("sequential_preLN__gqa_block_cached__mixer_token_mlp__decode.s.ref").read().split("; Override launch")[0]

Q_OFF = 0x0
PO_OFF = 0x10000
PML_OFF = 0x90000
WP_OFF = 0xA0000
ST_OFF = 0xE0000
CNT_OFF = 0xF0000
QG_OFF = 0x100000
TB_OFF = 0x120000
WS_USED = 0x148000

LOG2E = 0x3FB8AA3B
SCALE = 0x3DB504F3
NEGBIG = 0xF149F2CA

X = 131072
L_LN = X
L_CB = X
L_WT = X + 8192
L_Q = X + 24576
L_ST = X + 25600
L_OA = X + 26624
L_H = X + 30720
L_FL = X + 25600 + 512
L_P = X + 25600 + 528
L_QQ = X + 25600 + 576
LDS_TOTAL = 163840

POLL_LIMIT = 400000


class E:
    def __init__(self):
        self.lines = []
        self.lbl = 0

    def __call__(self, s):
        for ln in s.strip("\n").split("\n"):
            self.lines.append("    " + ln.strip())

    def label(self, name):
        self.lines.append(name + ":")

    def raw(self, s):
        self.lines.append(s)

    def newlabel(self, base):
        self.lbl += 1
        return f"L_{base}_{self.lbl}"

    def text(self):
        return "\n".join(self.lines) + "\n"


def srd(e, d, base_lo, nbytes):
    e(f"s_mov_b32 s{d}, s{base_lo}")
    e(f"s_mov_b32 s{d+1}, s{base_lo+1}")
    e(f"s_mov_b32 s{d+2}, {nbytes}")
    e(f"s_mov_b32 s{d+3}, 0x00020000")


def wave_allreduce_add(e, v, t, s0):
    e(f"s_nop 1")
    e(f"v_add_f32_dpp v{v}, v{v}, v{v} quad_perm:[1,0,3,2] row_mask:0xf bank_mask:0xf")
    e(f"s_nop 1")
    e(f"v_add_f32_dpp v{v}, v{v}, v{v} quad_perm:[2,3,0,1] row_mask:0xf bank_mask:0xf")
    e(f"s_nop 1")
    e(f"v_add_f32_dpp v{v}, v{v}, v{v} row_half_mirror row_mask:0xf bank_mask:0xf")
    e(f"s_nop 1")
    e(f"v_add_f32_dpp v{v}, v{v}, v{v} row_mirror row_mask:0xf bank_mask:0xf")
    e(f"s_nop 1")
    e(f"v_readlane_b32 s{s0}, v{v}, 0")
    e(f"v_readlane_b32 s{s0+1}, v{v}, 16")
    e(f"v_readlane_b32 s{s0+2}, v{v}, 32")
    e(f"v_readlane_b32 s{s0+3}, v{v}, 48")
    e(f"s_nop 1")
    e(f"v_mov_b32 v{t}, s{s0}")
    e(f"v_add_f32 v{t}, s{s0+1}, v{t}")
    e(f"v_add_f32 v{v}, s{s0+2}, v{t}")
    e(f"v_add_f32 v{v}, s{s0+3}, v{v}")


def bf16r(e, v):
    e(f"v_cvt_pk_bf16_f32 v{v}, v{v}, v{v}")
    e(f"v_lshlrev_b32 v{v}, 16, v{v}")


def layernorm8(e, x, t, s0):
    e(f"v_add_f32 v{t}, v{x}, v{x+1}")
    for i in range(2, 8):
        e(f"v_add_f32 v{t}, v{t}, v{x+i}")
    wave_allreduce_add(e, t, t + 1, s0)
    e(f"v_mul_f32 v{t}, 0x3b000000, v{t}")
    for i in range(8):
        e(f"v_sub_f32 v{t+2+i}, v{x+i}, v{t}")
    e(f"v_mul_f32 v{t+10}, v{t+2}, v{t+2}")
    for i in range(1, 8):
        e(f"v_fmac_f32 v{t+10}, v{t+2+i}, v{t+2+i}")
    wave_allreduce_add(e, t + 10, t + 1, s0)
    e(f"v_mul_f32 v{t+10}, 0x3b000000, v{t+10}")
    bf16r(e, t + 10)
    e(f"v_add_f32 v{t+10}, 0x3727c5ac, v{t+10}")
    bf16r(e, t + 10)
    e(f"v_sqrt_f32 v{t+10}, v{t+10}")
    e(f"s_nop 0")
    bf16r(e, t + 10)
    e(f"v_rcp_f32 v{t+11}, v{t+10}")
    bf16r(e, t)
    for i in range(8):
        e(f"v_sub_f32 v{x+i}, v{x+i}, v{t}")
    for i in range(0, 8, 2):
        e(f"v_cvt_pk_bf16_f32 v{t+2}, v{x+i}, v{x+i+1}")
        e(f"v_lshlrev_b32 v{x+i}, 16, v{t+2}")
        e(f"v_and_b32 v{x+i+1}, 0xffff0000, v{t+2}")
    for i in range(8):
        e(f"v_mul_f32 v{t+2}, v{x+i}, v{t+11}")
        e(f"v_fma_f32 v{t+3}, -v{t+2}, v{t+10}, v{x+i}")
        e(f"v_fma_f32 v{x+i}, v{t+3}, v{t+11}, v{t+2}")
    for i in range(0, 8, 2):
        e(f"v_cvt_pk_bf16_f32 v{t+2}, v{x+i}, v{x+i+1}")
        e(f"v_lshlrev_b32 v{x+i}, 16, v{t+2}")
        e(f"v_and_b32 v{x+i+1}, 0xffff0000, v{t+2}")


def unpack8(e, src, dst):
    for i in range(4):
        e(f"v_lshlrev_b32 v{dst+2*i}, 16, v{src+i}")
        e(f"v_and_b32 v{dst+2*i+1}, 0xffff0000, v{src+i}")


W1P, B1P, W2P = 40, 68, 96
TMP = 116


def eval_F(e, acc):
    for half in range(2):
        steps = []
        for jj in range(7):
            j = half * 7 + jj
            a = TMP + 6 * jj
            q = a + 2
            c = a + 4
            steps.append([
                f"v_pk_mul_f32 v[{a}:{a+1}], v[{W1P+2*j}:{W1P+2*j+1}], s[4:5]",
                f"v_cvt_pk_bf16_f32 v{c}, v{a}, v{a+1}",
                f"v_lshlrev_b32 v{a}, 16, v{c}",
                f"v_and_b32 v{a+1}, 0xffff0000, v{c}",
                f"v_pk_add_f32 v[{a}:{a+1}], v[{a}:{a+1}], v[{B1P+2*j}:{B1P+2*j+1}]",
                f"v_cvt_pk_bf16_f32 v{c}, v{a}, v{a+1}",
                f"v_lshlrev_b32 v{a}, 16, v{c}",
                f"v_and_b32 v{a+1}, 0xffff0000, v{c}",
                f"v_pk_mul_f32 v[{q}:{q+1}], v[{a}:{a+1}], v[{a}:{a+1}]",
                f"v_pk_fma_f32 v[{q}:{q+1}], v[{q}:{q+1}], s[14:15], v[38:39]",
                f"v_pk_mul_f32 v[{q}:{q+1}], v[{q}:{q+1}], v[{a}:{a+1}]",
                f"v_exp_f32 v{q}, v{q}",
                f"v_exp_f32 v{q+1}, v{q+1}",
                f"v_pk_add_f32 v[{q}:{q+1}], v[{q}:{q+1}], 1.0 op_sel_hi:[1,0]",
                f"v_rcp_f32 v{q}, v{q}",
                f"v_rcp_f32 v{q+1}, v{q+1}",
                f"v_pk_mul_f32 v[{q}:{q+1}], v[{q}:{q+1}], v[{a}:{a+1}]",
                f"v_cvt_pk_bf16_f32 v{c}, v{q}, v{q+1}",
                f"v_dot2_f32_bf16 v{acc}, v{c}, v{W2P+j}, v{acc}",
            ])
        for i in range(len(steps[0])):
            for jj in range(7):
                e(steps[jj][i])


def load_weights(e):
    e("v_mul_u32_u24 v13, 56, v2")
    for base, sr in ((160, 52), (176, 56), (96, 60)):
        e(f"buffer_load_dwordx4 v[{base}:{base+3}], v13, s[{sr}:{sr+3}], 0 offen")
        e(f"buffer_load_dwordx4 v[{base+4}:{base+7}], v13, s[{sr}:{sr+3}], 0 offen offset:16")
        e(f"buffer_load_dwordx4 v[{base+8}:{base+11}], v13, s[{sr}:{sr+3}], 0 offen offset:32")
        e(f"buffer_load_dwordx2 v[{base+12}:{base+13}], v13, s[{sr}:{sr+3}], 0 offen offset:48")
    e("v_mov_b32 v13, 0")
    e("buffer_load_ushort v192, v13, s[64:67], 0 offen")


def prep_weights(e):
    k0 = -2.0 * math.sqrt(2.0 / math.pi) * math.log2(math.e)
    k1 = k0 * 0.044715
    f2u = lambda f: struct.unpack("<I", struct.pack("<f", f))[0]
    e(f"s_mov_b32 s12, 0x{f2u(k0):08x}")
    e(f"s_mov_b32 s14, 0x{f2u(k1):08x}")
    e(f"s_mov_b32 s15, 0x{f2u(k1):08x}")
    e("v_mov_b32 v38, s12")
    e("v_mov_b32 v39, s12")
    for j in range(14):
        e(f"v_and_b32 v{W1P+2*j+1}, 0xffff0000, v{160+j}")
        e(f"v_lshlrev_b32 v{W1P+2*j}, 16, v{160+j}")
        e(f"v_and_b32 v{B1P+2*j+1}, 0xffff0000, v{176+j}")
        e(f"v_lshlrev_b32 v{B1P+2*j}, 16, v{176+j}")
    e("v_lshlrev_b32 v36, 16, v192")


def finish_F(e, accs):
    e("s_nop 2")
    for mod in ["quad_perm:[1,0,3,2] row_mask:0xf", "quad_perm:[2,3,0,1] row_mask:0xf",
                "row_half_mirror row_mask:0xf", "row_mirror row_mask:0xf",
                "row_bcast:15 row_mask:0xa", "row_bcast:31 row_mask:0xc"]:
        e("s_nop 1")
        for a in accs:
            e(f"v_add_f32_dpp v{a}, v{a}, v{a} {mod} bank_mask:0xf")
    for a in accs:
        bf16r(e, a)
        e(f"v_add_f32 v{a}, v{a}, v36")
        bf16r(e, a)


def gen(e, opt):
    NT = opt.get("nt", "nt")
    STAMP = opt.get("stamp", False)
    SLEEP = int(opt.get("sleep", 1))
    SLEEP2 = int(opt.get("sleep2", 1))
    SLEEP3 = int(opt.get("sleep3", 1))

    def stamp(k, wave=0):
        if not STAMP:
            return
        lab = e.newlabel("st")
        e(f"s_cmp_lg_u32 s3, {wave}")
        e(f"s_cbranch_scc1 {lab}")
        e("s_memrealtime s[92:93]")
        e("s_waitcnt lgkmcnt(0)")
        e("s_mov_b64 s[94:95], exec")
        e("s_mov_b64 exec, 1")
        e("v_mov_b32 v250, s92")
        e("v_mov_b32 v251, 0")
        e("s_lshl_b32 s96, s2, 6")
        e(f"s_add_u32 s96, s96, {ST_OFF + 4*k}")
        e("buffer_store_dword v250, v251, s[40:43], s96 offen")
        e("s_mov_b64 exec, s[94:95]")
        e.label(lab)

    e.raw(f".globl {KNAME}")
    e.raw(".p2align 8")
    e.raw(f".type {KNAME},@function")
    e.label(KNAME)
    e("s_cmp_ge_u32 s2, 256")
    e("s_cbranch_scc1 L_exit")
    e("s_load_dwordx8 s[4:11], s[0:1], 0")
    e("s_load_dwordx2 s[12:13], s[0:1], 32")
    e("s_load_dwordx8 s[16:23], s[0:1], 48")
    e("s_load_dwordx4 s[24:27], s[0:1], 80")
    e("s_load_dwordx2 s[28:29], s[0:1], 96")
    e("s_memrealtime s[30:31]")
    e("v_lshrrev_b32 v1, 6, v0")
    e("v_and_b32 v2, 63, v0")
    e("v_lshrrev_b32 v3, 4, v2")
    e("v_readfirstlane_b32 s3, v1")
    for r in range(4, 36):
        e(f"v_mov_b32 v{r}, 0")
    e("s_mov_b32 s88, 0")
    e("s_mov_b32 s89, 0")
    e("s_mov_b32 s74, 0")
    e("s_mov_b32 s78, 0")
    e("s_mov_b32 s79, 0")
    e("v_and_b32 v22, 15, v2")
    if opt.get("xmap", True):
        e("s_and_b32 s75, s2, 7")
        e("s_lshr_b32 s73, s75, 1")
        e("s_xor_b32 s76, s75, s73")
        e("s_and_b32 s76, s76, 1")
        e("s_lshr_b32 s72, s2, 3")
        e("s_lshl_b32 s72, s72, 1")
        e("s_add_u32 s72, s72, s76")
    else:
        e("s_lshr_b32 s72, s2, 2")
        e("s_and_b32 s73, s2, 3")
    e("s_lshl_b32 s75, s72, 21")
    e("s_waitcnt lgkmcnt(0)")
    e("s_add_u32 s32, s6, s75")
    e("s_addc_u32 s33, s7, 0")
    e("s_mov_b32 s34, 0x200000")
    e("s_mov_b32 s35, 0x00020000")
    e("s_add_u32 s36, s8, s75")
    e("s_addc_u32 s37, s9, 0")
    e("s_mov_b32 s38, 0x200000")
    e("s_mov_b32 s39, 0x00020000")
    srd(e, 40, 28, WS_USED)
    srd(e, 44, 4, 8192)
    srd(e, 48, 10, 4 << 20)
    srd(e, 52, 16, 3584)
    srd(e, 56, 18, 3584)
    srd(e, 60, 20, 3584)
    srd(e, 64, 22, 2)
    srd(e, 68, 24, 8192)
    srd(e, 84, 12, 4 << 20)
    e(f"s_mov_b32 s80, 0x{SCALE:08x}")
    e(f"s_mov_b32 s81, 0x{LOG2E:08x}")
    stamp(0)
    e("s_lshl_b32 s75, s3, 10")
    e("v_lshlrev_b32 v5, 4, v2")
    e("buffer_load_dwordx4 v[8:11], v5, s[44:47], s75 offen")
    e("s_cmp_ge_u32 s3, 4")
    e("s_cbranch_scc1 L_helper_h1")

    VK, VV = 12, 16
    for i in range(4):
        e(f"v_add_u32 v23, {4*i}, v3")
        e(f"v_xor_b32 v23, v23, v22")
        e(f"v_lshlrev_b32 v23, 4, v23")
        e(f"v_lshl_add_u32 v{VK+i}, v3, 8, v23")
    for i in range(2):
        e(f"v_add_u32 v23, {4*i}, v3")
        e(f"v_lshlrev_b32 v23, 1, v23")
        e(f"v_xor_b32 v23, v23, v22")
        e(f"v_lshlrev_b32 v23, 4, v23")
        e(f"v_lshl_add_u32 v{VV+i}, v3, 8, v23")
    if opt.get("noswz"):
        for r in range(VK, VK + 6):
            e(f"v_lshlrev_b32 v{r}, 4, v2")
    e("s_lshl_b32 s74, s3, 15")
    NST = int(opt.get("nst", 8))
    LA = int(opt.get("la", 3))
    STEAL = opt.get("steal", True)

    def issue(kind, slot, soff):
        srdn = 32 if kind == "K" else 36
        ldsoff = (0 if kind == "K" else 16384) + slot * 8192
        for half in range(2):
            e(f"s_add_u32 s76, s74, {ldsoff + half*4096}")
            e(f"s_mov_b32 m0, s76")
            if half == 1:
                e(f"s_add_u32 s77, s{soff}, 16384")
            else:
                e(f"s_mov_b32 s77, s{soff}")
            for i in range(4):
                vo = (VK + i) if kind == "K" else (VV + (i & 1))
                e(f"buffer_load_dwordx4 v{vo}, s[{srdn}:{srdn+3}], s77 offen offset:{1024*i} {NT} lds")

    e("s_lshl_b32 s97, s3, 12")
    e("s_lshl_b32 s75, s73, 19")
    e("s_add_u32 s78, s75, s97")
    e("s_add_u32 s79, s78, 32768")
    e(f"v_mov_b32 v18, {L_QQ + 8}")
    e("s_lshl_b32 s75, s3, 2")
    e(f"s_add_u32 s75, s75, {L_P}")
    e("v_mov_b32 v19, s75")
    e("v_mov_b32 v20, 2")
    e("v_mov_b32 v23, 0")
    PRE = int(opt.get("pre", 0))
    units = [("K", 0, 78), ("V", 0, 78), ("K", 1, 79), ("V", 1, 79)]

    def issue_units(lo, hi):
        for u in range(lo, hi):
            issue(*units[u])
    PACE = int(opt.get("pace", 4))
    PRE = int(opt.get("pre", 0))
    if opt.get("prex"):
        e("s_waitcnt vmcnt(0)")
        issue_units(0, PRE)
    else:
        issue_units(0, PRE)
        e(f"s_waitcnt vmcnt({PRE*8})")
    e("s_branch L_ln")

    e.label("L_helper_h1")
    e("s_cmp_lg_u32 s3, 5")
    e("s_cbranch_scc1 L_h1_noclear")
    for i in range(4):
        e(f"v_mov_b32 v{16+i}, -1")
    e("v_lshlrev_b32 v12, 11, v3")
    e("v_lshl_add_u32 v12, v22, 5, v12")
    e("s_lshl_b32 s75, s72, 13")
    e("s_lshl_b32 s76, s73, 9")
    e("s_add_u32 s75, s75, s76")
    e(f"s_add_u32 s75, s75, {PO_OFF}")
    e("buffer_store_dwordx4 v[16:19], v12, s[40:43], s75 offen sc1")
    e("buffer_store_dwordx4 v[16:19], v12, s[40:43], s75 offen offset:16 sc1")
    e("v_lshrrev_b32 v12, 3, v2")
    e("v_lshlrev_b32 v12, 15, v12")
    e("v_and_b32 v13, 7, v2")
    e("v_lshl_add_u32 v12, v13, 4, v12")
    e("s_lshr_b32 s75, s2, 4")
    e("s_lshl_b32 s75, s75, 11")
    e("s_and_b32 s76, s2, 7")
    e("s_lshl_b32 s76, s76, 8")
    e("s_add_u32 s75, s75, s76")
    e("s_bfe_u32 s76, s2, 0x10003")
    e("s_lshl_b32 s76, s76, 7")
    e("s_add_u32 s75, s75, s76")
    e(f"s_add_u32 s75, s75, {WP_OFF}")
    e("buffer_store_dwordx4 v[16:19], v12, s[40:43], s75 offen sc1")
    e("v_lshlrev_b32 v12, 5, v2")
    e("s_lshl_b32 s75, s72, 7")
    e("s_lshl_b32 s76, s73, 3")
    e("s_add_u32 s75, s75, s76")
    e(f"s_add_u32 s75, s75, {PML_OFF}")
    e("s_mov_b64 exec, 15")
    e("buffer_store_dwordx2 v[16:17], v12, s[40:43], s75 offen sc1")
    e("s_mov_b64 exec, -1")
    e("s_and_b32 s75, s2, 31")
    e("s_cmp_ge_u32 s75, 8")
    e("s_cbranch_scc1 L_h1_cleared")
    e("s_lshl_b32 s75, s75, 3")
    e("s_lshr_b32 s76, s2, 5")
    e("s_add_u32 s75, s75, s76")
    e("s_lshl_b32 s75, s75, 8")
    e(f"s_add_u32 s75, s75, {CNT_OFF}")
    e("v_mov_b32 v12, 0")
    e("v_lshlrev_b32 v13, 6, v2")
    e("s_mov_b64 exec, 15")
    e("buffer_store_dword v12, v13, s[40:43], s75 offen sc1")
    e("s_mov_b64 exec, -1")
    e.label("L_h1_cleared")
    e("s_waitcnt vmcnt(0)")
    e.label("L_h1_noclear")
    e("s_lshr_b32 s75, s2, 5")
    e("s_lshl_b32 s75, s75, 3")
    e("s_and_b32 s76, s2, 7")
    e("s_add_u32 s75, s75, s76")
    e("s_lshl_b32 s75, s75, 2")
    e("s_lshr_b32 s76, s2, 3")
    e("s_and_b32 s76, s76, 3")
    e("s_add_u32 s88, s75, s76")
    e("v_lshrrev_b32 v12, 1, v2")
    e("v_lshlrev_b32 v12, 13, v12")
    e("v_and_b32 v13, 1, v2")
    e("v_lshl_add_u32 v12, v13, 4, v12")
    e("s_sub_u32 s89, s3, 4")
    e("s_lshl_b32 s75, s88, 5")
    e("s_lshl_b32 s76, s89, 18")
    e("s_add_u32 s75, s75, s76")
    e("s_lshl_b32 s76, s89, 10")
    e(f"s_add_u32 s76, s76, {L_WT}")
    for i in range(4):
        e("s_mov_b32 m0, s76")
        e("s_nop 0")
        e("buffer_load_dwordx4 v12, s[48:51], s75 offen lds")
        if i < 3:
            e("s_add_u32 s76, s76, 4096")
            e(f"s_add_u32 s75, s75, {128*8192}")
    WLATE = opt.get("wlate", True)
    if not WLATE:
        load_weights(e)
    e("v_mov_b32 v13, 0")
    e(f"v_mov_b32 v14, {L_FL}")
    e("v_mov_b32 v15, 0")
    e("v_mov_b32 v16, 0")
    e("ds_write_b64 v14, v[15:16]") if False else None
    e("ds_write_b32 v14, v13")
    e("ds_write_b32 v14, v13 offset:4")
    e("ds_write_b32 v14, v13 offset:12")
    e("s_lshl_b32 s75, s73, 4")
    e("v_add_u32 v15, s75, v2")
    e(f"v_cmp_gt_u32 vcc, {NST}, v2")
    e("v_lshlrev_b32 v16, 2, v2")
    e(f"v_add_u32 v16, {L_QQ}, v16")
    e("v_cndmask_b32 v15, -1, v15, vcc")
    e("v_mov_b32 v17, -1")
    e("ds_write_b32 v16, v15")
    e("s_mov_b64 exec, 0xffffffff")
    e("ds_write_b32 v16, v17 offset:256")
    e("s_mov_b64 exec, 15")
    e(f"v_lshlrev_b32 v16, 2, v2")
    e(f"v_add_u32 v16, {L_P}, v16")
    e("ds_write_b32 v16, v13")
    e("s_mov_b64 exec, -1")
    e(f"s_waitcnt vmcnt({4 if WLATE else 17})")
    e.label("L_ln")
    stamp(9, 4)
    unpack8(e, 8, 24)
    layernorm8(e, 24, 40, 92)
    for i in range(4):
        e(f"v_cvt_pk_bf16_f32 v{32+i}, v{24+2*i}, v{24+2*i+1}")
    e("s_lshl_b32 s75, s3, 10")
    e(f"s_add_u32 s75, s75, {L_LN}")
    e("v_add_u32 v6, s75, v5")
    e("ds_write_b128 v6, v[32:35]")
    e("s_cmp_lt_u32 s3, 4")
    e("s_cbranch_scc1 L_b1_s")
    e("s_waitcnt vmcnt(0)")
    e.label("L_b1_s")
    e("s_waitcnt lgkmcnt(0)")
    e("s_barrier")
    e("s_cmp_lt_u32 s3, 4")
    e("s_cbranch_scc1 L_s_pre")
    e("s_cmp_lg_u32 s3, 4")
    e("s_cbranch_scc1 L_table")
    stamp(6, 4)
    e("v_bfe_u32 v4, v2, 2, 2")
    e("v_and_b32 v5, 3, v2")
    e("v_lshl_add_u32 v6, v3, 3, v4")
    e("v_lshlrev_b32 v6, 5, v6")
    e("v_lshl_add_u32 v6, v5, 3, v6")
    e(f"v_add_u32 v6, {L_WT}, v6")
    e("v_and_b32 v7, 7, v2")
    e("v_lshlrev_b32 v7, 10, v7")
    e("v_lshl_add_u32 v7, v3, 4, v7")
    e(f"v_add_u32 v7, {L_LN}, v7")
    A0, B0 = 32, 112
    for hf in range(2):
        for s8 in range(8):
            s = hf * 8 + s8
            e(f"ds_read_b64_tr_b16 v[{A0+4*s}:{A0+4*s+1}], v6 offset:{s*1024}")
            e(f"ds_read_b64_tr_b16 v[{A0+4*s+2}:{A0+4*s+3}], v6 offset:{s*1024 + 128}")
            e(f"ds_read_b128 v[{B0+4*s8}:{B0+4*s8+3}], v7 offset:{s*64}")
            if s8 % 4 == 3:
                e("s_waitcnt lgkmcnt(0)")
        for s8 in range(8):
            s = hf * 8 + s8
            c = "0" if s == 0 else "v[8:11]"
            e(f"v_mfma_f32_16x16x32_bf16 v[8:11], v[{A0+4*s}:{A0+4*s+3}], v[{B0+4*s8}:{B0+4*s8+3}], {c}")
        if hf == 0:
            e("s_nop 7")
    e("s_memrealtime s[76:77]")
    e("v_lshlrev_b32 v5, 6, v22")
    e("v_lshl_add_u32 v5, v3, 4, v5")
    e("s_lshl_b32 s75, s88, 9")
    e(f"s_add_u32 s75, s75, {QG_OFF}")
    e("s_nop 4")
    e("s_waitcnt lgkmcnt(0)")
    e("v_cvt_pk_bf16_f32 v12, v8, v9")
    e("v_cvt_pk_bf16_f32 v13, v10, v11")
    e("v_mov_b32 v14, s76")
    e("v_mov_b32 v15, s77")
    e("v_cmp_gt_u32 vcc, 8, v22")
    e("s_and_saveexec_b64 s[82:83], vcc")
    e("buffer_store_dwordx4 v[12:15], v5, s[40:43], s75 offen sc1")
    e("s_mov_b64 exec, s[82:83]")
    QS = int(opt.get("qs", 1))
    if QS:
        if QS == 2:
            e("s_waitcnt vmcnt(0)")
        e(f"v_mov_b32 v29, {L_FL}")
        e("v_mov_b32 v30, 1")
        e("ds_write_b32 v29, v30 offset:12")
    e("v_lshrrev_b32 v5, 1, v2")
    e("v_lshlrev_b32 v5, 9, v5")
    e("v_and_b32 v6, 1, v2")
    e("v_lshl_add_u32 v5, v6, 5, v5")
    e("s_and_b32 s75, s72, 7")
    e("s_lshl_b32 s75, s75, 14")
    e("s_lshr_b32 s76, s72, 3")
    e("s_lshl_b32 s76, s76, 6")
    e("s_add_u32 s75, s75, s76")
    e(f"s_add_u32 s75, s75, {QG_OFF}")
    e("s_sub_u32 s30, s30, 2000")
    e("s_subb_u32 s31, s31, 0")
    e("v_mov_b32 v20, s31")
    e("v_mov_b32 v24, s88")
    e("v_mov_b32 v25, 1")
    e("s_and_b32 s76, s72, 7")
    e("s_lshl_b32 s76, s76, 5")
    e("v_and_b32 v26, 7, v2")
    e("v_lshlrev_b32 v26, 2, v26")
    e("v_add_u32 v26, s76, v26")
    e("s_mov_b32 s90, 0")
    e("s_mov_b32 s91, 0x01010101")
    e("s_mov_b32 s77, 0")
    e("s_mov_b32 s76, 0x100000")
    e.label("L_qpoll")
    e("buffer_load_dwordx4 v[8:11], v5, s[40:43], s75 offen sc1")
    e("buffer_load_dwordx4 v[16:19], v5, s[40:43], s75 offen offset:16 sc1")
    e("s_waitcnt vmcnt(0)")
    e("s_cmp_lg_u32 s77, 0")
    e("s_cbranch_scc1 L_qflagged")
    stamp(7, 4)
    e("s_mov_b32 s77, 1")
    e("s_mov_b64 exec, 1")
    e("global_store_byte v24, v25, s[26:27] sc1")
    e("s_mov_b64 exec, -1")
    e.label("L_qflagged")
    e("v_subrev_co_u32 v21, vcc, s30, v10")
    e("s_nop 1")
    e("v_subb_co_u32 v23, vcc, v11, v20, vcc")
    e("v_subrev_co_u32 v27, vcc, s30, v18")
    e("s_nop 1")
    e("v_subb_co_u32 v28, vcc, v19, v20, vcc")
    e("v_or_b32 v23, v23, v28")
    e("v_max_u32 v21, v21, v27")
    e("v_cmp_ne_u32 vcc, 0, v23")
    e("v_cmp_le_u32 s[82:83], s76, v21")
    e("s_or_b64 vcc, vcc, s[82:83]")
    e("s_cmp_eq_u64 vcc, 0")
    e("s_cbranch_scc1 L_qready")
    e("s_add_u32 s90, s90, 1")
    e(f"s_cmp_ge_u32 s90, {POLL_LIMIT}")
    e("s_cbranch_scc1 L_qready")
    e("s_and_b32 s82, s90, 63")
    e("s_cmp_lg_u32 s82, 0")
    e("s_cbranch_scc1 L_qsleep")
    e("global_load_dword v21, v26, s[26:27] sc1")
    e("s_waitcnt vmcnt(0)")
    e("v_cmp_ne_u32 vcc, s91, v21")
    e("s_nop 1")
    e("s_cmp_lg_u64 vcc, 0")
    e("s_cbranch_scc1 L_qsleep")
    e("buffer_load_dwordx4 v[8:11], v5, s[40:43], s75 offen sc1")
    e("buffer_load_dwordx4 v[16:19], v5, s[40:43], s75 offen offset:16 sc1")
    e("s_waitcnt vmcnt(0)")
    e("s_branch L_qready")
    e.label("L_qsleep")
    e(f"s_sleep {SLEEP}")
    e("s_branch L_qpoll")
    e.label("L_qready")
    stamp(8, 4)
    e("v_mov_b32 v10, v16")
    e("v_mov_b32 v11, v17")
    e("v_lshlrev_b32 v6, 4, v2")
    e(f"v_add_u32 v6, {L_Q}, v6")
    e("ds_write_b128 v6, v[8:11]")
    e("s_waitcnt lgkmcnt(0)")
    e(f"v_mov_b32 v14, {L_FL}")
    e("v_mov_b32 v15, 1")
    e("ds_write_b32 v14, v15")
    e("v_lshrrev_b32 v12, 2, v2")
    e("v_lshlrev_b32 v12, 10, v12")
    e("v_and_b32 v13, 3, v2")
    e("v_lshl_add_u32 v12, v13, 4, v12")
    e("s_lshr_b32 s75, s2, 4")
    e("s_lshl_b32 s75, s75, 18")
    e("s_and_b32 s76, s2, 7")
    e("s_lshl_b32 s76, s76, 7")
    e("s_add_u32 s75, s75, s76")
    e("s_bfe_u32 s76, s2, 0x10003")
    e("s_lshl_b32 s76, s76, 6")
    e("s_add_u32 s75, s75, s76")
    e(f"s_mov_b32 s76, {L_WT}")
    for it in range(16):
        e("s_mov_b32 m0, s76")
        e("s_nop 0")
        e("buffer_load_dwordx4 v12, s[84:87], s75 offen lds")
        if it < 15:
            e("s_add_u32 s76, s76, 1024")
            e("s_add_u32 s75, s75, 16384")
    e("s_branch L_table")
    e.label("L_s_pre")
    if QS:
        e(f"v_mov_b32 v5, {L_FL}")
        e("s_mov_b32 s90, 0")
        e.label("L_swait")
        e(f"ds_read_b32 v6, v5 offset:{0 if QS == 3 else 12}")
        e("s_waitcnt lgkmcnt(0)")
        e("v_readfirstlane_b32 s75, v6")
        e("s_cmp_lg_u32 s75, 0")
        e("s_cbranch_scc1 L_sgo")
        e("s_add_u32 s90, s90, 1")
        e(f"s_cmp_ge_u32 s90, {POLL_LIMIT*20}")
        e("s_cbranch_scc1 L_sgo")
        e("s_branch L_swait")
        e.label("L_sgo")
    e("v_mov_b32 v23, 0")
    if PRE < 4:
        if PRE > 0:
            e(f"s_waitcnt vmcnt({PACE})")
        issue_units(PRE, PRE + 1)
    KA, VA = 24, 28
    for i in range(4):
        e(f"v_add_u32 v23, {4*i}, v3")
        e(f"v_xor_b32 v23, v23, v22")
        e(f"v_lshlrev_b32 v23, 4, v23")
        e(f"v_lshl_add_u32 v23, v22, 8, v23")
        e(f"v_add_u32 v{KA+i}, s74, v23")
    e("v_bfe_u32 v40, v2, 2, 2")
    e("v_lshl_add_u32 v40, v3, 2, v40")
    e("v_and_b32 v41, 7, v40")
    e("v_lshlrev_b32 v41, 1, v41")
    e("v_bfe_u32 v42, v2, 1, 1")
    e("v_and_b32 v43, 1, v2")
    e("v_lshlrev_b32 v44, 8, v40")
    e("v_lshl_add_u32 v44, v43, 3, v44")
    e("v_add_u32 v44, s74, v44")
    e("v_add_u32 v44, 16384, v44")
    for j in range(8):
        e(f"v_xor_b32 v23, {2*j}, v41")
        e(f"v_add_u32 v23, v23, v42")
        e(f"v_lshl_add_u32 v{VA+j}, v23, 4, v44")
    QF, KF, VF, S0, P0, T0, OA = 36, 52, 84, 116, 124, 128, 144
    MREF, MNEG, THR, LSUM = 136, 137, 138, 139
    BP0, BP1 = 140, 141
    for i in range(32):
        e(f"v_mov_b32 v{OA+i}, 0")
    for i in range(16):
        e(f"v_mov_b32 v{QF+i}, 0")
    e(f"v_mov_b32 v{MREF}, 0x{NEGBIG:08x}")
    e(f"v_mov_b32 v{THR}, 0x{NEGBIG:08x}")
    e(f"v_mov_b32 v{MNEG}, 0")
    e(f"v_mov_b32 v{LSUM}, 0")
    e(f"v_xor_b32 v{BP0}, 16, v2")
    e(f"v_lshlrev_b32 v{BP0}, 2, v{BP0}")
    e(f"v_xor_b32 v{BP1}, 32, v2")
    e(f"v_lshlrev_b32 v{BP1}, 2, v{BP1}")
    e("v_lshlrev_b32 v4, 8, v22")
    e("v_lshl_add_u32 v4, v3, 4, v4")
    e(f"v_add_u32 v4, {L_Q}, v4")
    e("v_mov_b32 v23, 0")
    NSPIN = int(opt.get("nspin", 8))
    e(f"v_mov_b32 v5, {L_FL}")
    for u in range(PRE + 1, 4):
        if NSPIN:
            e("s_mov_b32 s90, 0")
            e.label(f"L_pw{u}")
            e("ds_read_b32 v6, v5")
            e("s_waitcnt lgkmcnt(0)")
            e("v_readfirstlane_b32 s75, v6")
            e("s_cmp_lg_u32 s75, 0")
            e(f"s_cbranch_scc1 L_pg{u}")
            e("s_add_u32 s90, s90, 1")
            e(f"s_cmp_ge_u32 s90, {NSPIN}")
            e(f"s_cbranch_scc1 L_pg{u}")
            e("s_sleep 1")
            e(f"s_branch L_pw{u}")
            e.label(f"L_pg{u}")
        else:
            e(f"s_waitcnt vmcnt({PACE})")
        issue_units(u, u + 1)
    e(f"v_mov_b32 v5, {L_FL}")
    e("s_mov_b32 s90, 0")
    if opt.get("nowait"):
        e("s_branch L_qhere")
    e.label("L_qwait")
    e("ds_read_b32 v6, v5")
    e("s_waitcnt lgkmcnt(0)")
    e("v_readfirstlane_b32 s75, v6")
    e("s_cmp_lg_u32 s75, 0")
    e("s_cbranch_scc1 L_qhere")
    e("s_add_u32 s90, s90, 1")
    e(f"s_cmp_ge_u32 s90, {POLL_LIMIT*20}")
    e("s_cbranch_scc1 L_qhere")
    e("s_sleep 1")
    e("s_branch L_qwait")
    e.label("L_qhere")
    stamp(1)
    e("v_cmp_gt_u32 vcc, 4, v22")
    e("s_and_saveexec_b64 s[82:83], vcc")
    for i in range(4):
        e(f"ds_read_b128 v[{QF+4*i}:{QF+4*i+3}], v4 offset:{64*i}")
    e("s_mov_b64 exec, s[82:83]")
    e("s_waitcnt lgkmcnt(0)")
    if STAMP:
        e("s_waitcnt vmcnt(0)")
    e(f"s_setprio {int(opt.get('prio', 2))}")
    e.label("L_loop")
    rares = []
    NOC = int(opt.get("noc", 0))
    e_real = e
    class F:
        def __call__(self, x):
            op = x.split()[0]
            if NOC >= 1 and (op.startswith("v_mfma") or op.startswith("v_exp") or op.startswith("v_cvt") or op.startswith("v_fma") or op.startswith("v_mul") or op.startswith("v_max") or op.startswith("v_add_f32") or op.startswith("v_lshlrev") or op.startswith("v_and") or op.startswith("v_cmp") or op == "s_cbranch_vccnz"):
                return
            if NOC >= 2 and op.startswith("ds_read"):
                return
            e_real(x)
        def label(self, n): e_real.label(n)
        def newlabel(self, b): return e_real.newlabel(b)
    e = F()
    VEARLY = opt.get("vearly", False)

    def vpart(slot):
        e("s_waitcnt vmcnt(24)")
        for j in range(8):
            for hb in range(2):
                r = VF + j * 4 + hb * 2
                e(f"ds_read_b64_tr_b16 v[{r}:{r+1}], v{VA+j} offset:{slot*8192 + hb*4096}")
        e("s_waitcnt lgkmcnt(0)")
        issue("V", slot, 78 + slot)

    for slot in range(2):
        e("s_waitcnt vmcnt(24)")
        for u in range(2):
            for i in range(4):
                r = KF + (u * 4 + i) * 4
                e(f"ds_read_b128 v[{r}:{r+3}], v{KA+i} offset:{slot*8192 + u*4096}")
        e_real("ds_write_b32 v19, v20")
        e_real("s_mov_b32 s90, 0")
        e_real.label(f"L_qq{slot}")
        e_real("ds_read_b32 v21, v18")
        e_real("s_waitcnt lgkmcnt(0)")
        e_real("v_readfirstlane_b32 s75, v21")
        e_real("s_add_u32 s90, s90, 1")
        e_real("s_cmp_lt_u32 s90, 0x1000000")
        e_real("s_cselect_b32 s75, s75, 64")
        e_real("s_cmp_eq_u32 s75, -1")
        e_real(f"s_cbranch_scc1 L_qq{slot}")
        e_real("v_add_u32 v18, 4, v18")
        e_real("v_add_u32 v20, 1, v20")
        e("s_lshl_b32 s75, s75, 15")
        e(f"s_add_u32 s{78+slot}, s75, s97")
        issue("K", slot, 78 + slot)
        if VEARLY:
            vpart(slot)
        for i in range(4):
            for u in range(2):
                r = KF + (u * 4 + i) * 4
                c = "0" if i == 0 else f"v[{S0+4*u}:{S0+4*u+3}]"
                e(f"v_mfma_f32_16x16x32_bf16 v[{S0+4*u}:{S0+4*u+3}], v[{r}:{r+3}], v[{QF+4*i}:{QF+4*i+3}], {c}")
        e("s_nop 7")
        for i in range(4):
            e(f"v_cvt_pk_bf16_f32 v{T0+i}, v{S0+2*i}, v{S0+2*i+1}")
        for i in range(4):
            e(f"v_lshlrev_b32 v{S0+2*i}, 16, v{T0+i}")
            e(f"v_and_b32 v{S0+2*i+1}, 0xffff0000, v{T0+i}")
        for i in range(8):
            e(f"v_mul_f32 v{S0+i}, s80, v{S0+i}")
        for i in range(4):
            e(f"v_cvt_pk_bf16_f32 v{T0+i}, v{S0+2*i}, v{S0+2*i+1}")
        for i in range(4):
            e(f"v_lshlrev_b32 v{S0+2*i}, 16, v{T0+i}")
            e(f"v_and_b32 v{S0+2*i+1}, 0xffff0000, v{T0+i}")
        e(f"v_max3_f32 v{T0}, v{S0}, v{S0+1}, v{S0+2}")
        e(f"v_max3_f32 v{T0+1}, v{S0+3}, v{S0+4}, v{S0+5}")
        e(f"v_max3_f32 v{T0}, v{T0}, v{S0+6}, v{S0+7}")
        e(f"v_max_f32 v{T0}, v{T0}, v{T0+1}")
        e(f"v_cmp_gt_f32 vcc, v{T0}, v{THR}")
        rl, bl = f"L_rare{slot}", f"L_back{slot}"
        e(f"s_cbranch_vccnz {rl}")
        e.label(bl)
        rares.append((rl, bl))
        for i in range(8):
            e(f"v_fma_f32 v{S0+i}, v{S0+i}, s81, v{MNEG}")
        for i in range(8):
            e(f"v_exp_f32 v{S0+i}, v{S0+i}")
        e("s_nop 0")
        for i in range(4):
            e(f"v_cvt_pk_bf16_f32 v{P0+i}, v{S0+2*i}, v{S0+2*i+1}")
        e(f"v_add_f32 v{T0}, v{S0}, v{S0+1}")
        e(f"v_add_f32 v{T0+1}, v{S0+2}, v{S0+3}")
        e(f"v_add_f32 v{T0+2}, v{S0+4}, v{S0+5}")
        e(f"v_add_f32 v{T0+3}, v{S0+6}, v{S0+7}")
        e(f"v_add_f32 v{T0}, v{T0}, v{T0+1}")
        e(f"v_add_f32 v{T0+2}, v{T0+2}, v{T0+3}")
        e(f"v_add_f32 v{T0}, v{T0}, v{T0+2}")
        e(f"v_add_f32 v{LSUM}, v{LSUM}, v{T0}")
        if not VEARLY:
            vpart(slot)
        for j in range(8):
            r = VF + j * 4
            e(f"v_mfma_f32_16x16x32_bf16 v[{OA+4*j}:{OA+4*j+3}], v[{r}:{r+3}], v[{P0}:{P0+3}], v[{OA+4*j}:{OA+4*j+3}]")
        e(f"s_cmp_ge_u32 s{78+(slot^1)}, 0x200000")
        if slot == 0:
            e("s_cbranch_scc1 L_loop_done")
        else:
            e("s_cbranch_scc0 L_loop")
    e = e_real
    e.label("L_loop_done")
    stamp(14, 0)
    e("s_nop 7")
    e("s_nop 7")
    e("s_lshl_b32 s75, s3, 11")
    e(f"s_add_u32 s75, s75, {L_CB}")
    e("v_lshlrev_b32 v40, 9, v22")
    e("v_lshl_add_u32 v40, v3, 4, v40")
    e("v_add_u32 v40, s75, v40")
    e("s_lshl_b32 s76, s3, 2")
    e("v_lshlrev_b32 v41, 4, v22")
    e("v_add_u32 v41, s76, v41")
    e("v_lshlrev_b32 v42, 2, v41")
    e("v_lshl_add_u32 v42, v3, 2, v42")
    e(f"v_add_u32 v41, {L_ST}, v41")
    e(f"v_add_u32 v42, {L_ST+64}, v42")
    e("v_cmp_gt_u32 vcc, 4, v22")
    e("s_and_saveexec_b64 s[82:83], vcc")
    for j in range(8):
        e(f"ds_write_b128 v40, v[{OA+4*j}:{OA+4*j+3}] offset:{64*j}")
    e(f"ds_write_b32 v41, v{MREF}")
    e(f"ds_write_b32 v42, v{LSUM}")
    e("s_mov_b64 exec, s[82:83]")
    e("s_branch L_b3")

    e.label("L_sched")
    e(f"v_mov_b32 v5, {L_FL}")
    e("s_mov_b32 s90, 0")
    e.label("L_sq")
    e("ds_read_b32 v6, v5")
    e("s_waitcnt lgkmcnt(0)")
    e("v_readfirstlane_b32 s75, v6")
    e("s_cmp_lg_u32 s75, 0")
    e("s_cbranch_scc1 L_sq_ok")
    e("s_add_u32 s90, s90, 1")
    e(f"s_cmp_ge_u32 s90, {POLL_LIMIT*20}")
    e("s_cbranch_scc1 L_sq_ok")
    e("s_sleep 2")
    e("s_branch L_sq")
    e.label("L_sq_ok")
    e(f"s_mov_b32 s4, {NST}")
    e("s_mov_b32 s5, 0")
    e(f"v_mov_b32 v5, {L_P}")
    e("s_mov_b64 exec, 1")
    e.label("L_sloop0")
    e("ds_read_b128 v[8:11], v5")
    e("s_waitcnt lgkmcnt(0)")
    e("v_max_u32 v8, v8, v9")
    e("v_max3_u32 v8, v8, v10, v11")
    e("s_nop 0")
    e("v_readfirstlane_b32 s6, v8")
    e(f"s_add_u32 s6, s6, {1 + LA}")
    e("s_cmp_lt_u32 s4, s6")
    e("s_cbranch_scc1 L_sclaim")
    e("s_sleep 2")
    e("s_branch L_sloop0")
    e.label("L_sclaim")
    e("s_add_u32 s7, s73, s5")
    e("s_and_b32 s7, s7, 3")
    e("s_lshl_b32 s8, s72, 8")
    e("s_lshl_b32 s9, s7, 6")
    e("s_add_u32 s8, s8, s9")
    e(f"s_add_u32 s8, s8, {CNT_OFF}")
    e("v_mov_b32 v12, s8")
    e("s_cmp_eq_u32 s5, 0")
    e("s_cselect_b32 s9, 1, 0x10000")
    e("v_mov_b32 v13, s9")
    e("global_atomic_add v14, v12, v13, s[28:29] sc0 sc1")
    e("s_waitcnt vmcnt(0)")
    e("v_readfirstlane_b32 s9, v14")
    e("s_and_b32 s10, s9, 0xffff")
    e("s_lshr_b32 s11, s9, 16")
    e("s_add_u32 s9, s10, s11")
    e(f"s_cmp_lt_u32 s9, {16 - NST}")
    e("s_cbranch_scc1 L_sgot")
    e("s_add_u32 s5, s5, 1")
    e(f"s_cmp_lt_u32 s5, {4 if STEAL else 1}")
    e("s_cbranch_scc1 L_sclaim")
    e("s_mov_b64 exec, 0xff")
    e("s_lshl_b32 s8, s4, 2")
    e(f"s_add_u32 s8, s8, {L_QQ}")
    e("v_lshlrev_b32 v12, 2, v2")
    e("v_add_u32 v12, s8, v12")
    e("v_mov_b32 v13, 64")
    e("ds_write_b32 v12, v13")
    e("s_mov_b64 exec, -1")
    e("s_branch L_b3")
    e.label("L_sgot")
    e(f"s_add_u32 s10, s10, {NST}")
    e("s_sub_u32 s11, 15, s11")
    e("s_cmp_eq_u32 s5, 0")
    e("s_cselect_b32 s10, s10, s11")
    e("s_lshl_b32 s7, s7, 4")
    e("s_add_u32 s10, s10, s7")
    e("s_lshl_b32 s8, s4, 2")
    e(f"s_add_u32 s8, s8, {L_QQ}")
    e("v_mov_b32 v12, s8")
    e("v_mov_b32 v13, s10")
    e("ds_write_b32 v12, v13")
    e("s_add_u32 s4, s4, 1")
    e("s_branch L_sloop0")
    e.label("L_table")
    e("s_cmp_eq_u32 s3, 6")
    e("s_cbranch_scc1 L_sched")
    if opt.get("notable"):
        e("s_branch L_tdone")
    e("v_mov_b32 v6, 0")
    if WLATE:
        load_weights(e)
        e("s_waitcnt vmcnt(0)")
    prep_weights(e)
    e(f"v_mov_b32 v34, {L_FL+4}")
    e("v_mov_b32 v35, 1")
    ACC = 112
    stamp(13, 4)
    e.label("L_tloop")
    e("s_mov_b64 exec, 1")
    e("ds_add_rtn_u32 v33, v34, v35")
    e("s_mov_b64 exec, -1")
    e("s_waitcnt lgkmcnt(0)")
    e("v_readfirstlane_b32 s90, v33")
    e("s_cmp_ge_u32 s90, 11")
    e("s_cbranch_scc1 L_tdone")
    e("s_mul_i32 s75, s90, 3")
    e("s_lshl_b32 s20, s2, 5")
    for k in range(3):
        e(f"s_add_u32 s76, s75, {k}")
        e("s_add_u32 s77, s20, s76")
        e(f"s_mov_b32 s{22+k}, s77")
        e("s_and_b32 s4, s77, 4095")
        e("s_add_u32 s4, s4, 12800")
        e("s_lshr_b32 s5, s77, 12")
        e("s_lshl_b32 s5, s5, 15")
        e("s_or_b32 s77, s4, s5")
        if k == 2:
            e("s_add_u32 s4, s2, 8192")
            e("s_cmp_lt_u32 s76, 32")
            e("s_cselect_b32 s77, s77, 0")
            e(f"s_cselect_b32 s{22+k}, s{22+k}, s4")
        e(f"s_lshl_b32 s{22+k}, s{22+k}, 2")
        e(f"s_add_u32 s{22+k}, s{22+k}, {TB_OFF}")
        e("s_lshl_b32 s4, s77, 16")
        e("s_mov_b32 s5, s4")
        e(f"v_mov_b32 v{ACC+k}, 0")
        eval_F(e, ACC + k)
    finish_F(e, [ACC, ACC + 1, ACC + 2])
    e("s_mov_b32 exec_lo, 0")
    e("s_mov_b32 exec_hi, 0x80000000")
    for k in range(3):
        e(f"buffer_store_dword v{ACC+k}, v6, s[40:43], s{22+k} offen sc1")
    e("s_mov_b64 exec, -1")
    e("s_branch L_tloop")
    e.label("L_tdone")
    stamp(11, 4)
    e("s_cmp_lg_u32 s3, 7")
    e("s_cbranch_scc1 L_b3")
    e("v_lshlrev_b32 v16, 2, v2")
    e("s_mov_b32 s90, 0")
    e("s_mov_b32 s91, 0x01010101")
    e.label("L_gpoll")
    e("global_load_dword v17, v16, s[26:27] sc1")
    e("s_waitcnt vmcnt(0)")
    e("v_cmp_ne_u32 vcc, s91, v17")
    e("s_nop 1")
    e("s_cmp_eq_u64 vcc, 0")
    e("s_cbranch_scc1 L_b3")
    e("s_add_u32 s90, s90, 1")
    e(f"s_cmp_ge_u32 s90, {POLL_LIMIT}")
    e("s_cbranch_scc1 L_b3")
    e("s_sleep 100")
    e("s_branch L_gpoll")
    e.label("L_b3")
    e("s_waitcnt vmcnt(0) lgkmcnt(0)")
    e("s_barrier")
    e.label("L_tail")
    stamp(2)
    e("s_cmp_ge_u32 s3, 2")
    e("s_cbranch_scc1 L_t2")
    e("v_lshrrev_b32 v4, 5, v0")
    e("v_and_b32 v5, 31, v0")
    e("v_lshlrev_b32 v6, 4, v4")
    e(f"v_add_u32 v6, {L_ST}, v6")
    e("ds_read_b128 v[44:47], v6")
    e("v_lshlrev_b32 v6, 6, v4")
    e(f"v_add_u32 v6, {L_ST+64}, v6")
    for w in range(4):
        e(f"ds_read_b128 v[{48+4*w}:{48+4*w+3}], v6 offset:{16*w}")
    e("v_lshlrev_b32 v6, 9, v4")
    e("v_lshl_add_u32 v6, v5, 4, v6")
    e(f"v_add_u32 v6, {L_CB}, v6")
    for w in range(4):
        e(f"ds_read_b128 v[{64+4*w}:{64+4*w+3}], v6 offset:{2048*w}")
    e("s_waitcnt lgkmcnt(0)")
    e("v_max3_f32 v80, v44, v45, v46")
    e("v_max_f32 v80, v80, v47")
    for w in range(4):
        e(f"v_sub_f32 v{44+w}, v{44+w}, v80")
        e(f"v_mul_f32 v{44+w}, s81, v{44+w}")
        e(f"v_exp_f32 v{44+w}, v{44+w}")
    for w in range(4):
        e(f"v_add_f32 v{48+4*w}, v{48+4*w}, v{49+4*w}")
        e(f"v_add_f32 v{50+4*w}, v{50+4*w}, v{51+4*w}")
        e(f"v_add_f32 v{48+4*w}, v{48+4*w}, v{50+4*w}")
    e("v_mul_f32 v81, v44, v48")
    for k in range(4):
        e(f"v_mul_f32 v{84+k}, v44, v{64+k}")
    for w in range(1, 4):
        e(f"v_fmac_f32 v81, v{44+w}, v{48+4*w}")
        for k in range(4):
            e(f"v_fmac_f32 v{84+k}, v{44+w}, v{64+4*w+k}")
    e("v_lshlrev_b32 v6, 11, v4")
    e("v_lshl_add_u32 v6, v5, 4, v6")
    e("s_lshl_b32 s75, s72, 13")
    e("s_lshl_b32 s76, s73, 9")
    e("s_add_u32 s75, s75, s76")
    e(f"s_add_u32 s75, s75, {PO_OFF}")
    e("buffer_store_dwordx4 v[84:87], v6, s[40:43], s75 offen sc1")
    e("v_lshlrev_b32 v6, 5, v4")
    e("s_lshl_b32 s75, s72, 7")
    e("s_lshl_b32 s76, s73, 3")
    e("s_add_u32 s75, s75, s76")
    e(f"s_add_u32 s75, s75, {PML_OFF}")
    e("v_cmp_eq_u32 vcc, 0, v5")
    e("s_and_saveexec_b64 s[82:83], vcc")
    e("buffer_store_dwordx2 v[80:81], v6, s[40:43], s75 offen sc1")
    e("s_mov_b64 exec, s[82:83]")
    e.label("L_t2")
    e("v_lshrrev_b32 v4, 5, v2")
    e("v_and_b32 v5, 31, v2")
    e("s_lshr_b32 s75, s2, 4")
    e("s_lshl_b32 s75, s75, 1")
    e("s_lshl_b32 s76, s3, 5")
    e("s_add_u32 s75, s75, s76")
    e("v_lshlrev_b32 v6, 5, v4")
    e("s_lshl_b32 s76, s75, 5")
    e(f"s_add_u32 s76, s76, {PML_OFF}")
    e("v_lshlrev_b32 v7, 11, v4")
    e("v_lshl_add_u32 v7, v5, 4, v7")
    e("s_lshl_b32 s77, s75, 11")
    e(f"s_add_u32 s77, s77, {PO_OFF}")
    e("s_mov_b32 s90, 0")
    e.label("L_mlpoll")
    e("buffer_load_dwordx4 v[16:19], v6, s[40:43], s76 offen sc1")
    e("buffer_load_dwordx4 v[20:23], v6, s[40:43], s76 offen offset:16 sc1")
    for s in range(4):
        e(f"buffer_load_dwordx4 v[{24+4*s}:{24+4*s+3}], v7, s[40:43], s77 offen offset:{512*s} sc1")
    e("s_waitcnt vmcnt(0)")
    e("v_max_u32 v40, v16, v17")
    for k in range(18, 40, 2):
        e(f"v_max3_u32 v40, v40, v{k}, v{k+1}")
    e("v_cmp_eq_u32 vcc, -1, v40")
    e("s_nop 1")
    e("s_cmp_eq_u64 vcc, 0")
    e("s_cbranch_scc1 L_mlready")
    e("s_add_u32 s90, s90, 1")
    e(f"s_cmp_ge_u32 s90, {POLL_LIMIT}")
    e("s_cbranch_scc1 L_mlready")
    e(f"s_sleep {SLEEP2}")
    e("s_branch L_mlpoll")
    e.label("L_mlready")
    stamp(10, 0)
    e("v_max3_f32 v60, v16, v18, v20")
    e("v_max_f32 v60, v60, v22")
    for s in range(4):
        e(f"v_sub_f32 v{44+s}, v{16+2*s}, v60")
        e(f"v_mul_f32 v{44+s}, s81, v{44+s}")
        e(f"v_exp_f32 v{44+s}, v{44+s}")
    e("s_nop 0")
    e("v_mul_f32 v61, v44, v17")
    for s in range(1, 4):
        e(f"v_fmac_f32 v61, v{44+s}, v{17+2*s}")
    e("v_rcp_f32 v61, v61")
    e("s_nop 0")
    for s in range(4):
        e(f"v_mul_f32 v{44+s}, v{44+s}, v61")
    e.label("L_poready")
    for k in range(4):
        e(f"v_mul_f32 v{48+k}, v44, v{24+k}")
        for s in range(1, 4):
            e(f"v_fmac_f32 v{48+k}, v{44+s}, v{24+4*s+k}")
    e("v_cvt_pk_bf16_f32 v52, v48, v49")
    e("v_cvt_pk_bf16_f32 v53, v50, v51")
    e("v_lshlrev_b32 v6, 3, v0")
    e(f"v_add_u32 v6, {L_OA}, v6")
    e("ds_write_b64 v6, v[52:53]")
    e("s_waitcnt lgkmcnt(0)")
    e("s_barrier")
    stamp(3)
    e("s_cmp_ge_u32 s3, 2")
    e("s_cbranch_scc1 L_t4")
    e("v_and_b32 v22, 15, v2")
    e("v_bfe_u32 v4, v2, 2, 2")
    e("v_and_b32 v5, 3, v2")
    e("v_lshl_add_u32 v6, v3, 3, v4")
    e("v_lshlrev_b32 v6, 6, v6")
    e("v_lshl_add_u32 v6, v5, 3, v6")
    e("s_lshl_b32 s75, s3, 5")
    e(f"s_add_u32 s75, s75, {L_WT}")
    e("v_add_u32 v6, s75, v6")
    e("v_and_b32 v7, 7, v2")
    e("v_lshlrev_b32 v7, 9, v7")
    e("v_lshl_add_u32 v7, v3, 4, v7")
    e(f"v_add_u32 v7, {L_OA}, v7")
    A0, B0 = 32, 64
    for s in range(8):
        e(f"ds_read_b64_tr_b16 v[{A0+4*s}:{A0+4*s+1}], v6 offset:{s*2048}")
        e(f"ds_read_b64_tr_b16 v[{A0+4*s+2}:{A0+4*s+3}], v6 offset:{s*2048 + 256}")
        e(f"ds_read_b128 v[{B0+4*s}:{B0+4*s+3}], v7 offset:{s*64}")
        if s % 4 == 3:
            e("s_waitcnt lgkmcnt(0)")
    for s in range(8):
        c = "0" if s == 0 else "v[8:11]"
        e(f"v_mfma_f32_16x16x32_bf16 v[8:11], v[{A0+4*s}:{A0+4*s+3}], v[{B0+4*s}:{B0+4*s+3}], {c}")
    e("v_lshlrev_b32 v5, 15, v22")
    e("v_lshl_add_u32 v5, v3, 4, v5")
    e("s_lshr_b32 s75, s2, 4")
    e("s_lshl_b32 s75, s75, 11")
    e("s_and_b32 s76, s2, 7")
    e("s_lshl_b32 s76, s76, 8")
    e("s_add_u32 s75, s75, s76")
    e("s_bfe_u32 s76, s2, 0x10003")
    e("s_lshl_b32 s76, s76, 7")
    e("s_add_u32 s75, s75, s76")
    e("s_lshl_b32 s76, s3, 6")
    e("s_add_u32 s75, s75, s76")
    e(f"s_add_u32 s75, s75, {WP_OFF}")
    e("v_cmp_gt_u32 vcc, 8, v22")
    e("s_and_saveexec_b64 s[82:83], vcc")
    e("buffer_store_dwordx4 v[8:11], v5, s[40:43], s75 offen sc1")
    e("s_mov_b64 exec, s[82:83]")
    e.label("L_t4")
    e("s_and_b32 s75, s2, 31")
    e("s_cmp_lg_u32 s75, 0")
    e("s_cbranch_scc1 L_exit")
    e("s_lshr_b32 s77, s2, 5")
    e("s_lshl_b32 s75, s77, 10")
    e("v_lshlrev_b32 v4, 1, v0")
    e("buffer_load_ushort v44, v4, s[44:47], s75 offen")
    e("s_lshl_b32 s75, s77, 15")
    e(f"s_add_u32 s75, s75, {WP_OFF}")
    e("s_mov_b32 s90, 0")
    e("v_lshlrev_b32 v3, 2, v0")
    e.label("L_wppoll")
    for i in range(16):
        e(f"s_add_u32 s76, s75, {2048*i}")
        e(f"buffer_load_dword v{16+i}, v3, s[40:43], s76 offen sc1")
    e("s_waitcnt vmcnt(0)")
    e("v_max_u32 v40, v16, v17")
    for k in range(18, 32, 2):
        e(f"v_max3_u32 v40, v40, v{k}, v{k+1}")
    e("v_cmp_eq_u32 vcc, -1, v40")
    e("s_nop 1")
    e("s_cmp_eq_u64 vcc, 0")
    e("s_cbranch_scc1 L_wpok")
    e("s_add_u32 s90, s90, 1")
    e(f"s_cmp_ge_u32 s90, {POLL_LIMIT}")
    e("s_cbranch_scc1 L_wpok")
    e(f"s_sleep {SLEEP3}")
    e("s_branch L_wppoll")
    e.label("L_wpok")
    for i in range(1, 16):
        e(f"v_add_f32 v16, v16, v{16+i}")
    bf16r(e, 16)
    e("v_lshlrev_b32 v44, 16, v44")
    e("v_add_f32 v16, v16, v44")
    bf16r(e, 16)
    e(f"v_add_u32 v4, {L_H}, v3")
    e("ds_write_b32 v4, v16")
    e("s_waitcnt lgkmcnt(0)")
    e("s_barrier")
    stamp(4)
    e("s_cmp_lg_u32 s3, 0")
    e("s_cbranch_scc1 L_exit")
    e("v_lshlrev_b32 v7, 5, v2")
    e(f"v_add_u32 v7, {L_H}, v7")
    e("ds_read_b128 v[16:19], v7")
    e("ds_read_b128 v[20:23], v7 offset:16")
    e("s_waitcnt lgkmcnt(0)")
    for k in range(8):
        e(f"v_mov_b32 v{200+k}, v{16+k}")
    layernorm8(e, 16, 64, 92)
    layernorm8(e, 16, 64, 92)
    stamp(12, 0)
    e(f"s_mov_b32 s76, {TB_OFF}")
    e("s_mov_b32 s75, 4096")
    e("s_mov_b64 s[20:21], 0")
    e("v_mov_b32 v34, 8192")
    for k in range(8):
        e(f"v_bfe_u32 v24, v{16+k}, 16, 15")
        e(f"v_lshrrev_b32 v32, 31, v{16+k}")
        e("v_subrev_u32 v25, 12800, v24")
        e("v_cmp_eq_u32 vcc, 0, v24")
        e("v_cmp_le_u32 s[82:83], s75, v25")
        if opt.get("tlo"):
            e(f"s_mov_b32 s86, {opt['tlo']}")
            e(f"v_cmp_gt_u32 s[84:85], s86, v24")
            e("s_or_b64 s[82:83], s[82:83], s[84:85]")
        e("v_mad_u32_u24 v33, v32, s75, v25")
        e("s_nop 1")
        e("v_cndmask_b32 v33, v33, v34, s[82:83]")
        e("s_andn2_b64 s[82:83], s[82:83], vcc")
        e("s_or_b64 s[20:21], s[20:21], s[82:83]")
        e("v_lshlrev_b32 v33, 2, v33")
        e(f"buffer_load_dword v{208+k}, v33, s[40:43], s76 offen sc1")
    e("s_waitcnt vmcnt(0)")
    e("s_cmp_eq_u64 s[20:21], 0")
    e("s_cbranch_scc1 L_fast")
    e("v_lshlrev_b32 v7, 5, v2")
    e(f"v_add_u32 v8, {L_CB}, v7")
    e(f"v_add_u32 v9, {L_CB+2048}, v7")
    e("ds_write_b128 v8, v[16:19]")
    e("ds_write_b128 v8, v[20:23] offset:16")
    e("ds_write_b128 v9, v[208:211]")
    e("ds_write_b128 v9, v[212:215] offset:16")
    load_weights(e)
    e("s_waitcnt vmcnt(0) lgkmcnt(0)")
    prep_weights(e)
    e("s_mov_b32 s20, 0")
    e.label("L_sloop")
    e("s_lshl_b32 s21, s20, 2")
    e(f"s_add_u32 s21, s21, {L_CB}")
    e("v_mov_b32 v10, s21")
    e("ds_read_b32 v11, v10")
    e("s_waitcnt lgkmcnt(0)")
    e("v_readfirstlane_b32 s4, v11")
    e("s_bfe_u32 s21, s4, 0xf0010")
    e("s_cmp_eq_u32 s21, 0")
    e("s_cbranch_scc1 L_snext")
    if opt.get("tlo"):
        e(f"s_cmp_ge_u32 s21, {opt['tlo']}")
        e("s_cbranch_scc1 L_snext")
    else:
        e("s_sub_u32 s21, s21, 12800")
        e("s_cmp_lt_u32 s21, 4096")
        e("s_cbranch_scc1 L_snext")
    e("s_mov_b32 s5, s4")
    e("v_mov_b32 v112, 0")
    eval_F(e, 112)
    finish_F(e, [112])
    e("s_mov_b32 exec_lo, 0")
    e("s_mov_b32 exec_hi, 0x80000000")
    e("ds_write_b32 v10, v112 offset:2048")
    e("s_mov_b64 exec, -1")
    e.label("L_snext")
    e("s_add_u32 s20, s20, 1")
    e("s_cmp_lt_u32 s20, 512")
    e("s_cbranch_scc1 L_sloop")
    e("s_waitcnt lgkmcnt(0)")
    e("ds_read_b128 v[208:211], v9")
    e("ds_read_b128 v[212:215], v9 offset:16")
    e("s_waitcnt lgkmcnt(0)")
    e.label("L_fast")
    for k in range(8):
        e(f"v_add_f32 v{208+k}, v{208+k}, v{200+k}")
    for k in range(4):
        e(f"v_cvt_pk_bf16_f32 v{64+k}, v{208+2*k}, v{209+2*k}")
    e("v_lshlrev_b32 v8, 4, v2")
    e("s_lshl_b32 s75, s77, 10")
    e("buffer_store_dwordx4 v[64:67], v8, s[68:71], s75 offen")
    stamp(5)
    if opt.get("dbgst"):
        e("s_cmp_lg_u32 s2, 0")
        e("s_cbranch_scc1 L_exit")
        e("s_waitcnt vmcnt(0)")
        e("s_mov_b64 exec, 0xffff")
        e("v_lshlrev_b32 v250, 2, v2")
        e(f"s_mov_b32 s96, {ST_OFF}")
        e("buffer_load_dword v251, v250, s[40:43], s96 offen sc1")
        e("s_waitcnt vmcnt(0)")
        e("global_store_dword v250, v251, s[26:27]")
    e.label("L_exit")
    e("s_endpgm")
    for rl, bl in rares:
        e.label(rl)
        e(f"ds_bpermute_b32 v{T0+1}, v{BP0}, v{T0}")
        e("s_waitcnt lgkmcnt(0)")
        e(f"v_max_f32 v{T0}, v{T0}, v{T0+1}")
        e(f"ds_bpermute_b32 v{T0+1}, v{BP1}, v{T0}")
        e("s_waitcnt lgkmcnt(0)")
        e(f"v_max3_f32 v{T0}, v{T0}, v{T0+1}, v{MREF}")
        e(f"v_sub_f32 v{T0+1}, v{MREF}, v{T0}")
        e(f"v_mul_f32 v{T0+1}, s81, v{T0+1}")
        e(f"v_exp_f32 v{T0+1}, v{T0+1}")
        e("s_nop 0")
        for i in range(32):
            e(f"v_mul_f32 v{OA+i}, v{OA+i}, v{T0+1}")
        e(f"v_mul_f32 v{LSUM}, v{LSUM}, v{T0+1}")
        e(f"v_mov_b32 v{MREF}, v{T0}")
        e(f"v_mul_f32 v{MNEG}, s81, v{T0}")
        e(f"v_sub_f32 v{MNEG}, 0, v{MNEG}")
        e(f"v_add_f32 v{THR}, 0x40a00000, v{T0}")
        e(f"s_branch {bl}")


def main():
    opt = {}
    for a in sys.argv[2:]:
        k, v = a.split("=")
        opt[k] = {"0": False, "1": True}.get(v, v)
    e = E()
    e.raw(HEADER.rstrip("\n"))
    e.raw(f"; @launch grid=(256,1,1) block=(512,1,1) lds={LDS_TOTAL}")
    e.raw('.amdgcn_target "amdgcn-amd-amdhsa--gfx950"')
    e.raw(".text")
    gen(e, opt)
    e.raw('.section .rodata,"a"')
    e.raw(".p2align 6")
    e.raw(f""".amdhsa_kernel {KNAME}
  .amdhsa_next_free_vgpr 256
  .amdhsa_next_free_sgpr 102
  .amdhsa_accum_offset 256
  .amdhsa_group_segment_fixed_size 0
  .amdhsa_kernarg_size 104
  .amdhsa_user_sgpr_count 2
  .amdhsa_user_sgpr_kernarg_segment_ptr 1
  .amdhsa_system_sgpr_workgroup_id_x 1
.end_amdhsa_kernel""")
    open(sys.argv[1], "w").write(e.text())


main()
```

```python
import sys, struct, math

KNAME = "sequential_preLN__gqa_block_cached__mixer_token_mlp__decode_kernel"
HEADER = open("sequential_preLN__gqa_block_cached__mixer_token_mlp__decode.s.ref").read().split("; Override launch")[0]

Q_OFF = 0x0
PO_OFF = 0x10000
PML_OFF = 0x90000
WP_OFF = 0xA0000
ST_OFF = 0xE0000
CNT_OFF = 0xF0000
QG_OFF = 0x100000
TB_OFF = 0x120000
WS_USED = 0x180000

LOG2E = 0x3FB8AA3B
SCALE = 0x3DB504F3
NEGBIG = 0xF149F2CA

X = 131072
L_LN = X
L_CB = X
L_WT = X + 8192
L_Q = X + 24576
L_ST = X + 25600
L_OA = X + 26624
L_H = X + 30720
L_FL = X + 25600 + 512
L_P = X + 25600 + 528
L_QQ = X + 25600 + 576
LDS_TOTAL = 163840

POLL_LIMIT = 400000


class E:
    def __init__(self):
        self.lines = []
        self.lbl = 0

    def __call__(self, s):
        for ln in s.strip("\n").split("\n"):
            self.lines.append("    " + ln.strip())

    def label(self, name):
        self.lines.append(name + ":")

    def raw(self, s):
        self.lines.append(s)

    def newlabel(self, base):
        self.lbl += 1
        return f"L_{base}_{self.lbl}"

    def text(self):
        return "\n".join(self.lines) + "\n"


def srd(e, d, base_lo, nbytes):
    e(f"s_mov_b32 s{d}, s{base_lo}")
    e(f"s_mov_b32 s{d+1}, s{base_lo+1}")
    e(f"s_mov_b32 s{d+2}, {nbytes}")
    e(f"s_mov_b32 s{d+3}, 0x00020000")


def wave_allreduce_add(e, v, t, s0):
    e(f"s_nop 1")
    e(f"v_add_f32_dpp v{v}, v{v}, v{v} quad_perm:[1,0,3,2] row_mask:0xf bank_mask:0xf")
    e(f"s_nop 1")
    e(f"v_add_f32_dpp v{v}, v{v}, v{v} quad_perm:[2,3,0,1] row_mask:0xf bank_mask:0xf")
    e(f"s_nop 1")
    e(f"v_add_f32_dpp v{v}, v{v}, v{v} row_half_mirror row_mask:0xf bank_mask:0xf")
    e(f"s_nop 1")
    e(f"v_add_f32_dpp v{v}, v{v}, v{v} row_mirror row_mask:0xf bank_mask:0xf")
    e(f"s_nop 1")
    e(f"v_readlane_b32 s{s0}, v{v}, 0")
    e(f"v_readlane_b32 s{s0+1}, v{v}, 16")
    e(f"v_readlane_b32 s{s0+2}, v{v}, 32")
    e(f"v_readlane_b32 s{s0+3}, v{v}, 48")
    e(f"s_nop 1")
    e(f"v_mov_b32 v{t}, s{s0}")
    e(f"v_add_f32 v{t}, s{s0+1}, v{t}")
    e(f"v_add_f32 v{v}, s{s0+2}, v{t}")
    e(f"v_add_f32 v{v}, s{s0+3}, v{v}")


def bf16r(e, v):
    e(f"v_cvt_pk_bf16_f32 v{v}, v{v}, v{v}")
    e(f"v_lshlrev_b32 v{v}, 16, v{v}")


def layernorm8(e, x, t, s0):
    e(f"v_add_f32 v{t}, v{x}, v{x+1}")
    for i in range(2, 8):
        e(f"v_add_f32 v{t}, v{t}, v{x+i}")
    wave_allreduce_add(e, t, t + 1, s0)
    e(f"v_mul_f32 v{t}, 0x3b000000, v{t}")
    for i in range(8):
        e(f"v_sub_f32 v{t+2+i}, v{x+i}, v{t}")
    e(f"v_mul_f32 v{t+10}, v{t+2}, v{t+2}")
    for i in range(1, 8):
        e(f"v_fmac_f32 v{t+10}, v{t+2+i}, v{t+2+i}")
    wave_allreduce_add(e, t + 10, t + 1, s0)
    e(f"v_mul_f32 v{t+10}, 0x3b000000, v{t+10}")
    bf16r(e, t + 10)
    e(f"v_add_f32 v{t+10}, 0x3727c5ac, v{t+10}")
    bf16r(e, t + 10)
    e(f"v_sqrt_f32 v{t+10}, v{t+10}")
    e(f"s_nop 0")
    bf16r(e, t + 10)
    e(f"v_rcp_f32 v{t+11}, v{t+10}")
    bf16r(e, t)
    for i in range(8):
        e(f"v_sub_f32 v{x+i}, v{x+i}, v{t}")
    for i in range(0, 8, 2):
        e(f"v_cvt_pk_bf16_f32 v{t+2}, v{x+i}, v{x+i+1}")
        e(f"v_lshlrev_b32 v{x+i}, 16, v{t+2}")
        e(f"v_and_b32 v{x+i+1}, 0xffff0000, v{t+2}")
    for i in range(8):
        e(f"v_mul_f32 v{t+2}, v{x+i}, v{t+11}")
        e(f"v_fma_f32 v{t+3}, -v{t+2}, v{t+10}, v{x+i}")
        e(f"v_fma_f32 v{x+i}, v{t+3}, v{t+11}, v{t+2}")
    for i in range(0, 8, 2):
        e(f"v_cvt_pk_bf16_f32 v{t+2}, v{x+i}, v{x+i+1}")
        e(f"v_lshlrev_b32 v{x+i}, 16, v{t+2}")
        e(f"v_and_b32 v{x+i+1}, 0xffff0000, v{t+2}")


def unpack8(e, src, dst):
    for i in range(4):
        e(f"v_lshlrev_b32 v{dst+2*i}, 16, v{src+i}")
        e(f"v_and_b32 v{dst+2*i+1}, 0xffff0000, v{src+i}")


W1P, B1P, W2P = 40, 68, 96
TMP = 116


def eval_F(e, acc):
    for half in range(2):
        steps = []
        for jj in range(7):
            j = half * 7 + jj
            a = TMP + 6 * jj
            q = a + 2
            c = a + 4
            steps.append([
                f"v_pk_mul_f32 v[{a}:{a+1}], v[{W1P+2*j}:{W1P+2*j+1}], s[4:5]",
                f"v_cvt_pk_bf16_f32 v{c}, v{a}, v{a+1}",
                f"v_lshlrev_b32 v{a}, 16, v{c}",
                f"v_and_b32 v{a+1}, 0xffff0000, v{c}",
                f"v_pk_add_f32 v[{a}:{a+1}], v[{a}:{a+1}], v[{B1P+2*j}:{B1P+2*j+1}]",
                f"v_cvt_pk_bf16_f32 v{c}, v{a}, v{a+1}",
                f"v_lshlrev_b32 v{a}, 16, v{c}",
                f"v_and_b32 v{a+1}, 0xffff0000, v{c}",
                f"v_pk_mul_f32 v[{q}:{q+1}], v[{a}:{a+1}], v[{a}:{a+1}]",
                f"v_pk_fma_f32 v[{q}:{q+1}], v[{q}:{q+1}], s[14:15], v[38:39]",
                f"v_pk_mul_f32 v[{q}:{q+1}], v[{q}:{q+1}], v[{a}:{a+1}]",
                f"v_exp_f32 v{q}, v{q}",
                f"v_exp_f32 v{q+1}, v{q+1}",
                f"v_pk_add_f32 v[{q}:{q+1}], v[{q}:{q+1}], 1.0 op_sel_hi:[1,0]",
                f"v_rcp_f32 v{q}, v{q}",
                f"v_rcp_f32 v{q+1}, v{q+1}",
                f"v_pk_mul_f32 v[{q}:{q+1}], v[{q}:{q+1}], v[{a}:{a+1}]",
                f"v_cvt_pk_bf16_f32 v{c}, v{q}, v{q+1}",
                f"v_dot2_f32_bf16 v{acc}, v{c}, v{W2P+j}, v{acc}",
            ])
        for i in range(len(steps[0])):
            for jj in range(7):
                e(steps[jj][i])


def load_weights(e):
    e("v_mul_u32_u24 v13, 56, v2")
    for base, sr in ((160, 52), (176, 56), (96, 60)):
        e(f"buffer_load_dwordx4 v[{base}:{base+3}], v13, s[{sr}:{sr+3}], 0 offen")
        e(f"buffer_load_dwordx4 v[{base+4}:{base+7}], v13, s[{sr}:{sr+3}], 0 offen offset:16")
        e(f"buffer_load_dwordx4 v[{base+8}:{base+11}], v13, s[{sr}:{sr+3}], 0 offen offset:32")
        e(f"buffer_load_dwordx2 v[{base+12}:{base+13}], v13, s[{sr}:{sr+3}], 0 offen offset:48")
    e("v_mov_b32 v13, 0")
    e("buffer_load_ushort v192, v13, s[64:67], 0 offen")


def prep_weights(e):
    k0 = -2.0 * math.sqrt(2.0 / math.pi) * math.log2(math.e)
    k1 = k0 * 0.044715
    f2u = lambda f: struct.unpack("<I", struct.pack("<f", f))[0]
    e(f"s_mov_b32 s12, 0x{f2u(k0):08x}")
    e(f"s_mov_b32 s14, 0x{f2u(k1):08x}")
    e(f"s_mov_b32 s15, 0x{f2u(k1):08x}")
    e("v_mov_b32 v38, s12")
    e("v_mov_b32 v39, s12")
    for j in range(14):
        e(f"v_and_b32 v{W1P+2*j+1}, 0xffff0000, v{160+j}")
        e(f"v_lshlrev_b32 v{W1P+2*j}, 16, v{160+j}")
        e(f"v_and_b32 v{B1P+2*j+1}, 0xffff0000, v{176+j}")
        e(f"v_lshlrev_b32 v{B1P+2*j}, 16, v{176+j}")
    e("v_lshlrev_b32 v36, 16, v192")


def finish_F(e, accs):
    e("s_nop 2")
    for mod in ["quad_perm:[1,0,3,2] row_mask:0xf", "quad_perm:[2,3,0,1] row_mask:0xf",
                "row_half_mirror row_mask:0xf", "row_mirror row_mask:0xf",
                "row_bcast:15 row_mask:0xa", "row_bcast:31 row_mask:0xc"]:
        e("s_nop 1")
        for a in accs:
            e(f"v_add_f32_dpp v{a}, v{a}, v{a} {mod} bank_mask:0xf")
    for a in accs:
        bf16r(e, a)
        e(f"v_add_f32 v{a}, v{a}, v36")
        bf16r(e, a)


def gen(e, opt):
    NT = opt.get("nt", "nt")
    STAMP = opt.get("stamp", False)
    SLEEP = int(opt.get("sleep", 1))
    SLEEP2 = int(opt.get("sleep2", 1))
    SLEEP3 = int(opt.get("sleep3", 1))

    def stamp(k, wave=0):
        if not STAMP:
            return
        lab = e.newlabel("st")
        e(f"s_cmp_lg_u32 s3, {wave}")
        e(f"s_cbranch_scc1 {lab}")
        e("s_memrealtime s[92:93]")
        e("s_waitcnt lgkmcnt(0)")
        e("s_mov_b64 s[94:95], exec")
        e("s_mov_b64 exec, 1")
        e("v_mov_b32 v250, s92")
        e("v_mov_b32 v251, 0")
        e("s_lshl_b32 s96, s2, 6")
        e(f"s_add_u32 s96, s96, {ST_OFF + 4*k}")
        e("buffer_store_dword v250, v251, s[40:43], s96 offen")
        e("s_mov_b64 exec, s[94:95]")
        e.label(lab)

    e.raw(f".globl {KNAME}")
    e.raw(".p2align 8")
    e.raw(f".type {KNAME},@function")
    e.label(KNAME)
    e("s_cmp_ge_u32 s2, 256")
    e("s_cbranch_scc1 L_exit")
    e("s_load_dwordx8 s[4:11], s[0:1], 0")
    e("s_load_dwordx2 s[12:13], s[0:1], 32")
    e("s_load_dwordx8 s[16:23], s[0:1], 48")
    e("s_load_dwordx4 s[24:27], s[0:1], 80")
    e("s_load_dwordx2 s[28:29], s[0:1], 96")
    e("s_memrealtime s[30:31]")
    e("v_lshrrev_b32 v1, 6, v0")
    e("v_and_b32 v2, 63, v0")
    e("v_lshrrev_b32 v3, 4, v2")
    e("v_readfirstlane_b32 s3, v1")
    for r in range(4, 36):
        e(f"v_mov_b32 v{r}, 0")
    e("s_mov_b32 s88, 0")
    e("s_mov_b32 s89, 0")
    e("s_mov_b32 s74, 0")
    e("s_mov_b32 s78, 0")
    e("s_mov_b32 s79, 0")
    e("v_and_b32 v22, 15, v2")
    if opt.get("xmap", True):
        e("s_and_b32 s75, s2, 7")
        e("s_lshr_b32 s73, s75, 1")
        e("s_xor_b32 s76, s75, s73")
        e("s_and_b32 s76, s76, 1")
        e("s_lshr_b32 s72, s2, 3")
        e("s_lshl_b32 s72, s72, 1")
        e("s_add_u32 s72, s72, s76")
    else:
        e("s_lshr_b32 s72, s2, 2")
        e("s_and_b32 s73, s2, 3")
    e("s_lshl_b32 s75, s72, 21")
    e("s_waitcnt lgkmcnt(0)")
    e("s_add_u32 s32, s6, s75")
    e("s_addc_u32 s33, s7, 0")
    e("s_mov_b32 s34, 0x200000")
    e("s_mov_b32 s35, 0x00020000")
    e("s_add_u32 s36, s8, s75")
    e("s_addc_u32 s37, s9, 0")
    e("s_mov_b32 s38, 0x200000")
    e("s_mov_b32 s39, 0x00020000")
    srd(e, 40, 28, WS_USED)
    srd(e, 44, 4, 8192)
    srd(e, 48, 10, 4 << 20)
    srd(e, 52, 16, 3584)
    srd(e, 56, 18, 3584)
    srd(e, 60, 20, 3584)
    srd(e, 64, 22, 2)
    srd(e, 68, 24, 8192)
    srd(e, 84, 12, 4 << 20)
    e(f"s_mov_b32 s80, 0x{SCALE:08x}")
    e(f"s_mov_b32 s81, 0x{LOG2E:08x}")
    stamp(0)
    e("s_lshl_b32 s75, s3, 10")
    e("v_lshlrev_b32 v5, 4, v2")
    e("buffer_load_dwordx4 v[8:11], v5, s[44:47], s75 offen")
    e("s_cmp_ge_u32 s3, 4")
    e("s_cbranch_scc1 L_helper_h1")

    VK, VV = 12, 16
    for i in range(4):
        e(f"v_add_u32 v23, {4*i}, v3")
        e(f"v_xor_b32 v23, v23, v22")
        e(f"v_lshlrev_b32 v23, 4, v23")
        e(f"v_lshl_add_u32 v{VK+i}, v3, 8, v23")
    for i in range(2):
        e(f"v_add_u32 v23, {4*i}, v3")
        e(f"v_lshlrev_b32 v23, 1, v23")
        e(f"v_xor_b32 v23, v23, v22")
        e(f"v_lshlrev_b32 v23, 4, v23")
        e(f"v_lshl_add_u32 v{VV+i}, v3, 8, v23")
    if opt.get("noswz"):
        for r in range(VK, VK + 6):
            e(f"v_lshlrev_b32 v{r}, 4, v2")
    e("s_lshl_b32 s74, s3, 15")
    NST = int(opt.get("nst", 8))
    LA = int(opt.get("la", 3))
    STEAL = opt.get("steal", True)

    def issue(kind, slot, soff):
        srdn = 32 if kind == "K" else 36
        ldsoff = (0 if kind == "K" else 16384) + slot * 8192
        for half in range(2):
            e(f"s_add_u32 s76, s74, {ldsoff + half*4096}")
            e(f"s_mov_b32 m0, s76")
            if half == 1:
                e(f"s_add_u32 s77, s{soff}, 16384")
            else:
                e(f"s_mov_b32 s77, s{soff}")
            for i in range(4):
                vo = (VK + i) if kind == "K" else (VV + (i & 1))
                e(f"buffer_load_dwordx4 v{vo}, s[{srdn}:{srdn+3}], s77 offen offset:{1024*i} {NT} lds")

    e("s_lshl_b32 s97, s3, 12")
    e("s_lshl_b32 s75, s73, 19")
    e("s_add_u32 s78, s75, s97")
    e("s_add_u32 s79, s78, 32768")
    e(f"v_mov_b32 v18, {L_QQ + 8}")
    e("s_lshl_b32 s75, s3, 2")
    e(f"s_add_u32 s75, s75, {L_P}")
    e("v_mov_b32 v19, s75")
    e("v_mov_b32 v20, 2")
    e("v_mov_b32 v23, 0")
    PRE = int(opt.get("pre", 0))
    units = [("K", 0, 78), ("V", 0, 78), ("K", 1, 79), ("V", 1, 79)]

    def issue_units(lo, hi):
        for u in range(lo, hi):
            issue(*units[u])
    PACE = int(opt.get("pace", 4))
    PRE = int(opt.get("pre", 0))
    if opt.get("prex"):
        e("s_waitcnt vmcnt(0)")
        issue_units(0, PRE)
    else:
        issue_units(0, PRE)
        e(f"s_waitcnt vmcnt({PRE*8})")
    e("s_branch L_ln")

    e.label("L_helper_h1")
    e("s_cmp_lg_u32 s3, 5")
    e("s_cbranch_scc1 L_h1_noclear")
    for i in range(4):
        e(f"v_mov_b32 v{16+i}, -1")
    e("v_lshlrev_b32 v12, 11, v3")
    e("v_lshl_add_u32 v12, v22, 5, v12")
    e("s_lshl_b32 s75, s72, 13")
    e("s_lshl_b32 s76, s73, 9")
    e("s_add_u32 s75, s75, s76")
    e(f"s_add_u32 s75, s75, {PO_OFF}")
    e("buffer_store_dwordx4 v[16:19], v12, s[40:43], s75 offen sc1")
    e("buffer_store_dwordx4 v[16:19], v12, s[40:43], s75 offen offset:16 sc1")
    e("v_lshrrev_b32 v12, 3, v2")
    e("v_lshlrev_b32 v12, 15, v12")
    e("v_and_b32 v13, 7, v2")
    e("v_lshl_add_u32 v12, v13, 4, v12")
    e("s_lshr_b32 s75, s2, 4")
    e("s_lshl_b32 s75, s75, 11")
    e("s_and_b32 s76, s2, 7")
    e("s_lshl_b32 s76, s76, 8")
    e("s_add_u32 s75, s75, s76")
    e("s_bfe_u32 s76, s2, 0x10003")
    e("s_lshl_b32 s76, s76, 7")
    e("s_add_u32 s75, s75, s76")
    e(f"s_add_u32 s75, s75, {WP_OFF}")
    e("buffer_store_dwordx4 v[16:19], v12, s[40:43], s75 offen sc1")
    e("v_lshlrev_b32 v12, 5, v2")
    e("s_lshl_b32 s75, s72, 7")
    e("s_lshl_b32 s76, s73, 3")
    e("s_add_u32 s75, s75, s76")
    e(f"s_add_u32 s75, s75, {PML_OFF}")
    e("s_mov_b64 exec, 15")
    e("buffer_store_dwordx2 v[16:17], v12, s[40:43], s75 offen sc1")
    e("s_mov_b64 exec, -1")
    e("s_and_b32 s75, s2, 31")
    e("s_cmp_ge_u32 s75, 8")
    e("s_cbranch_scc1 L_h1_cleared")
    e("s_lshl_b32 s75, s75, 3")
    e("s_lshr_b32 s76, s2, 5")
    e("s_add_u32 s75, s75, s76")
    e("s_lshl_b32 s75, s75, 8")
    e(f"s_add_u32 s75, s75, {CNT_OFF}")
    e("v_mov_b32 v12, 0")
    e("v_lshlrev_b32 v13, 6, v2")
    e("s_mov_b64 exec, 15")
    e("buffer_store_dword v12, v13, s[40:43], s75 offen sc1")
    e("s_mov_b64 exec, -1")
    e.label("L_h1_cleared")
    e("s_waitcnt vmcnt(0)")
    e.label("L_h1_noclear")
    e("s_lshr_b32 s75, s2, 5")
    e("s_lshl_b32 s75, s75, 3")
    e("s_and_b32 s76, s2, 7")
    e("s_add_u32 s75, s75, s76")
    e("s_lshl_b32 s75, s75, 2")
    e("s_lshr_b32 s76, s2, 3")
    e("s_and_b32 s76, s76, 3")
    e("s_add_u32 s88, s75, s76")
    e("v_lshrrev_b32 v12, 1, v2")
    e("v_lshlrev_b32 v12, 13, v12")
    e("v_and_b32 v13, 1, v2")
    e("v_lshl_add_u32 v12, v13, 4, v12")
    e("s_sub_u32 s89, s3, 4")
    e("s_lshl_b32 s75, s88, 5")
    e("s_lshl_b32 s76, s89, 18")
    e("s_add_u32 s75, s75, s76")
    e("s_lshl_b32 s76, s89, 10")
    e(f"s_add_u32 s76, s76, {L_WT}")
    for i in range(4):
        e("s_mov_b32 m0, s76")
        e("s_nop 0")
        e("buffer_load_dwordx4 v12, s[48:51], s75 offen lds")
        if i < 3:
            e("s_add_u32 s76, s76, 4096")
            e(f"s_add_u32 s75, s75, {128*8192}")
    WLATE = opt.get("wlate", True)
    if not WLATE:
        load_weights(e)
    e("v_mov_b32 v13, 0")
    e(f"v_mov_b32 v14, {L_FL}")
    e("v_mov_b32 v15, 0")
    e("v_mov_b32 v16, 0")
    e("ds_write_b64 v14, v[15:16]") if False else None
    e("ds_write_b32 v14, v13")
    e("ds_write_b32 v14, v13 offset:4")
    e("ds_write_b32 v14, v13 offset:12")
    e("s_lshl_b32 s75, s73, 4")
    e("v_add_u32 v15, s75, v2")
    e(f"v_cmp_gt_u32 vcc, {NST}, v2")
    e("v_lshlrev_b32 v16, 2, v2")
    e(f"v_add_u32 v16, {L_QQ}, v16")
    e("v_cndmask_b32 v15, -1, v15, vcc")
    e("v_mov_b32 v17, -1")
    e("ds_write_b32 v16, v15")
    e("s_mov_b64 exec, 0xffffffff")
    e("ds_write_b32 v16, v17 offset:256")
    e("s_mov_b64 exec, 15")
    e(f"v_lshlrev_b32 v16, 2, v2")
    e(f"v_add_u32 v16, {L_P}, v16")
    e("ds_write_b32 v16, v13")
    e("s_mov_b64 exec, -1")
    e(f"s_waitcnt vmcnt({4 if WLATE else 17})")
    e.label("L_ln")
    stamp(9, 4)
    unpack8(e, 8, 24)
    layernorm8(e, 24, 40, 92)
    for i in range(4):
        e(f"v_cvt_pk_bf16_f32 v{32+i}, v{24+2*i}, v{24+2*i+1}")
    e("s_lshl_b32 s75, s3, 10")
    e(f"s_add_u32 s75, s75, {L_LN}")
    e("v_add_u32 v6, s75, v5")
    e("ds_write_b128 v6, v[32:35]")
    e("s_cmp_lt_u32 s3, 4")
    e("s_cbranch_scc1 L_b1_s")
    e("s_waitcnt vmcnt(0)")
    e.label("L_b1_s")
    e("s_waitcnt lgkmcnt(0)")
    e("s_barrier")
    e("s_cmp_lt_u32 s3, 4")
    e("s_cbranch_scc1 L_s_pre")
    e("s_cmp_lg_u32 s3, 4")
    e("s_cbranch_scc1 L_table")
    stamp(6, 4)
    e("v_bfe_u32 v4, v2, 2, 2")
    e("v_and_b32 v5, 3, v2")
    e("v_lshl_add_u32 v6, v3, 3, v4")
    e("v_lshlrev_b32 v6, 5, v6")
    e("v_lshl_add_u32 v6, v5, 3, v6")
    e(f"v_add_u32 v6, {L_WT}, v6")
    e("v_and_b32 v7, 7, v2")
    e("v_lshlrev_b32 v7, 10, v7")
    e("v_lshl_add_u32 v7, v3, 4, v7")
    e(f"v_add_u32 v7, {L_LN}, v7")
    A0, B0 = 32, 112
    for hf in range(2):
        for s8 in range(8):
            s = hf * 8 + s8
            e(f"ds_read_b64_tr_b16 v[{A0+4*s}:{A0+4*s+1}], v6 offset:{s*1024}")
            e(f"ds_read_b64_tr_b16 v[{A0+4*s+2}:{A0+4*s+3}], v6 offset:{s*1024 + 128}")
            e(f"ds_read_b128 v[{B0+4*s8}:{B0+4*s8+3}], v7 offset:{s*64}")
            if s8 % 4 == 3:
                e("s_waitcnt lgkmcnt(0)")
        for s8 in range(8):
            s = hf * 8 + s8
            c = "0" if s == 0 else "v[8:11]"
            e(f"v_mfma_f32_16x16x32_bf16 v[8:11], v[{A0+4*s}:{A0+4*s+3}], v[{B0+4*s8}:{B0+4*s8+3}], {c}")
        if hf == 0:
            e("s_nop 7")
    e("s_memrealtime s[76:77]")
    e("v_lshlrev_b32 v5, 6, v22")
    e("v_lshl_add_u32 v5, v3, 4, v5")
    e("s_lshl_b32 s75, s88, 9")
    e(f"s_add_u32 s75, s75, {QG_OFF}")
    e("s_nop 4")
    e("s_waitcnt lgkmcnt(0)")
    e("v_cvt_pk_bf16_f32 v12, v8, v9")
    e("v_cvt_pk_bf16_f32 v13, v10, v11")
    e("v_mov_b32 v14, s76")
    e("v_mov_b32 v15, s77")
    e("v_cmp_gt_u32 vcc, 8, v22")
    e("s_and_saveexec_b64 s[82:83], vcc")
    e("buffer_store_dwordx4 v[12:15], v5, s[40:43], s75 offen sc1")
    e("s_mov_b64 exec, s[82:83]")
    QS = int(opt.get("qs", 0))
    if QS:
        if QS == 2:
            e("s_waitcnt vmcnt(0)")
        e(f"v_mov_b32 v29, {L_FL}")
        e("v_mov_b32 v30, 1")
        e("ds_write_b32 v29, v30 offset:12")
    e("v_lshrrev_b32 v5, 1, v2")
    e("v_lshlrev_b32 v5, 9, v5")
    e("v_and_b32 v6, 1, v2")
    e("v_lshl_add_u32 v5, v6, 5, v5")
    e("s_and_b32 s75, s72, 7")
    e("s_lshl_b32 s75, s75, 14")
    e("s_lshr_b32 s76, s72, 3")
    e("s_lshl_b32 s76, s76, 6")
    e("s_add_u32 s75, s75, s76")
    e(f"s_add_u32 s75, s75, {QG_OFF}")
    e("s_sub_u32 s30, s30, 2000")
    e("s_subb_u32 s31, s31, 0")
    e("v_mov_b32 v20, s31")
    e("v_mov_b32 v24, s88")
    e("v_mov_b32 v25, 1")
    e("s_and_b32 s76, s72, 7")
    e("s_lshl_b32 s76, s76, 5")
    e("v_and_b32 v26, 7, v2")
    e("v_lshlrev_b32 v26, 2, v26")
    e("v_add_u32 v26, s76, v26")
    e("s_mov_b32 s90, 0")
    e("s_mov_b32 s91, 0x01010101")
    e("s_mov_b32 s77, 0")
    e("s_mov_b32 s76, 0x100000")
    e.label("L_qpoll")
    e("buffer_load_dwordx4 v[8:11], v5, s[40:43], s75 offen sc1")
    e("buffer_load_dwordx4 v[16:19], v5, s[40:43], s75 offen offset:16 sc1")
    e("s_waitcnt vmcnt(0)")
    e("s_cmp_lg_u32 s77, 0")
    e("s_cbranch_scc1 L_qflagged")
    stamp(7, 4)
    e("s_mov_b32 s77, 1")
    e("s_mov_b64 exec, 1")
    e("global_store_byte v24, v25, s[26:27] sc1")
    e("s_mov_b64 exec, -1")
    e.label("L_qflagged")
    e("v_subrev_co_u32 v21, vcc, s30, v10")
    e("s_nop 1")
    e("v_subb_co_u32 v23, vcc, v11, v20, vcc")
    e("v_subrev_co_u32 v27, vcc, s30, v18")
    e("s_nop 1")
    e("v_subb_co_u32 v28, vcc, v19, v20, vcc")
    e("v_or_b32 v23, v23, v28")
    e("v_max_u32 v21, v21, v27")
    e("v_cmp_ne_u32 vcc, 0, v23")
    e("v_cmp_le_u32 s[82:83], s76, v21")
    e("s_or_b64 vcc, vcc, s[82:83]")
    e("s_cmp_eq_u64 vcc, 0")
    e("s_cbranch_scc1 L_qready")
    e("s_add_u32 s90, s90, 1")
    e(f"s_cmp_ge_u32 s90, {POLL_LIMIT}")
    e("s_cbranch_scc1 L_qready")
    e("s_and_b32 s82, s90, 63")
    e("s_cmp_lg_u32 s82, 0")
    e("s_cbranch_scc1 L_qsleep")
    e("global_load_dword v21, v26, s[26:27] sc1")
    e("s_waitcnt vmcnt(0)")
    e("v_cmp_ne_u32 vcc, s91, v21")
    e("s_nop 1")
    e("s_cmp_lg_u64 vcc, 0")
    e("s_cbranch_scc1 L_qsleep")
    e("buffer_load_dwordx4 v[8:11], v5, s[40:43], s75 offen sc1")
    e("buffer_load_dwordx4 v[16:19], v5, s[40:43], s75 offen offset:16 sc1")
    e("s_waitcnt vmcnt(0)")
    e("s_branch L_qready")
    e.label("L_qsleep")
    e(f"s_sleep {SLEEP}")
    e("s_branch L_qpoll")
    e.label("L_qready")
    stamp(8, 4)
    e("v_mov_b32 v10, v16")
    e("v_mov_b32 v11, v17")
    e("v_lshlrev_b32 v6, 4, v2")
    e(f"v_add_u32 v6, {L_Q}, v6")
    e("ds_write_b128 v6, v[8:11]")
    e("s_waitcnt lgkmcnt(0)")
    e(f"v_mov_b32 v14, {L_FL}")
    e("v_mov_b32 v15, 1")
    e("ds_write_b32 v14, v15")
    e("v_lshrrev_b32 v12, 2, v2")
    e("v_lshlrev_b32 v12, 10, v12")
    e("v_and_b32 v13, 3, v2")
    e("v_lshl_add_u32 v12, v13, 4, v12")
    e("s_lshr_b32 s75, s2, 4")
    e("s_lshl_b32 s75, s75, 18")
    e("s_and_b32 s76, s2, 7")
    e("s_lshl_b32 s76, s76, 7")
    e("s_add_u32 s75, s75, s76")
    e("s_bfe_u32 s76, s2, 0x10003")
    e("s_lshl_b32 s76, s76, 6")
    e("s_add_u32 s75, s75, s76")
    e(f"s_mov_b32 s76, {L_WT}")
    for it in range(16):
        e("s_mov_b32 m0, s76")
        e("s_nop 0")
        e("buffer_load_dwordx4 v12, s[84:87], s75 offen lds")
        if it < 15:
            e("s_add_u32 s76, s76, 1024")
            e("s_add_u32 s75, s75, 16384")
    e("s_branch L_table")
    e.label("L_s_pre")
    if QS:
        e(f"v_mov_b32 v5, {L_FL}")
        e("s_mov_b32 s90, 0")
        e.label("L_swait")
        e(f"ds_read_b32 v6, v5 offset:{0 if QS == 3 else 12}")
        e("s_waitcnt lgkmcnt(0)")
        e("v_readfirstlane_b32 s75, v6")
        e("s_cmp_lg_u32 s75, 0")
        e("s_cbranch_scc1 L_sgo")
        e("s_add_u32 s90, s90, 1")
        e(f"s_cmp_ge_u32 s90, {POLL_LIMIT*20}")
        e("s_cbranch_scc1 L_sgo")
        e("s_branch L_swait")
        e.label("L_sgo")
    e("v_mov_b32 v23, 0")
    if PRE < 4:
        if PRE > 0:
            e(f"s_waitcnt vmcnt({PACE})")
        issue_units(PRE, PRE + 1)
    KA, VA = 24, 28
    for i in range(4):
        e(f"v_add_u32 v23, {4*i}, v3")
        e(f"v_xor_b32 v23, v23, v22")
        e(f"v_lshlrev_b32 v23, 4, v23")
        e(f"v_lshl_add_u32 v23, v22, 8, v23")
        e(f"v_add_u32 v{KA+i}, s74, v23")
    e("v_bfe_u32 v40, v2, 2, 2")
    e("v_lshl_add_u32 v40, v3, 2, v40")
    e("v_and_b32 v41, 7, v40")
    e("v_lshlrev_b32 v41, 1, v41")
    e("v_bfe_u32 v42, v2, 1, 1")
    e("v_and_b32 v43, 1, v2")
    e("v_lshlrev_b32 v44, 8, v40")
    e("v_lshl_add_u32 v44, v43, 3, v44")
    e("v_add_u32 v44, s74, v44")
    e("v_add_u32 v44, 16384, v44")
    for j in range(8):
        e(f"v_xor_b32 v23, {2*j}, v41")
        e(f"v_add_u32 v23, v23, v42")
        e(f"v_lshl_add_u32 v{VA+j}, v23, 4, v44")
    QF, KF, VF, S0, P0, T0, OA = 36, 52, 84, 116, 124, 128, 144
    MREF, MNEG, THR, LSUM = 136, 137, 138, 139
    BP0, BP1 = 140, 141
    for i in range(32):
        e(f"v_mov_b32 v{OA+i}, 0")
    for i in range(16):
        e(f"v_mov_b32 v{QF+i}, 0")
    e(f"v_mov_b32 v{MREF}, 0x{NEGBIG:08x}")
    e(f"v_mov_b32 v{THR}, 0x{NEGBIG:08x}")
    e(f"v_mov_b32 v{MNEG}, 0")
    e(f"v_mov_b32 v{LSUM}, 0")
    e(f"v_xor_b32 v{BP0}, 16, v2")
    e(f"v_lshlrev_b32 v{BP0}, 2, v{BP0}")
    e(f"v_xor_b32 v{BP1}, 32, v2")
    e(f"v_lshlrev_b32 v{BP1}, 2, v{BP1}")
    e("v_lshlrev_b32 v4, 8, v22")
    e("v_lshl_add_u32 v4, v3, 4, v4")
    e(f"v_add_u32 v4, {L_Q}, v4")
    e("v_mov_b32 v23, 0")
    NSPIN = int(opt.get("nspin", 8))
    e(f"v_mov_b32 v5, {L_FL}")
    for u in range(PRE + 1, 4):
        if NSPIN:
            e("s_mov_b32 s90, 0")
            e.label(f"L_pw{u}")
            e("ds_read_b32 v6, v5")
            e("s_waitcnt lgkmcnt(0)")
            e("v_readfirstlane_b32 s75, v6")
            e("s_cmp_lg_u32 s75, 0")
            e(f"s_cbranch_scc1 L_pg{u}")
            e("s_add_u32 s90, s90, 1")
            e(f"s_cmp_ge_u32 s90, {NSPIN}")
            e(f"s_cbranch_scc1 L_pg{u}")
            e("s_sleep 1")
            e(f"s_branch L_pw{u}")
            e.label(f"L_pg{u}")
        else:
            e(f"s_waitcnt vmcnt({PACE})")
        issue_units(u, u + 1)
    RPF = opt.get("rpf", True)
    if RPF:
        if NSPIN:
            e("s_mov_b32 s90, 0")
            e.label("L_pw9")
            e("ds_read_b32 v6, v5")
            e("s_waitcnt lgkmcnt(0)")
            e("v_readfirstlane_b32 s75, v6")
            e("s_cmp_lg_u32 s75, 0")
            e("s_cbranch_scc1 L_pg9")
            e("s_add_u32 s90, s90, 1")
            e(f"s_cmp_ge_u32 s90, {NSPIN}")
            e("s_cbranch_scc1 L_pg9")
            e("s_sleep 1")
            e("s_branch L_pw9")
            e.label("L_pg9")
        e("s_add_u32 s76, s78, 65536")
        e("s_add_u32 s77, s76, 16384")
        for half in range(2):
            for i in range(4):
                r = 176 + (half * 4 + i) * 4
                e(f"buffer_load_dwordx4 v[{r}:{r+3}], v{VK+i}, s[32:35], s{76+half} offen offset:{1024*i} {NT}")
        for half in range(2):
            for i in range(4):
                r = 208 + (half * 4 + i) * 4
                e(f"buffer_load_dwordx4 v[{r}:{r+3}], v{VV+(i&1)}, s[36:39], s{76+half} offen offset:{1024*i} {NT}")
        e("v_lshlrev_b32 v240, 4, v2")
        e("v_add_u32 v240, s74, v240")
        e("s_mov_b32 s99, 1")
    e(f"v_mov_b32 v5, {L_FL}")
    e("s_mov_b32 s90, 0")
    if opt.get("nowait"):
        e("s_branch L_qhere")
    e.label("L_qwait")
    e("ds_read_b32 v6, v5")
    e("s_waitcnt lgkmcnt(0)")
    e("v_readfirstlane_b32 s75, v6")
    e("s_cmp_lg_u32 s75, 0")
    e("s_cbranch_scc1 L_qhere")
    e("s_add_u32 s90, s90, 1")
    e(f"s_cmp_ge_u32 s90, {POLL_LIMIT*20}")
    e("s_cbranch_scc1 L_qhere")
    e("s_sleep 1")
    e("s_branch L_qwait")
    e.label("L_qhere")
    stamp(1)
    e("v_cmp_gt_u32 vcc, 4, v22")
    e("s_and_saveexec_b64 s[82:83], vcc")
    for i in range(4):
        e(f"ds_read_b128 v[{QF+4*i}:{QF+4*i+3}], v4 offset:{64*i}")
    e("s_mov_b64 exec, s[82:83]")
    e("s_waitcnt lgkmcnt(0)")
    if STAMP:
        e("s_waitcnt vmcnt(0)")
    if opt.get("itall"):
        e("v_mov_b32 v245, 0")
        e("s_memrealtime s[100:101]")
        e("s_waitcnt lgkmcnt(0)")
        e("s_nop 3")
        e("v_writelane_b32 v245, s100, 1")
        e("v_writelane_b32 v245, s30, 0")
    e(f"s_setprio {int(opt.get('prio', 2))}")
    e.label("L_loop")
    rares = []
    NOC = int(opt.get("noc", 0))
    e_real = e
    class F:
        def __call__(self, x):
            op = x.split()[0]
            if NOC >= 1 and (op.startswith("v_mfma") or op.startswith("v_exp") or op.startswith("v_cvt") or op.startswith("v_fma") or op.startswith("v_mul") or op.startswith("v_max") or op.startswith("v_add_f32") or op.startswith("v_lshlrev") or op.startswith("v_and") or op.startswith("v_cmp") or op == "s_cbranch_vccnz"):
                return
            if NOC >= 2 and op.startswith("ds_read"):
                return
            e_real(x)
        def label(self, n): e_real.label(n)
        def newlabel(self, b): return e_real.newlabel(b)
    e = F()
    VEARLY = opt.get("vearly", False)

    def vpart(slot):
        e("s_waitcnt vmcnt(24)")
        for j in range(8):
            for hb in range(2):
                r = VF + j * 4 + hb * 2
                e(f"ds_read_b64_tr_b16 v[{r}:{r+1}], v{VA+j} offset:{slot*8192 + hb*4096}")
        e("s_waitcnt lgkmcnt(0)")
        if RPF and slot == 0:
            e_real("s_cmp_eq_u32 s99, 0")
            e_real("s_cbranch_scc1 L_rv0")
            for k in range(8):
                e_real(f"ds_write_b128 v240, v[{208+4*k}:{211+4*k}] offset:{16384 + 1024*k}")
            e_real("s_mov_b32 s99, 0")
            e_real("s_branch L_rv1")
            e_real.label("L_rv0")
        issue("V", slot, 78 + slot)
        if RPF and slot == 0:
            e_real.label("L_rv1")

    for slot in range(2):
        e("s_waitcnt vmcnt(24)")
        for u in range(2):
            for i in range(4):
                r = KF + (u * 4 + i) * 4
                e(f"ds_read_b128 v[{r}:{r+3}], v{KA+i} offset:{slot*8192 + u*4096}")
        e_real("ds_write_b32 v19, v20")
        if opt.get("itall"):
            e_real("v_readfirstlane_b32 s90, v20")
            e_real("s_memrealtime s[100:101]")
            e_real("s_waitcnt lgkmcnt(0)")
            e_real("s_nop 3")
            e_real("s_mov_b32 m0, s90")
            e_real("s_nop 3")
            e_real("v_writelane_b32 v245, s100, m0")
        if opt.get("itst"):
            lab = e_real.newlabel("it")
            e_real("v_readfirstlane_b32 s90, v20")
            e_real("s_cmp_eq_u32 s90, 6")
            e_real(f"s_cbranch_scc0 {lab}a")
            e_real("s_memrealtime s[100:101]")
            e_real("s_waitcnt lgkmcnt(0)")
            e_real("s_mov_b32 s98, s100")
            e_real.label(f"{lab}a")
            e_real("s_cmp_eq_u32 s90, 14")
            e_real(f"s_cbranch_scc0 {lab}b")
            e_real("s_memrealtime s[100:101]")
            e_real("s_waitcnt lgkmcnt(0)")
            e_real("s_mov_b32 s99, s100")
            e_real.label(f"{lab}b")
        e_real("s_mov_b32 s90, 0")
        e_real.label(f"L_qq{slot}")
        e_real("ds_read_b32 v21, v18")
        e_real("s_waitcnt lgkmcnt(0)")
        e_real("v_readfirstlane_b32 s75, v21")
        e_real("s_add_u32 s90, s90, 1")
        e_real("s_cmp_lt_u32 s90, 0x1000000")
        e_real("s_cselect_b32 s75, s75, 64")
        e_real("s_cmp_eq_u32 s75, -1")
        e_real(f"s_cbranch_scc1 L_qq{slot}")
        e_real("v_add_u32 v18, 4, v18")
        e_real("v_add_u32 v20, 1, v20")
        e("s_lshl_b32 s75, s75, 15")
        e(f"s_add_u32 s{78+slot}, s75, s97")
        if RPF and slot == 0:
            e_real("s_cmp_eq_u32 s99, 0")
            e_real("s_cbranch_scc1 L_rk0")
            e_real("s_waitcnt vmcnt(0)")
            for k in range(8):
                e_real(f"ds_write_b128 v240, v[{176+4*k}:{179+4*k}] offset:{1024*k}")
            e_real("s_branch L_rk1")
            e_real.label("L_rk0")
        issue("K", slot, 78 + slot)
        if RPF and slot == 0:
            e_real.label("L_rk1")
        if VEARLY:
            vpart(slot)
        for i in range(4):
            for u in range(2):
                r = KF + (u * 4 + i) * 4
                c = "0" if i == 0 else f"v[{S0+4*u}:{S0+4*u+3}]"
                e(f"v_mfma_f32_16x16x32_bf16 v[{S0+4*u}:{S0+4*u+3}], v[{r}:{r+3}], v[{QF+4*i}:{QF+4*i+3}], {c}")
        e("s_nop 7")
        for i in range(4):
            e(f"v_cvt_pk_bf16_f32 v{T0+i}, v{S0+2*i}, v{S0+2*i+1}")
        for i in range(4):
            e(f"v_lshlrev_b32 v{S0+2*i}, 16, v{T0+i}")
            e(f"v_and_b32 v{S0+2*i+1}, 0xffff0000, v{T0+i}")
        for i in range(8):
            e(f"v_mul_f32 v{S0+i}, s80, v{S0+i}")
        for i in range(4):
            e(f"v_cvt_pk_bf16_f32 v{T0+i}, v{S0+2*i}, v{S0+2*i+1}")
        for i in range(4):
            e(f"v_lshlrev_b32 v{S0+2*i}, 16, v{T0+i}")
            e(f"v_and_b32 v{S0+2*i+1}, 0xffff0000, v{T0+i}")
        e(f"v_max3_f32 v{T0}, v{S0}, v{S0+1}, v{S0+2}")
        e(f"v_max3_f32 v{T0+1}, v{S0+3}, v{S0+4}, v{S0+5}")
        e(f"v_max3_f32 v{T0}, v{T0}, v{S0+6}, v{S0+7}")
        e(f"v_max_f32 v{T0}, v{T0}, v{T0+1}")
        e(f"v_cmp_gt_f32 vcc, v{T0}, v{THR}")
        rl, bl = f"L_rare{slot}", f"L_back{slot}"
        e(f"s_cbranch_vccnz {rl}")
        e.label(bl)
        rares.append((rl, bl))
        for i in range(8):
            e(f"v_fma_f32 v{S0+i}, v{S0+i}, s81, v{MNEG}")
        for i in range(8):
            e(f"v_exp_f32 v{S0+i}, v{S0+i}")
        e("s_nop 0")
        for i in range(4):
            e(f"v_cvt_pk_bf16_f32 v{P0+i}, v{S0+2*i}, v{S0+2*i+1}")
        e(f"v_add_f32 v{T0}, v{S0}, v{S0+1}")
        e(f"v_add_f32 v{T0+1}, v{S0+2}, v{S0+3}")
        e(f"v_add_f32 v{T0+2}, v{S0+4}, v{S0+5}")
        e(f"v_add_f32 v{T0+3}, v{S0+6}, v{S0+7}")
        e(f"v_add_f32 v{T0}, v{T0}, v{T0+1}")
        e(f"v_add_f32 v{T0+2}, v{T0+2}, v{T0+3}")
        e(f"v_add_f32 v{T0}, v{T0}, v{T0+2}")
        e(f"v_add_f32 v{LSUM}, v{LSUM}, v{T0}")
        if not VEARLY:
            vpart(slot)
        for j in range(8):
            r = VF + j * 4
            e(f"v_mfma_f32_16x16x32_bf16 v[{OA+4*j}:{OA+4*j+3}], v[{r}:{r+3}], v[{P0}:{P0+3}], v[{OA+4*j}:{OA+4*j+3}]")
        e(f"s_cmp_ge_u32 s{78+(slot^1)}, 0x200000")
        if slot == 0:
            e("s_cbranch_scc1 L_loop_done")
        else:
            e("s_cbranch_scc0 L_loop")
    e = e_real
    e.label("L_loop_done")
    stamp(14, 0)
    if opt.get("itall"):
        e("v_lshlrev_b32 v246, 2, v2")
        e("s_lshl_b32 s96, s2, 2")
        e("s_add_u32 s96, s96, s3")
        e("s_lshl_b32 s96, s96, 8")
        e(f"s_add_u32 s96, s96, {TB_OFF + 0x10000}")
        e("buffer_store_dword v245, v246, s[40:43], s96 offen")
    if opt.get("itst"):
        e("s_cmp_lg_u32 s3, 0")
        e("s_cbranch_scc1 L_itd")
        e("s_mov_b64 exec, 1")
        e("v_mov_b32 v250, s98")
        e("v_mov_b32 v251, s99")
        e("v_mov_b32 v252, 0")
        e("s_lshl_b32 s96, s2, 6")
        e(f"s_add_u32 s96, s96, {ST_OFF + 4*6}")
        e("buffer_store_dwordx2 v[250:251], v252, s[40:43], s96 offen")
        e("s_mov_b64 exec, -1")
        e.label("L_itd")
    e("s_nop 7")
    e("s_nop 7")
    e("s_lshl_b32 s75, s3, 11")
    e(f"s_add_u32 s75, s75, {L_CB}")
    e("v_lshlrev_b32 v40, 9, v22")
    e("v_lshl_add_u32 v40, v3, 4, v40")
    e("v_add_u32 v40, s75, v40")
    e("s_lshl_b32 s76, s3, 2")
    e("v_lshlrev_b32 v41, 4, v22")
    e("v_add_u32 v41, s76, v41")
    e("v_lshlrev_b32 v42, 2, v41")
    e("v_lshl_add_u32 v42, v3, 2, v42")
    e(f"v_add_u32 v41, {L_ST}, v41")
    e(f"v_add_u32 v42, {L_ST+64}, v42")
    e("v_cmp_gt_u32 vcc, 4, v22")
    e("s_and_saveexec_b64 s[82:83], vcc")
    for j in range(8):
        e(f"ds_write_b128 v40, v[{OA+4*j}:{OA+4*j+3}] offset:{64*j}")
    e(f"ds_write_b32 v41, v{MREF}")
    e(f"ds_write_b32 v42, v{LSUM}")
    e("s_mov_b64 exec, s[82:83]")
    e("s_branch L_b3")

    e.label("L_sched")
    e(f"v_mov_b32 v5, {L_FL}")
    e("s_mov_b32 s90, 0")
    e.label("L_sq")
    e("ds_read_b32 v6, v5")
    e("s_waitcnt lgkmcnt(0)")
    e("v_readfirstlane_b32 s75, v6")
    e("s_cmp_lg_u32 s75, 0")
    e("s_cbranch_scc1 L_sq_ok")
    e("s_add_u32 s90, s90, 1")
    e(f"s_cmp_ge_u32 s90, {POLL_LIMIT*20}")
    e("s_cbranch_scc1 L_sq_ok")
    e("s_sleep 2")
    e("s_branch L_sq")
    e.label("L_sq_ok")
    e(f"s_mov_b32 s4, {NST}")
    e("s_mov_b32 s5, 0")
    e(f"v_mov_b32 v5, {L_P}")
    e("s_mov_b64 exec, 1")
    e.label("L_sloop0")
    e("ds_read_b128 v[8:11], v5")
    e("s_waitcnt lgkmcnt(0)")
    e("v_max_u32 v8, v8, v9")
    e("v_max3_u32 v8, v8, v10, v11")
    e("s_nop 0")
    e("v_readfirstlane_b32 s6, v8")
    e(f"s_add_u32 s6, s6, {1 + LA}")
    e("s_cmp_lt_u32 s4, s6")
    e("s_cbranch_scc1 L_sclaim")
    e("s_sleep 2")
    e("s_branch L_sloop0")
    e.label("L_sclaim")
    e("s_add_u32 s7, s73, s5")
    e("s_and_b32 s7, s7, 3")
    e("s_lshl_b32 s8, s72, 8")
    e("s_lshl_b32 s9, s7, 6")
    e("s_add_u32 s8, s8, s9")
    e(f"s_add_u32 s8, s8, {CNT_OFF}")
    e("v_mov_b32 v12, s8")
    e("s_cmp_eq_u32 s5, 0")
    e("s_cselect_b32 s9, 1, 0x10000")
    e("v_mov_b32 v13, s9")
    e("global_atomic_add v14, v12, v13, s[28:29] sc0 sc1")
    e("s_waitcnt vmcnt(0)")
    e("v_readfirstlane_b32 s9, v14")
    e("s_and_b32 s10, s9, 0xffff")
    e("s_lshr_b32 s11, s9, 16")
    e("s_add_u32 s9, s10, s11")
    e(f"s_cmp_lt_u32 s9, {16 - NST}")
    e("s_cbranch_scc1 L_sgot")
    e("s_add_u32 s5, s5, 1")
    e(f"s_cmp_lt_u32 s5, {4 if STEAL else 1}")
    e("s_cbranch_scc1 L_sclaim")
    e("s_mov_b64 exec, 0xff")
    e("s_lshl_b32 s8, s4, 2")
    e(f"s_add_u32 s8, s8, {L_QQ}")
    e("v_lshlrev_b32 v12, 2, v2")
    e("v_add_u32 v12, s8, v12")
    e("v_mov_b32 v13, 64")
    e("ds_write_b32 v12, v13")
    e("s_mov_b64 exec, -1")
    e("s_branch L_b3")
    e.label("L_sgot")
    e(f"s_add_u32 s10, s10, {NST}")
    e("s_sub_u32 s11, 15, s11")
    e("s_cmp_eq_u32 s5, 0")
    e("s_cselect_b32 s10, s10, s11")
    e("s_lshl_b32 s7, s7, 4")
    e("s_add_u32 s10, s10, s7")
    e("s_lshl_b32 s8, s4, 2")
    e(f"s_add_u32 s8, s8, {L_QQ}")
    e("v_mov_b32 v12, s8")
    e("v_mov_b32 v13, s10")
    e("ds_write_b32 v12, v13")
    e("s_add_u32 s4, s4, 1")
    e("s_branch L_sloop0")
    e.label("L_table")
    e("s_cmp_eq_u32 s3, 6")
    e("s_cbranch_scc1 L_sched")
    if opt.get("notable"):
        e("s_branch L_tdone")
    e("v_mov_b32 v6, 0")
    if WLATE:
        load_weights(e)
        e("s_waitcnt vmcnt(0)")
    prep_weights(e)
    e(f"v_mov_b32 v34, {L_FL+4}")
    e("v_mov_b32 v35, 1")
    ACC = 112
    stamp(13, 4)
    e.label("L_tloop")
    e("s_mov_b64 exec, 1")
    e("ds_add_rtn_u32 v33, v34, v35")
    e("s_mov_b64 exec, -1")
    e("s_waitcnt lgkmcnt(0)")
    e("v_readfirstlane_b32 s90, v33")
    e("s_cmp_ge_u32 s90, 11")
    e("s_cbranch_scc1 L_tdone")
    e("s_mul_i32 s75, s90, 3")
    e("s_lshl_b32 s20, s2, 5")
    for k in range(3):
        e(f"s_add_u32 s76, s75, {k}")
        e("s_add_u32 s77, s20, s76")
        e(f"s_mov_b32 s{22+k}, s77")
        e("s_and_b32 s4, s77, 4095")
        e("s_add_u32 s4, s4, 12800")
        e("s_lshr_b32 s5, s77, 12")
        e("s_lshl_b32 s5, s5, 15")
        e("s_or_b32 s77, s4, s5")
        if k == 2:
            e("s_add_u32 s4, s2, 8192")
            e("s_cmp_lt_u32 s76, 32")
            e("s_cselect_b32 s77, s77, 0")
            e(f"s_cselect_b32 s{22+k}, s{22+k}, s4")
        e(f"s_lshl_b32 s{22+k}, s{22+k}, 2")
        e(f"s_add_u32 s{22+k}, s{22+k}, {TB_OFF}")
        e("s_lshl_b32 s4, s77, 16")
        e("s_mov_b32 s5, s4")
        e(f"v_mov_b32 v{ACC+k}, 0")
        eval_F(e, ACC + k)
    finish_F(e, [ACC, ACC + 1, ACC + 2])
    e("s_mov_b32 exec_lo, 0")
    e("s_mov_b32 exec_hi, 0x80000000")
    for k in range(3):
        e(f"buffer_store_dword v{ACC+k}, v6, s[40:43], s{22+k} offen sc1")
    e("s_mov_b64 exec, -1")
    e("s_branch L_tloop")
    e.label("L_tdone")
    stamp(11, 4)
    e("s_cmp_lg_u32 s3, 7")
    e("s_cbranch_scc1 L_b3")
    e("v_lshlrev_b32 v16, 2, v2")
    e("s_mov_b32 s90, 0")
    e("s_mov_b32 s91, 0x01010101")
    e.label("L_gpoll")
    e("global_load_dword v17, v16, s[26:27] sc1")
    e("s_waitcnt vmcnt(0)")
    e("v_cmp_ne_u32 vcc, s91, v17")
    e("s_nop 1")
    e("s_cmp_eq_u64 vcc, 0")
    e("s_cbranch_scc1 L_b3")
    e("s_add_u32 s90, s90, 1")
    e(f"s_cmp_ge_u32 s90, {POLL_LIMIT}")
    e("s_cbranch_scc1 L_b3")
    e("s_sleep 100")
    e("s_branch L_gpoll")
    e.label("L_b3")
    e("s_waitcnt vmcnt(0) lgkmcnt(0)")
    e("s_barrier")
    e.label("L_tail")
    stamp(2)
    e("s_cmp_ge_u32 s3, 2")
    e("s_cbranch_scc1 L_t2")
    e("v_lshrrev_b32 v4, 5, v0")
    e("v_and_b32 v5, 31, v0")
    e("v_lshlrev_b32 v6, 4, v4")
    e(f"v_add_u32 v6, {L_ST}, v6")
    e("ds_read_b128 v[44:47], v6")
    e("v_lshlrev_b32 v6, 6, v4")
    e(f"v_add_u32 v6, {L_ST+64}, v6")
    for w in range(4):
        e(f"ds_read_b128 v[{48+4*w}:{48+4*w+3}], v6 offset:{16*w}")
    e("v_lshlrev_b32 v6, 9, v4")
    e("v_lshl_add_u32 v6, v5, 4, v6")
    e(f"v_add_u32 v6, {L_CB}, v6")
    for w in range(4):
        e(f"ds_read_b128 v[{64+4*w}:{64+4*w+3}], v6 offset:{2048*w}")
    e("s_waitcnt lgkmcnt(0)")
    e("v_max3_f32 v80, v44, v45, v46")
    e("v_max_f32 v80, v80, v47")
    for w in range(4):
        e(f"v_sub_f32 v{44+w}, v{44+w}, v80")
        e(f"v_mul_f32 v{44+w}, s81, v{44+w}")
        e(f"v_exp_f32 v{44+w}, v{44+w}")
    for w in range(4):
        e(f"v_add_f32 v{48+4*w}, v{48+4*w}, v{49+4*w}")
        e(f"v_add_f32 v{50+4*w}, v{50+4*w}, v{51+4*w}")
        e(f"v_add_f32 v{48+4*w}, v{48+4*w}, v{50+4*w}")
    e("v_mul_f32 v81, v44, v48")
    for k in range(4):
        e(f"v_mul_f32 v{84+k}, v44, v{64+k}")
    for w in range(1, 4):
        e(f"v_fmac_f32 v81, v{44+w}, v{48+4*w}")
        for k in range(4):
            e(f"v_fmac_f32 v{84+k}, v{44+w}, v{64+4*w+k}")
    e("v_lshlrev_b32 v6, 11, v4")
    e("v_lshl_add_u32 v6, v5, 4, v6")
    e("s_lshl_b32 s75, s72, 13")
    e("s_lshl_b32 s76, s73, 9")
    e("s_add_u32 s75, s75, s76")
    e(f"s_add_u32 s75, s75, {PO_OFF}")
    e("buffer_store_dwordx4 v[84:87], v6, s[40:43], s75 offen sc1")
    e("v_lshlrev_b32 v6, 5, v4")
    e("s_lshl_b32 s75, s72, 7")
    e("s_lshl_b32 s76, s73, 3")
    e("s_add_u32 s75, s75, s76")
    e(f"s_add_u32 s75, s75, {PML_OFF}")
    e("v_cmp_eq_u32 vcc, 0, v5")
    e("s_and_saveexec_b64 s[82:83], vcc")
    e("buffer_store_dwordx2 v[80:81], v6, s[40:43], s75 offen sc1")
    e("s_mov_b64 exec, s[82:83]")
    e.label("L_t2")
    e("v_lshrrev_b32 v4, 5, v2")
    e("v_and_b32 v5, 31, v2")
    e("s_lshr_b32 s75, s2, 4")
    e("s_lshl_b32 s75, s75, 1")
    e("s_lshl_b32 s76, s3, 5")
    e("s_add_u32 s75, s75, s76")
    e("v_lshlrev_b32 v6, 5, v4")
    e("s_lshl_b32 s76, s75, 5")
    e(f"s_add_u32 s76, s76, {PML_OFF}")
    e("v_lshlrev_b32 v7, 11, v4")
    e("v_lshl_add_u32 v7, v5, 4, v7")
    e("s_lshl_b32 s77, s75, 11")
    e(f"s_add_u32 s77, s77, {PO_OFF}")
    e("s_mov_b32 s90, 0")
    e.label("L_mlpoll")
    e("buffer_load_dwordx4 v[16:19], v6, s[40:43], s76 offen sc1")
    e("buffer_load_dwordx4 v[20:23], v6, s[40:43], s76 offen offset:16 sc1")
    for s in range(4):
        e(f"buffer_load_dwordx4 v[{24+4*s}:{24+4*s+3}], v7, s[40:43], s77 offen offset:{512*s} sc1")
    e("s_waitcnt vmcnt(0)")
    e("v_max_u32 v40, v16, v17")
    for k in range(18, 40, 2):
        e(f"v_max3_u32 v40, v40, v{k}, v{k+1}")
    e("v_cmp_eq_u32 vcc, -1, v40")
    e("s_nop 1")
    e("s_cmp_eq_u64 vcc, 0")
    e("s_cbranch_scc1 L_mlready")
    e("s_add_u32 s90, s90, 1")
    e(f"s_cmp_ge_u32 s90, {POLL_LIMIT}")
    e("s_cbranch_scc1 L_mlready")
    e(f"s_sleep {SLEEP2}")
    e("s_branch L_mlpoll")
    e.label("L_mlready")
    stamp(10, 0)
    e("v_max3_f32 v60, v16, v18, v20")
    e("v_max_f32 v60, v60, v22")
    for s in range(4):
        e(f"v_sub_f32 v{44+s}, v{16+2*s}, v60")
        e(f"v_mul_f32 v{44+s}, s81, v{44+s}")
        e(f"v_exp_f32 v{44+s}, v{44+s}")
    e("s_nop 0")
    e("v_mul_f32 v61, v44, v17")
    for s in range(1, 4):
        e(f"v_fmac_f32 v61, v{44+s}, v{17+2*s}")
    e("v_rcp_f32 v61, v61")
    e("s_nop 0")
    for s in range(4):
        e(f"v_mul_f32 v{44+s}, v{44+s}, v61")
    e.label("L_poready")
    for k in range(4):
        e(f"v_mul_f32 v{48+k}, v44, v{24+k}")
        for s in range(1, 4):
            e(f"v_fmac_f32 v{48+k}, v{44+s}, v{24+4*s+k}")
    e("v_cvt_pk_bf16_f32 v52, v48, v49")
    e("v_cvt_pk_bf16_f32 v53, v50, v51")
    e("v_lshlrev_b32 v6, 3, v0")
    e(f"v_add_u32 v6, {L_OA}, v6")
    e("ds_write_b64 v6, v[52:53]")
    e("s_waitcnt lgkmcnt(0)")
    e("s_barrier")
    stamp(3)
    e("s_cmp_ge_u32 s3, 2")
    e("s_cbranch_scc1 L_t4")
    e("v_and_b32 v22, 15, v2")
    e("v_bfe_u32 v4, v2, 2, 2")
    e("v_and_b32 v5, 3, v2")
    e("v_lshl_add_u32 v6, v3, 3, v4")
    e("v_lshlrev_b32 v6, 6, v6")
    e("v_lshl_add_u32 v6, v5, 3, v6")
    e("s_lshl_b32 s75, s3, 5")
    e(f"s_add_u32 s75, s75, {L_WT}")
    e("v_add_u32 v6, s75, v6")
    e("v_and_b32 v7, 7, v2")
    e("v_lshlrev_b32 v7, 9, v7")
    e("v_lshl_add_u32 v7, v3, 4, v7")
    e(f"v_add_u32 v7, {L_OA}, v7")
    A0, B0 = 32, 64
    for s in range(8):
        e(f"ds_read_b64_tr_b16 v[{A0+4*s}:{A0+4*s+1}], v6 offset:{s*2048}")
        e(f"ds_read_b64_tr_b16 v[{A0+4*s+2}:{A0+4*s+3}], v6 offset:{s*2048 + 256}")
        e(f"ds_read_b128 v[{B0+4*s}:{B0+4*s+3}], v7 offset:{s*64}")
        if s % 4 == 3:
            e("s_waitcnt lgkmcnt(0)")
    for s in range(8):
        c = "0" if s == 0 else "v[8:11]"
        e(f"v_mfma_f32_16x16x32_bf16 v[8:11], v[{A0+4*s}:{A0+4*s+3}], v[{B0+4*s}:{B0+4*s+3}], {c}")
    e("v_lshlrev_b32 v5, 15, v22")
    e("v_lshl_add_u32 v5, v3, 4, v5")
    e("s_lshr_b32 s75, s2, 4")
    e("s_lshl_b32 s75, s75, 11")
    e("s_and_b32 s76, s2, 7")
    e("s_lshl_b32 s76, s76, 8")
    e("s_add_u32 s75, s75, s76")
    e("s_bfe_u32 s76, s2, 0x10003")
    e("s_lshl_b32 s76, s76, 7")
    e("s_add_u32 s75, s75, s76")
    e("s_lshl_b32 s76, s3, 6")
    e("s_add_u32 s75, s75, s76")
    e(f"s_add_u32 s75, s75, {WP_OFF}")
    e("v_cmp_gt_u32 vcc, 8, v22")
    e("s_and_saveexec_b64 s[82:83], vcc")
    e("buffer_store_dwordx4 v[8:11], v5, s[40:43], s75 offen sc1")
    e("s_mov_b64 exec, s[82:83]")
    e.label("L_t4")
    e("s_and_b32 s75, s2, 31")
    e("s_cmp_lg_u32 s75, 0")
    e("s_cbranch_scc1 L_exit")
    e("s_lshr_b32 s77, s2, 5")
    e("s_lshl_b32 s75, s77, 10")
    e("v_lshlrev_b32 v4, 1, v0")
    e("buffer_load_ushort v44, v4, s[44:47], s75 offen")
    e("s_lshl_b32 s75, s77, 15")
    e(f"s_add_u32 s75, s75, {WP_OFF}")
    e("s_mov_b32 s90, 0")
    e("v_lshlrev_b32 v3, 2, v0")
    e.label("L_wppoll")
    for i in range(16):
        e(f"s_add_u32 s76, s75, {2048*i}")
        e(f"buffer_load_dword v{16+i}, v3, s[40:43], s76 offen sc1")
    e("s_waitcnt vmcnt(0)")
    e("v_max_u32 v40, v16, v17")
    for k in range(18, 32, 2):
        e(f"v_max3_u32 v40, v40, v{k}, v{k+1}")
    e("v_cmp_eq_u32 vcc, -1, v40")
    e("s_nop 1")
    e("s_cmp_eq_u64 vcc, 0")
    e("s_cbranch_scc1 L_wpok")
    e("s_add_u32 s90, s90, 1")
    e(f"s_cmp_ge_u32 s90, {POLL_LIMIT}")
    e("s_cbranch_scc1 L_wpok")
    e(f"s_sleep {SLEEP3}")
    e("s_branch L_wppoll")
    e.label("L_wpok")
    for i in range(1, 16):
        e(f"v_add_f32 v16, v16, v{16+i}")
    bf16r(e, 16)
    e("v_lshlrev_b32 v44, 16, v44")
    e("v_add_f32 v16, v16, v44")
    bf16r(e, 16)
    e(f"v_add_u32 v4, {L_H}, v3")
    e("ds_write_b32 v4, v16")
    e("s_waitcnt lgkmcnt(0)")
    e("s_barrier")
    stamp(4)
    e("s_cmp_lg_u32 s3, 0")
    e("s_cbranch_scc1 L_exit")
    e("v_lshlrev_b32 v7, 5, v2")
    e(f"v_add_u32 v7, {L_H}, v7")
    e("ds_read_b128 v[16:19], v7")
    e("ds_read_b128 v[20:23], v7 offset:16")
    e("s_waitcnt lgkmcnt(0)")
    for k in range(8):
        e(f"v_mov_b32 v{200+k}, v{16+k}")
    layernorm8(e, 16, 64, 92)
    layernorm8(e, 16, 64, 92)
    stamp(12, 0)
    e(f"s_mov_b32 s76, {TB_OFF}")
    e("s_mov_b32 s75, 4096")
    e("s_mov_b64 s[20:21], 0")
    e("v_mov_b32 v34, 8192")
    for k in range(8):
        e(f"v_bfe_u32 v24, v{16+k}, 16, 15")
        e(f"v_lshrrev_b32 v32, 31, v{16+k}")
        e("v_subrev_u32 v25, 12800, v24")
        e("v_cmp_eq_u32 vcc, 0, v24")
        e("v_cmp_le_u32 s[82:83], s75, v25")
        if opt.get("tlo"):
            e(f"s_mov_b32 s86, {opt['tlo']}")
            e(f"v_cmp_gt_u32 s[84:85], s86, v24")
            e("s_or_b64 s[82:83], s[82:83], s[84:85]")
        e("v_mad_u32_u24 v33, v32, s75, v25")
        e("s_nop 1")
        e("v_cndmask_b32 v33, v33, v34, s[82:83]")
        e("s_andn2_b64 s[82:83], s[82:83], vcc")
        e("s_or_b64 s[20:21], s[20:21], s[82:83]")
        e("v_lshlrev_b32 v33, 2, v33")
        e(f"buffer_load_dword v{208+k}, v33, s[40:43], s76 offen sc1")
    e("s_waitcnt vmcnt(0)")
    e("s_cmp_eq_u64 s[20:21], 0")
    e("s_cbranch_scc1 L_fast")
    e("v_lshlrev_b32 v7, 5, v2")
    e(f"v_add_u32 v8, {L_CB}, v7")
    e(f"v_add_u32 v9, {L_CB+2048}, v7")
    e("ds_write_b128 v8, v[16:19]")
    e("ds_write_b128 v8, v[20:23] offset:16")
    e("ds_write_b128 v9, v[208:211]")
    e("ds_write_b128 v9, v[212:215] offset:16")
    load_weights(e)
    e("s_waitcnt vmcnt(0) lgkmcnt(0)")
    prep_weights(e)
    e("s_mov_b32 s20, 0")
    e.label("L_sloop")
    e("s_lshl_b32 s21, s20, 2")
    e(f"s_add_u32 s21, s21, {L_CB}")
    e("v_mov_b32 v10, s21")
    e("ds_read_b32 v11, v10")
    e("s_waitcnt lgkmcnt(0)")
    e("v_readfirstlane_b32 s4, v11")
    e("s_bfe_u32 s21, s4, 0xf0010")
    e("s_cmp_eq_u32 s21, 0")
    e("s_cbranch_scc1 L_snext")
    if opt.get("tlo"):
        e(f"s_cmp_ge_u32 s21, {opt['tlo']}")
        e("s_cbranch_scc1 L_snext")
    else:
        e("s_sub_u32 s21, s21, 12800")
        e("s_cmp_lt_u32 s21, 4096")
        e("s_cbranch_scc1 L_snext")
    e("s_mov_b32 s5, s4")
    e("v_mov_b32 v112, 0")
    eval_F(e, 112)
    finish_F(e, [112])
    e("s_mov_b32 exec_lo, 0")
    e("s_mov_b32 exec_hi, 0x80000000")
    e("ds_write_b32 v10, v112 offset:2048")
    e("s_mov_b64 exec, -1")
    e.label("L_snext")
    e("s_add_u32 s20, s20, 1")
    e("s_cmp_lt_u32 s20, 512")
    e("s_cbranch_scc1 L_sloop")
    e("s_waitcnt lgkmcnt(0)")
    e("ds_read_b128 v[208:211], v9")
    e("ds_read_b128 v[212:215], v9 offset:16")
    e("s_waitcnt lgkmcnt(0)")
    e.label("L_fast")
    for k in range(8):
        e(f"v_add_f32 v{208+k}, v{208+k}, v{200+k}")
    for k in range(4):
        e(f"v_cvt_pk_bf16_f32 v{64+k}, v{208+2*k}, v{209+2*k}")
    e("v_lshlrev_b32 v8, 4, v2")
    e("s_lshl_b32 s75, s77, 10")
    e("buffer_store_dwordx4 v[64:67], v8, s[68:71], s75 offen")
    stamp(5)
    if opt.get("dbgst"):
        e("s_cmp_lg_u32 s2, 0")
        e("s_cbranch_scc1 L_exit")
        e("s_waitcnt vmcnt(0)")
        e("s_mov_b64 exec, 0xffff")
        e("v_lshlrev_b32 v250, 2, v2")
        e(f"s_mov_b32 s96, {ST_OFF}")
        e("buffer_load_dword v251, v250, s[40:43], s96 offen sc1")
        e("s_waitcnt vmcnt(0)")
        e("global_store_dword v250, v251, s[26:27]")
    e.label("L_exit")
    e("s_endpgm")
    for rl, bl in rares:
        e.label(rl)
        e(f"ds_bpermute_b32 v{T0+1}, v{BP0}, v{T0}")
        e("s_waitcnt lgkmcnt(0)")
        e(f"v_max_f32 v{T0}, v{T0}, v{T0+1}")
        e(f"ds_bpermute_b32 v{T0+1}, v{BP1}, v{T0}")
        e("s_waitcnt lgkmcnt(0)")
        e(f"v_max3_f32 v{T0}, v{T0}, v{T0+1}, v{MREF}")
        e(f"v_sub_f32 v{T0+1}, v{MREF}, v{T0}")
        e(f"v_mul_f32 v{T0+1}, s81, v{T0+1}")
        e(f"v_exp_f32 v{T0+1}, v{T0+1}")
        e("s_nop 0")
        for i in range(32):
            e(f"v_mul_f32 v{OA+i}, v{OA+i}, v{T0+1}")
        e(f"v_mul_f32 v{LSUM}, v{LSUM}, v{T0+1}")
        e(f"v_mov_b32 v{MREF}, v{T0}")
        e(f"v_mul_f32 v{MNEG}, s81, v{T0}")
        e(f"v_sub_f32 v{MNEG}, 0, v{MNEG}")
        e(f"v_add_f32 v{THR}, 0x40a00000, v{T0}")
        e(f"s_branch {bl}")


def main():
    opt = {}
    for a in sys.argv[2:]:
        k, v = a.split("=")
        opt[k] = {"0": False, "1": True}.get(v, v)
    e = E()
    e.raw(HEADER.rstrip("\n"))
    e.raw(f"; @launch grid=(256,1,1) block=(512,1,1) lds={LDS_TOTAL}")
    e.raw('.amdgcn_target "amdgcn-amd-amdhsa--gfx950"')
    e.raw(".text")
    gen(e, opt)
    e.raw('.section .rodata,"a"')
    e.raw(".p2align 6")
    e.raw(f""".amdhsa_kernel {KNAME}
  .amdhsa_next_free_vgpr 256
  .amdhsa_next_free_sgpr 102
  .amdhsa_accum_offset 256
  .amdhsa_group_segment_fixed_size 0
  .amdhsa_kernarg_size 104
  .amdhsa_user_sgpr_count 2
  .amdhsa_user_sgpr_kernarg_segment_ptr 1
  .amdhsa_system_sgpr_workgroup_id_x 1
.end_amdhsa_kernel""")
    open(sys.argv[1], "w").write(e.text())


main()
```

```python
import sys, struct, math

KNAME = "sequential_preLN__gqa_block_cached__mixer_token_mlp__decode_kernel"
HEADER = open("sequential_preLN__gqa_block_cached__mixer_token_mlp__decode.s.ref").read().split("; Override launch")[0]

Q_OFF = 0x0
PO_OFF = 0x10000
PML_OFF = 0x90000
WP_OFF = 0xA0000
ST_OFF = 0xE0000
CNT_OFF = 0xF0000
QG_OFF = 0x100000
TB_OFF = 0x120000
WS_USED = 0x180000

LOG2E = 0x3FB8AA3B
SCALE = 0x3DB504F3
NEGBIG = 0xF149F2CA

X = 131072
L_LN = X
L_CB = X
L_WT = X + 8192
L_Q = X + 24576
L_ST = X + 25600
L_OA = X + 26624
L_H = X + 30720
L_FL = X + 25600 + 512
L_P = X + 25600 + 528
L_QQ = X + 25600 + 576
LDS_TOTAL = 163840

POLL_LIMIT = 400000


class E:
    def __init__(self):
        self.lines = []
        self.lbl = 0

    def __call__(self, s):
        for ln in s.strip("\n").split("\n"):
            self.lines.append("    " + ln.strip())

    def label(self, name):
        self.lines.append(name + ":")

    def raw(self, s):
        self.lines.append(s)

    def newlabel(self, base):
        self.lbl += 1
        return f"L_{base}_{self.lbl}"

    def text(self):
        return "\n".join(self.lines) + "\n"


def srd(e, d, base_lo, nbytes):
    e(f"s_mov_b32 s{d}, s{base_lo}")
    e(f"s_mov_b32 s{d+1}, s{base_lo+1}")
    e(f"s_mov_b32 s{d+2}, {nbytes}")
    e(f"s_mov_b32 s{d+3}, 0x00020000")


def wave_allreduce_add(e, v, t, s0):
    e(f"s_nop 1")
    e(f"v_add_f32_dpp v{v}, v{v}, v{v} quad_perm:[1,0,3,2] row_mask:0xf bank_mask:0xf")
    e(f"s_nop 1")
    e(f"v_add_f32_dpp v{v}, v{v}, v{v} quad_perm:[2,3,0,1] row_mask:0xf bank_mask:0xf")
    e(f"s_nop 1")
    e(f"v_add_f32_dpp v{v}, v{v}, v{v} row_half_mirror row_mask:0xf bank_mask:0xf")
    e(f"s_nop 1")
    e(f"v_add_f32_dpp v{v}, v{v}, v{v} row_mirror row_mask:0xf bank_mask:0xf")
    e(f"s_nop 1")
    e(f"v_readlane_b32 s{s0}, v{v}, 0")
    e(f"v_readlane_b32 s{s0+1}, v{v}, 16")
    e(f"v_readlane_b32 s{s0+2}, v{v}, 32")
    e(f"v_readlane_b32 s{s0+3}, v{v}, 48")
    e(f"s_nop 1")
    e(f"v_mov_b32 v{t}, s{s0}")
    e(f"v_add_f32 v{t}, s{s0+1}, v{t}")
    e(f"v_add_f32 v{v}, s{s0+2}, v{t}")
    e(f"v_add_f32 v{v}, s{s0+3}, v{v}")


def bf16r(e, v):
    e(f"v_cvt_pk_bf16_f32 v{v}, v{v}, v{v}")
    e(f"v_lshlrev_b32 v{v}, 16, v{v}")


def layernorm8(e, x, t, s0):
    e(f"v_add_f32 v{t}, v{x}, v{x+1}")
    for i in range(2, 8):
        e(f"v_add_f32 v{t}, v{t}, v{x+i}")
    wave_allreduce_add(e, t, t + 1, s0)
    e(f"v_mul_f32 v{t}, 0x3b000000, v{t}")
    for i in range(8):
        e(f"v_sub_f32 v{t+2+i}, v{x+i}, v{t}")
    e(f"v_mul_f32 v{t+10}, v{t+2}, v{t+2}")
    for i in range(1, 8):
        e(f"v_fmac_f32 v{t+10}, v{t+2+i}, v{t+2+i}")
    wave_allreduce_add(e, t + 10, t + 1, s0)
    e(f"v_mul_f32 v{t+10}, 0x3b000000, v{t+10}")
    bf16r(e, t + 10)
    e(f"v_add_f32 v{t+10}, 0x3727c5ac, v{t+10}")
    bf16r(e, t + 10)
    e(f"v_sqrt_f32 v{t+10}, v{t+10}")
    e(f"s_nop 0")
    bf16r(e, t + 10)
    e(f"v_rcp_f32 v{t+11}, v{t+10}")
    bf16r(e, t)
    for i in range(8):
        e(f"v_sub_f32 v{x+i}, v{x+i}, v{t}")
    for i in range(0, 8, 2):
        e(f"v_cvt_pk_bf16_f32 v{t+2}, v{x+i}, v{x+i+1}")
        e(f"v_lshlrev_b32 v{x+i}, 16, v{t+2}")
        e(f"v_and_b32 v{x+i+1}, 0xffff0000, v{t+2}")
    for i in range(8):
        e(f"v_mul_f32 v{t+2}, v{x+i}, v{t+11}")
        e(f"v_fma_f32 v{t+3}, -v{t+2}, v{t+10}, v{x+i}")
        e(f"v_fma_f32 v{x+i}, v{t+3}, v{t+11}, v{t+2}")
    for i in range(0, 8, 2):
        e(f"v_cvt_pk_bf16_f32 v{t+2}, v{x+i}, v{x+i+1}")
        e(f"v_lshlrev_b32 v{x+i}, 16, v{t+2}")
        e(f"v_and_b32 v{x+i+1}, 0xffff0000, v{t+2}")


def unpack8(e, src, dst):
    for i in range(4):
        e(f"v_lshlrev_b32 v{dst+2*i}, 16, v{src+i}")
        e(f"v_and_b32 v{dst+2*i+1}, 0xffff0000, v{src+i}")


W1P, B1P, W2P = 40, 68, 96
TMP = 116


def eval_F(e, acc):
    for half in range(2):
        steps = []
        for jj in range(7):
            j = half * 7 + jj
            a = TMP + 6 * jj
            q = a + 2
            c = a + 4
            steps.append([
                f"v_pk_mul_f32 v[{a}:{a+1}], v[{W1P+2*j}:{W1P+2*j+1}], s[4:5]",
                f"v_cvt_pk_bf16_f32 v{c}, v{a}, v{a+1}",
                f"v_lshlrev_b32 v{a}, 16, v{c}",
                f"v_and_b32 v{a+1}, 0xffff0000, v{c}",
                f"v_pk_add_f32 v[{a}:{a+1}], v[{a}:{a+1}], v[{B1P+2*j}:{B1P+2*j+1}]",
                f"v_cvt_pk_bf16_f32 v{c}, v{a}, v{a+1}",
                f"v_lshlrev_b32 v{a}, 16, v{c}",
                f"v_and_b32 v{a+1}, 0xffff0000, v{c}",
                f"v_pk_mul_f32 v[{q}:{q+1}], v[{a}:{a+1}], v[{a}:{a+1}]",
                f"v_pk_fma_f32 v[{q}:{q+1}], v[{q}:{q+1}], s[14:15], v[38:39]",
                f"v_pk_mul_f32 v[{q}:{q+1}], v[{q}:{q+1}], v[{a}:{a+1}]",
                f"v_exp_f32 v{q}, v{q}",
                f"v_exp_f32 v{q+1}, v{q+1}",
                f"v_pk_add_f32 v[{q}:{q+1}], v[{q}:{q+1}], 1.0 op_sel_hi:[1,0]",
                f"v_rcp_f32 v{q}, v{q}",
                f"v_rcp_f32 v{q+1}, v{q+1}",
                f"v_pk_mul_f32 v[{q}:{q+1}], v[{q}:{q+1}], v[{a}:{a+1}]",
                f"v_cvt_pk_bf16_f32 v{c}, v{q}, v{q+1}",
                f"v_dot2_f32_bf16 v{acc}, v{c}, v{W2P+j}, v{acc}",
            ])
        for i in range(len(steps[0])):
            for jj in range(7):
                e(steps[jj][i])


def load_weights(e):
    e("v_mul_u32_u24 v13, 56, v2")
    for base, sr in ((160, 52), (176, 56), (96, 60)):
        e(f"buffer_load_dwordx4 v[{base}:{base+3}], v13, s[{sr}:{sr+3}], 0 offen")
        e(f"buffer_load_dwordx4 v[{base+4}:{base+7}], v13, s[{sr}:{sr+3}], 0 offen offset:16")
        e(f"buffer_load_dwordx4 v[{base+8}:{base+11}], v13, s[{sr}:{sr+3}], 0 offen offset:32")
        e(f"buffer_load_dwordx2 v[{base+12}:{base+13}], v13, s[{sr}:{sr+3}], 0 offen offset:48")
    e("v_mov_b32 v13, 0")
    e("buffer_load_ushort v192, v13, s[64:67], 0 offen")


def prep_weights(e):
    k0 = -2.0 * math.sqrt(2.0 / math.pi) * math.log2(math.e)
    k1 = k0 * 0.044715
    f2u = lambda f: struct.unpack("<I", struct.pack("<f", f))[0]
    e(f"s_mov_b32 s12, 0x{f2u(k0):08x}")
    e(f"s_mov_b32 s14, 0x{f2u(k1):08x}")
    e(f"s_mov_b32 s15, 0x{f2u(k1):08x}")
    e("v_mov_b32 v38, s12")
    e("v_mov_b32 v39, s12")
    for j in range(14):
        e(f"v_and_b32 v{W1P+2*j+1}, 0xffff0000, v{160+j}")
        e(f"v_lshlrev_b32 v{W1P+2*j}, 16, v{160+j}")
        e(f"v_and_b32 v{B1P+2*j+1}, 0xffff0000, v{176+j}")
        e(f"v_lshlrev_b32 v{B1P+2*j}, 16, v{176+j}")
    e("v_lshlrev_b32 v36, 16, v192")


def finish_F(e, accs):
    e("s_nop 2")
    for mod in ["quad_perm:[1,0,3,2] row_mask:0xf", "quad_perm:[2,3,0,1] row_mask:0xf",
                "row_half_mirror row_mask:0xf", "row_mirror row_mask:0xf",
                "row_bcast:15 row_mask:0xa", "row_bcast:31 row_mask:0xc"]:
        e("s_nop 1")
        for a in accs:
            e(f"v_add_f32_dpp v{a}, v{a}, v{a} {mod} bank_mask:0xf")
    for a in accs:
        bf16r(e, a)
        e(f"v_add_f32 v{a}, v{a}, v36")
        bf16r(e, a)


def gen(e, opt):
    NT = opt.get("nt", "nt")
    STAMP = opt.get("stamp", False)
    SLEEP = int(opt.get("sleep", 1))
    SLEEP2 = int(opt.get("sleep2", 1))
    SLEEP3 = int(opt.get("sleep3", 1))

    def stamp(k, wave=0):
        if not STAMP:
            return
        lab = e.newlabel("st")
        e(f"s_cmp_lg_u32 s3, {wave}")
        e(f"s_cbranch_scc1 {lab}")
        e("s_memrealtime s[92:93]")
        e("s_waitcnt lgkmcnt(0)")
        e("s_mov_b64 s[94:95], exec")
        e("s_mov_b64 exec, 1")
        e("v_mov_b32 v250, s92")
        e("v_mov_b32 v251, 0")
        e("s_lshl_b32 s96, s2, 6")
        e(f"s_add_u32 s96, s96, {ST_OFF + 4*k}")
        e("buffer_store_dword v250, v251, s[40:43], s96 offen")
        e("s_mov_b64 exec, s[94:95]")
        e.label(lab)

    e.raw(f".globl {KNAME}")
    e.raw(".p2align 8")
    e.raw(f".type {KNAME},@function")
    e.label(KNAME)
    DRY = opt.get("dry", True)
    e("s_cmp_ge_u32 s2, 256")
    e("s_cbranch_scc1 L_exit2")
    e("s_load_dwordx8 s[4:11], s[0:1], 0")
    e("s_load_dwordx2 s[12:13], s[0:1], 32")
    e("s_load_dwordx8 s[16:23], s[0:1], 48")
    e("s_load_dwordx4 s[24:27], s[0:1], 80")
    e("s_load_dwordx2 s[28:29], s[0:1], 96")
    e("s_memrealtime s[30:31]")
    e("v_lshrrev_b32 v1, 6, v0")
    e("v_and_b32 v2, 63, v0")
    e("v_lshrrev_b32 v3, 4, v2")
    e("v_readfirstlane_b32 s3, v1")
    for r in range(4, 36):
        e(f"v_mov_b32 v{r}, 0")
    e("s_mov_b32 s88, 0")
    e("s_mov_b32 s89, 0")
    e("s_mov_b32 s74, 0")
    e("s_mov_b32 s78, 0")
    e("s_mov_b32 s79, 0")
    e("v_and_b32 v22, 15, v2")
    if opt.get("xmap", True):
        e("s_and_b32 s75, s2, 7")
        e("s_lshr_b32 s73, s75, 1")
        e("s_xor_b32 s76, s75, s73")
        e("s_and_b32 s76, s76, 1")
        e("s_lshr_b32 s72, s2, 3")
        e("s_lshl_b32 s72, s72, 1")
        e("s_add_u32 s72, s72, s76")
    else:
        e("s_lshr_b32 s72, s2, 2")
        e("s_and_b32 s73, s2, 3")
    e("s_lshl_b32 s75, s72, 21")
    e("s_waitcnt lgkmcnt(0)")
    e("s_add_u32 s32, s6, s75")
    e("s_addc_u32 s33, s7, 0")
    e("s_mov_b32 s34, 0x200000")
    e("s_mov_b32 s35, 0x00020000")
    e("s_add_u32 s36, s8, s75")
    e("s_addc_u32 s37, s9, 0")
    e("s_mov_b32 s38, 0x200000")
    e("s_mov_b32 s39, 0x00020000")
    srd(e, 40, 28, WS_USED)
    srd(e, 44, 4, 8192)
    srd(e, 48, 10, 4 << 20)
    srd(e, 52, 16, 3584)
    srd(e, 56, 18, 3584)
    srd(e, 60, 20, 3584)
    srd(e, 64, 22, 2)
    srd(e, 68, 24, 8192)
    srd(e, 84, 12, 4 << 20)
    e("s_mov_b32 s101, s3")
    e("s_mov_b32 s98, 0")
    e(f"s_mov_b32 s80, 0x{SCALE:08x}")
    e(f"s_mov_b32 s81, 0x{LOG2E:08x}")
    stamp(0)
    e("s_lshl_b32 s75, s3, 10")
    e("v_lshlrev_b32 v5, 4, v2")
    e("buffer_load_dwordx4 v[8:11], v5, s[44:47], s75 offen")
    e("s_cmp_ge_u32 s3, 4")
    e("s_cbranch_scc1 L_helper_h1")

    VK, VV = 12, 16
    for i in range(4):
        e(f"v_add_u32 v23, {4*i}, v3")
        e(f"v_xor_b32 v23, v23, v22")
        e(f"v_lshlrev_b32 v23, 4, v23")
        e(f"v_lshl_add_u32 v{VK+i}, v3, 8, v23")
    for i in range(2):
        e(f"v_add_u32 v23, {4*i}, v3")
        e(f"v_lshlrev_b32 v23, 1, v23")
        e(f"v_xor_b32 v23, v23, v22")
        e(f"v_lshlrev_b32 v23, 4, v23")
        e(f"v_lshl_add_u32 v{VV+i}, v3, 8, v23")
    if opt.get("noswz"):
        for r in range(VK, VK + 6):
            e(f"v_lshlrev_b32 v{r}, 4, v2")
    e("s_lshl_b32 s74, s3, 15")
    NST = int(opt.get("nst", 8))
    LA = int(opt.get("la", 3))
    STEAL = opt.get("steal", True)

    def issue(kind, slot, soff):
        srdn = 32 if kind == "K" else 36
        ldsoff = (0 if kind == "K" else 16384) + slot * 8192
        for half in range(2):
            e(f"s_add_u32 s76, s74, {ldsoff + half*4096}")
            e(f"s_mov_b32 m0, s76")
            if half == 1:
                e(f"s_add_u32 s77, s{soff}, 16384")
            else:
                e(f"s_mov_b32 s77, s{soff}")
            for i in range(4):
                vo = (VK + i) if kind == "K" else (VV + (i & 1))
                e(f"buffer_load_dwordx4 v{vo}, s[{srdn}:{srdn+3}], s77 offen offset:{1024*i} {NT} lds")

    e("s_lshl_b32 s97, s3, 12")
    e("s_lshl_b32 s75, s73, 19")
    e("s_add_u32 s78, s75, s97")
    e("s_add_u32 s79, s78, 32768")
    e(f"v_mov_b32 v18, {L_QQ + 8}")
    e("s_lshl_b32 s75, s3, 2")
    e(f"s_add_u32 s75, s75, {L_P}")
    e("v_mov_b32 v19, s75")
    e("v_mov_b32 v20, 2")
    e("v_mov_b32 v23, 0")
    PRE = int(opt.get("pre", 0))
    units = [("K", 0, 78), ("V", 0, 78), ("K", 1, 79), ("V", 1, 79)]

    def issue_units(lo, hi):
        for u in range(lo, hi):
            issue(*units[u])
    PACE = int(opt.get("pace", 4))
    PRE = int(opt.get("pre", 0))
    if opt.get("prex"):
        e("s_waitcnt vmcnt(0)")
        issue_units(0, PRE)
    else:
        issue_units(0, PRE)
        e(f"s_waitcnt vmcnt({PRE*8})")
    e("s_branch L_ln")

    e.label("L_helper_h1")
    e("s_cmp_lg_u32 s3, 5")
    e("s_cbranch_scc1 L_h1_noclear")
    for i in range(4):
        e(f"v_mov_b32 v{16+i}, -1")
    e("v_lshlrev_b32 v12, 11, v3")
    e("v_lshl_add_u32 v12, v22, 5, v12")
    e("s_lshl_b32 s75, s72, 13")
    e("s_lshl_b32 s76, s73, 9")
    e("s_add_u32 s75, s75, s76")
    e(f"s_add_u32 s75, s75, {PO_OFF}")
    e("buffer_store_dwordx4 v[16:19], v12, s[40:43], s75 offen sc1")
    e("buffer_store_dwordx4 v[16:19], v12, s[40:43], s75 offen offset:16 sc1")
    e("v_lshrrev_b32 v12, 3, v2")
    e("v_lshlrev_b32 v12, 15, v12")
    e("v_and_b32 v13, 7, v2")
    e("v_lshl_add_u32 v12, v13, 4, v12")
    e("s_lshr_b32 s75, s2, 4")
    e("s_lshl_b32 s75, s75, 11")
    e("s_and_b32 s76, s2, 7")
    e("s_lshl_b32 s76, s76, 8")
    e("s_add_u32 s75, s75, s76")
    e("s_bfe_u32 s76, s2, 0x10003")
    e("s_lshl_b32 s76, s76, 7")
    e("s_add_u32 s75, s75, s76")
    e(f"s_add_u32 s75, s75, {WP_OFF}")
    e("buffer_store_dwordx4 v[16:19], v12, s[40:43], s75 offen sc1")
    e("v_lshlrev_b32 v12, 5, v2")
    e("s_lshl_b32 s75, s72, 7")
    e("s_lshl_b32 s76, s73, 3")
    e("s_add_u32 s75, s75, s76")
    e(f"s_add_u32 s75, s75, {PML_OFF}")
    e("s_mov_b64 exec, 15")
    e("buffer_store_dwordx2 v[16:17], v12, s[40:43], s75 offen sc1")
    e("s_mov_b64 exec, -1")
    e("s_and_b32 s75, s2, 31")
    e("s_cmp_ge_u32 s75, 8")
    e("s_cbranch_scc1 L_h1_cleared")
    e("s_lshl_b32 s75, s75, 3")
    e("s_lshr_b32 s76, s2, 5")
    e("s_add_u32 s75, s75, s76")
    e("s_lshl_b32 s75, s75, 8")
    e(f"s_add_u32 s75, s75, {CNT_OFF}")
    e("v_mov_b32 v12, 0")
    e("v_lshlrev_b32 v13, 6, v2")
    e("s_mov_b64 exec, 15")
    e("buffer_store_dword v12, v13, s[40:43], s75 offen sc1")
    e("s_mov_b64 exec, -1")
    e.label("L_h1_cleared")
    e("s_waitcnt vmcnt(0)")
    e.label("L_h1_noclear")
    e("s_lshr_b32 s75, s2, 5")
    e("s_lshl_b32 s75, s75, 3")
    e("s_and_b32 s76, s2, 7")
    e("s_add_u32 s75, s75, s76")
    e("s_lshl_b32 s75, s75, 2")
    e("s_lshr_b32 s76, s2, 3")
    e("s_and_b32 s76, s76, 3")
    e("s_add_u32 s88, s75, s76")
    e("v_lshrrev_b32 v12, 1, v2")
    e("v_lshlrev_b32 v12, 13, v12")
    e("v_and_b32 v13, 1, v2")
    e("v_lshl_add_u32 v12, v13, 4, v12")
    e("s_sub_u32 s89, s3, 4")
    e("s_lshl_b32 s75, s88, 5")
    e("s_lshl_b32 s76, s89, 18")
    e("s_add_u32 s75, s75, s76")
    e("s_lshl_b32 s76, s89, 10")
    e(f"s_add_u32 s76, s76, {L_WT}")
    for i in range(4):
        e("s_mov_b32 m0, s76")
        e("s_nop 0")
        e("buffer_load_dwordx4 v12, s[48:51], s75 offen lds")
        if i < 3:
            e("s_add_u32 s76, s76, 4096")
            e(f"s_add_u32 s75, s75, {128*8192}")
    WLATE = opt.get("wlate", True)
    if not WLATE:
        load_weights(e)
    e("v_mov_b32 v13, 0")
    e(f"v_mov_b32 v14, {L_FL}")
    e("v_mov_b32 v15, 0")
    e("v_mov_b32 v16, 0")
    e("ds_write_b64 v14, v[15:16]") if False else None
    e("ds_write_b32 v14, v13")
    e("ds_write_b32 v14, v13 offset:4")
    e("ds_write_b32 v14, v13 offset:12")
    e("s_lshl_b32 s75, s73, 4")
    e("v_add_u32 v15, s75, v2")
    e(f"v_cmp_gt_u32 vcc, {NST}, v2")
    e("v_lshlrev_b32 v16, 2, v2")
    e(f"v_add_u32 v16, {L_QQ}, v16")
    e("v_cndmask_b32 v15, -1, v15, vcc")
    e("v_mov_b32 v17, -1")
    e("ds_write_b32 v16, v15")
    e("s_mov_b64 exec, 0xffffffff")
    e("ds_write_b32 v16, v17 offset:256")
    e("s_mov_b64 exec, 15")
    e(f"v_lshlrev_b32 v16, 2, v2")
    e(f"v_add_u32 v16, {L_P}, v16")
    e("ds_write_b32 v16, v13")
    e("s_mov_b64 exec, -1")
    e(f"s_waitcnt vmcnt({4 if WLATE else 17})")
    e.label("L_ln")
    stamp(9, 4)
    unpack8(e, 8, 24)
    layernorm8(e, 24, 40, 92)
    for i in range(4):
        e(f"v_cvt_pk_bf16_f32 v{32+i}, v{24+2*i}, v{24+2*i+1}")
    e("s_lshl_b32 s75, s3, 10")
    e(f"s_add_u32 s75, s75, {L_LN}")
    e("v_add_u32 v6, s75, v5")
    e("ds_write_b128 v6, v[32:35]")
    e("s_cmp_lt_u32 s3, 4")
    e("s_cbranch_scc1 L_b1_s")
    e("s_waitcnt vmcnt(0)")
    e.label("L_b1_s")
    e("s_waitcnt lgkmcnt(0)")
    e("s_barrier")
    e("s_cmp_lt_u32 s3, 4")
    e("s_cbranch_scc1 L_s_pre")
    e("s_cmp_lg_u32 s3, 4")
    e("s_cbranch_scc1 L_table")
    stamp(6, 4)
    e("v_bfe_u32 v4, v2, 2, 2")
    e("v_and_b32 v5, 3, v2")
    e("v_lshl_add_u32 v6, v3, 3, v4")
    e("v_lshlrev_b32 v6, 5, v6")
    e("v_lshl_add_u32 v6, v5, 3, v6")
    e(f"v_add_u32 v6, {L_WT}, v6")
    e("v_and_b32 v7, 7, v2")
    e("v_lshlrev_b32 v7, 10, v7")
    e("v_lshl_add_u32 v7, v3, 4, v7")
    e(f"v_add_u32 v7, {L_LN}, v7")
    A0, B0 = 32, 112
    for hf in range(2):
        for s8 in range(8):
            s = hf * 8 + s8
            e(f"ds_read_b64_tr_b16 v[{A0+4*s}:{A0+4*s+1}], v6 offset:{s*1024}")
            e(f"ds_read_b64_tr_b16 v[{A0+4*s+2}:{A0+4*s+3}], v6 offset:{s*1024 + 128}")
            e(f"ds_read_b128 v[{B0+4*s8}:{B0+4*s8+3}], v7 offset:{s*64}")
            if s8 % 4 == 3:
                e("s_waitcnt lgkmcnt(0)")
        for s8 in range(8):
            s = hf * 8 + s8
            c = "0" if s == 0 else "v[8:11]"
            e(f"v_mfma_f32_16x16x32_bf16 v[8:11], v[{A0+4*s}:{A0+4*s+3}], v[{B0+4*s8}:{B0+4*s8+3}], {c}")
        if hf == 0:
            e("s_nop 7")
    e("s_memrealtime s[76:77]")
    e("v_lshlrev_b32 v5, 6, v22")
    e("v_lshl_add_u32 v5, v3, 4, v5")
    e("s_lshl_b32 s75, s88, 9")
    e(f"s_add_u32 s75, s75, {QG_OFF}")
    e("s_nop 4")
    e("s_waitcnt lgkmcnt(0)")
    e("v_cvt_pk_bf16_f32 v12, v8, v9")
    e("v_cvt_pk_bf16_f32 v13, v10, v11")
    e("v_mov_b32 v14, s76")
    e("v_mov_b32 v15, s77")
    e("v_cmp_gt_u32 vcc, 8, v22")
    e("s_and_saveexec_b64 s[82:83], vcc")
    e("buffer_store_dwordx4 v[12:15], v5, s[40:43], s75 offen sc1")
    e("s_mov_b64 exec, s[82:83]")
    QS = int(opt.get("qs", 0))
    if QS:
        if QS == 2:
            e("s_waitcnt vmcnt(0)")
        e(f"v_mov_b32 v29, {L_FL}")
        e("v_mov_b32 v30, 1")
        e("ds_write_b32 v29, v30 offset:12")
    e("v_lshrrev_b32 v5, 1, v2")
    e("v_lshlrev_b32 v5, 9, v5")
    e("v_and_b32 v6, 1, v2")
    e("v_lshl_add_u32 v5, v6, 5, v5")
    e("s_and_b32 s75, s72, 7")
    e("s_lshl_b32 s75, s75, 14")
    e("s_lshr_b32 s76, s72, 3")
    e("s_lshl_b32 s76, s76, 6")
    e("s_add_u32 s75, s75, s76")
    e(f"s_add_u32 s75, s75, {QG_OFF}")
    e("s_sub_u32 s30, s30, 2000")
    e("s_subb_u32 s31, s31, 0")
    e("v_mov_b32 v20, s31")
    e("v_mov_b32 v24, s88")
    e("v_mov_b32 v25, 1")
    e("s_and_b32 s76, s72, 7")
    e("s_lshl_b32 s76, s76, 5")
    e("v_and_b32 v26, 7, v2")
    e("v_lshlrev_b32 v26, 2, v26")
    e("v_add_u32 v26, s76, v26")
    e("s_mov_b32 s90, 0")
    e("s_mov_b32 s91, 0x01010101")
    e("s_mov_b32 s77, 0")
    e("s_mov_b32 s76, 0x100000")
    e.label("L_qpoll")
    e("buffer_load_dwordx4 v[8:11], v5, s[40:43], s75 offen sc1")
    e("buffer_load_dwordx4 v[16:19], v5, s[40:43], s75 offen offset:16 sc1")
    e("s_waitcnt vmcnt(0)")
    e("s_cmp_lg_u32 s77, 0")
    e("s_cbranch_scc1 L_qflagged")
    stamp(7, 4)
    e("s_mov_b32 s77, 1")
    e("s_mov_b64 exec, 1")
    e("global_store_byte v24, v25, s[26:27] sc1")
    e("s_mov_b64 exec, -1")
    e.label("L_qflagged")
    e("v_subrev_co_u32 v21, vcc, s30, v10")
    e("s_nop 1")
    e("v_subb_co_u32 v23, vcc, v11, v20, vcc")
    e("v_subrev_co_u32 v27, vcc, s30, v18")
    e("s_nop 1")
    e("v_subb_co_u32 v28, vcc, v19, v20, vcc")
    e("v_or_b32 v23, v23, v28")
    e("v_max_u32 v21, v21, v27")
    e("v_cmp_ne_u32 vcc, 0, v23")
    e("v_cmp_le_u32 s[82:83], s76, v21")
    e("s_or_b64 vcc, vcc, s[82:83]")
    e("s_cmp_eq_u64 vcc, 0")
    e("s_cbranch_scc1 L_qready")
    e("s_add_u32 s90, s90, 1")
    e(f"s_cmp_ge_u32 s90, {POLL_LIMIT}")
    e("s_cbranch_scc1 L_qready")
    e("s_and_b32 s82, s90, 63")
    e("s_cmp_lg_u32 s82, 0")
    e("s_cbranch_scc1 L_qsleep")
    e("global_load_dword v21, v26, s[26:27] sc1")
    e("s_waitcnt vmcnt(0)")
    e("v_cmp_ne_u32 vcc, s91, v21")
    e("s_nop 1")
    e("s_cmp_lg_u64 vcc, 0")
    e("s_cbranch_scc1 L_qsleep")
    e("buffer_load_dwordx4 v[8:11], v5, s[40:43], s75 offen sc1")
    e("buffer_load_dwordx4 v[16:19], v5, s[40:43], s75 offen offset:16 sc1")
    e("s_waitcnt vmcnt(0)")
    e("s_branch L_qready")
    e.label("L_qsleep")
    e(f"s_sleep {SLEEP}")
    e("s_branch L_qpoll")
    e.label("L_qready")
    stamp(8, 4)
    e("v_mov_b32 v10, v16")
    e("v_mov_b32 v11, v17")
    e("v_lshlrev_b32 v6, 4, v2")
    e(f"v_add_u32 v6, {L_Q}, v6")
    e("ds_write_b128 v6, v[8:11]")
    e("s_waitcnt lgkmcnt(0)")
    e(f"v_mov_b32 v14, {L_FL}")
    e("v_mov_b32 v15, 1")
    e("ds_write_b32 v14, v15")
    e("v_lshrrev_b32 v12, 2, v2")
    e("v_lshlrev_b32 v12, 10, v12")
    e("v_and_b32 v13, 3, v2")
    e("v_lshl_add_u32 v12, v13, 4, v12")
    e("s_lshr_b32 s75, s2, 4")
    e("s_lshl_b32 s75, s75, 18")
    e("s_and_b32 s76, s2, 7")
    e("s_lshl_b32 s76, s76, 7")
    e("s_add_u32 s75, s75, s76")
    e("s_bfe_u32 s76, s2, 0x10003")
    e("s_lshl_b32 s76, s76, 6")
    e("s_add_u32 s75, s75, s76")
    e(f"s_mov_b32 s76, {L_WT}")
    for it in range(16):
        e("s_mov_b32 m0, s76")
        e("s_nop 0")
        e("buffer_load_dwordx4 v12, s[84:87], s75 offen lds")
        if it < 15:
            e("s_add_u32 s76, s76, 1024")
            e("s_add_u32 s75, s75, 16384")
    e("s_branch L_table")
    e.label("L_s_pre")
    if QS:
        e(f"v_mov_b32 v5, {L_FL}")
        e("s_mov_b32 s90, 0")
        e.label("L_swait")
        e(f"ds_read_b32 v6, v5 offset:{0 if QS == 3 else 12}")
        e("s_waitcnt lgkmcnt(0)")
        e("v_readfirstlane_b32 s75, v6")
        e("s_cmp_lg_u32 s75, 0")
        e("s_cbranch_scc1 L_sgo")
        e("s_add_u32 s90, s90, 1")
        e(f"s_cmp_ge_u32 s90, {POLL_LIMIT*20}")
        e("s_cbranch_scc1 L_sgo")
        e("s_branch L_swait")
        e.label("L_sgo")
    e("v_mov_b32 v23, 0")
    if PRE < 4:
        if PRE > 0:
            e(f"s_waitcnt vmcnt({PACE})")
        issue_units(PRE, PRE + 1)
    KA, VA = 24, 28
    for i in range(4):
        e(f"v_add_u32 v23, {4*i}, v3")
        e(f"v_xor_b32 v23, v23, v22")
        e(f"v_lshlrev_b32 v23, 4, v23")
        e(f"v_lshl_add_u32 v23, v22, 8, v23")
        e(f"v_add_u32 v{KA+i}, s74, v23")
    e("v_bfe_u32 v40, v2, 2, 2")
    e("v_lshl_add_u32 v40, v3, 2, v40")
    e("v_and_b32 v41, 7, v40")
    e("v_lshlrev_b32 v41, 1, v41")
    e("v_bfe_u32 v42, v2, 1, 1")
    e("v_and_b32 v43, 1, v2")
    e("v_lshlrev_b32 v44, 8, v40")
    e("v_lshl_add_u32 v44, v43, 3, v44")
    e("v_add_u32 v44, s74, v44")
    e("v_add_u32 v44, 16384, v44")
    for j in range(8):
        e(f"v_xor_b32 v23, {2*j}, v41")
        e(f"v_add_u32 v23, v23, v42")
        e(f"v_lshl_add_u32 v{VA+j}, v23, 4, v44")
    QF, KF, VF, S0, P0, T0, OA = 36, 52, 84, 116, 124, 128, 144
    MREF, MNEG, THR, LSUM = 136, 137, 138, 139
    BP0, BP1 = 140, 141
    for i in range(32):
        e(f"v_mov_b32 v{OA+i}, 0")
    for i in range(16):
        e(f"v_mov_b32 v{QF+i}, 0")
    e(f"v_mov_b32 v{MREF}, 0x{NEGBIG:08x}")
    e(f"v_mov_b32 v{THR}, 0x{NEGBIG:08x}")
    e(f"v_mov_b32 v{MNEG}, 0")
    e(f"v_mov_b32 v{LSUM}, 0")
    e(f"v_xor_b32 v{BP0}, 16, v2")
    e(f"v_lshlrev_b32 v{BP0}, 2, v{BP0}")
    e(f"v_xor_b32 v{BP1}, 32, v2")
    e(f"v_lshlrev_b32 v{BP1}, 2, v{BP1}")
    e("v_lshlrev_b32 v4, 8, v22")
    e("v_lshl_add_u32 v4, v3, 4, v4")
    e(f"v_add_u32 v4, {L_Q}, v4")
    e("v_mov_b32 v23, 0")
    NSPIN = int(opt.get("nspin", 8))
    e(f"v_mov_b32 v5, {L_FL}")
    for u in range(PRE + 1, 4):
        if NSPIN:
            e("s_mov_b32 s90, 0")
            e.label(f"L_pw{u}")
            e("ds_read_b32 v6, v5")
            e("s_waitcnt lgkmcnt(0)")
            e("v_readfirstlane_b32 s75, v6")
            e("s_cmp_lg_u32 s75, 0")
            e(f"s_cbranch_scc1 L_pg{u}")
            e("s_add_u32 s90, s90, 1")
            e(f"s_cmp_ge_u32 s90, {NSPIN}")
            e(f"s_cbranch_scc1 L_pg{u}")
            e("s_sleep 1")
            e(f"s_branch L_pw{u}")
            e.label(f"L_pg{u}")
        else:
            e(f"s_waitcnt vmcnt({PACE})")
        issue_units(u, u + 1)
    RPF = opt.get("rpf", True)
    if RPF:
        if NSPIN:
            e("s_mov_b32 s90, 0")
            e.label("L_pw9")
            e("ds_read_b32 v6, v5")
            e("s_waitcnt lgkmcnt(0)")
            e("v_readfirstlane_b32 s75, v6")
            e("s_cmp_lg_u32 s75, 0")
            e("s_cbranch_scc1 L_pg9")
            e("s_add_u32 s90, s90, 1")
            e(f"s_cmp_ge_u32 s90, {NSPIN}")
            e("s_cbranch_scc1 L_pg9")
            e("s_sleep 1")
            e("s_branch L_pw9")
            e.label("L_pg9")
        e("s_add_u32 s76, s78, 65536")
        e("s_add_u32 s77, s76, 16384")
        for half in range(2):
            for i in range(4):
                r = 176 + (half * 4 + i) * 4
                e(f"buffer_load_dwordx4 v[{r}:{r+3}], v{VK+i}, s[32:35], s{76+half} offen offset:{1024*i} {NT}")
        for half in range(2):
            for i in range(4):
                r = 208 + (half * 4 + i) * 4
                e(f"buffer_load_dwordx4 v[{r}:{r+3}], v{VV+(i&1)}, s[36:39], s{76+half} offen offset:{1024*i} {NT}")
        e("v_lshlrev_b32 v240, 4, v2")
        e("v_add_u32 v240, s74, v240")
        e("s_mov_b32 s99, 1")
    e(f"v_mov_b32 v5, {L_FL}")
    e("s_mov_b32 s90, 0")
    if opt.get("nowait"):
        e("s_branch L_qhere")
    e.label("L_qwait")
    e("ds_read_b32 v6, v5")
    e("s_waitcnt lgkmcnt(0)")
    e("v_readfirstlane_b32 s75, v6")
    e("s_cmp_lg_u32 s75, 0")
    e("s_cbranch_scc1 L_qhere")
    e("s_add_u32 s90, s90, 1")
    e(f"s_cmp_ge_u32 s90, {POLL_LIMIT*20}")
    e("s_cbranch_scc1 L_qhere")
    e("s_sleep 1")
    e("s_branch L_qwait")
    e.label("L_qhere")
    stamp(1)
    e("v_cmp_gt_u32 vcc, 4, v22")
    e("s_and_saveexec_b64 s[82:83], vcc")
    for i in range(4):
        e(f"ds_read_b128 v[{QF+4*i}:{QF+4*i+3}], v4 offset:{64*i}")
    e("s_mov_b64 exec, s[82:83]")
    e("s_waitcnt lgkmcnt(0)")
    if STAMP:
        e("s_waitcnt vmcnt(0)")
    if opt.get("itall"):
        e("v_mov_b32 v245, 0")
        e("s_memrealtime s[100:101]")
        e("s_waitcnt lgkmcnt(0)")
        e("s_nop 3")
        e("v_writelane_b32 v245, s100, 1")
        e("v_writelane_b32 v245, s30, 0")
    e(f"s_setprio {int(opt.get('prio', 2))}")
    e.label("L_loop")
    rares = []
    NOC = int(opt.get("noc", 0))
    e_real = e
    class F:
        def __call__(self, x):
            op = x.split()[0]
            if NOC >= 1 and (op.startswith("v_mfma") or op.startswith("v_exp") or op.startswith("v_cvt") or op.startswith("v_fma") or op.startswith("v_mul") or op.startswith("v_max") or op.startswith("v_add_f32") or op.startswith("v_lshlrev") or op.startswith("v_and") or op.startswith("v_cmp") or op == "s_cbranch_vccnz"):
                return
            if NOC >= 2 and op.startswith("ds_read"):
                return
            e_real(x)
        def label(self, n): e_real.label(n)
        def newlabel(self, b): return e_real.newlabel(b)
    e = F()
    VEARLY = opt.get("vearly", False)

    def vpart(slot):
        e("s_waitcnt vmcnt(24)")
        for j in range(8):
            for hb in range(2):
                r = VF + j * 4 + hb * 2
                e(f"ds_read_b64_tr_b16 v[{r}:{r+1}], v{VA+j} offset:{slot*8192 + hb*4096}")
        e("s_waitcnt lgkmcnt(0)")
        if RPF and slot == 0:
            e_real("s_cmp_eq_u32 s99, 0")
            e_real("s_cbranch_scc1 L_rv0")
            for k in range(8):
                e_real(f"ds_write_b128 v240, v[{208+4*k}:{211+4*k}] offset:{16384 + 1024*k}")
            e_real("s_mov_b32 s99, 0")
            e_real("s_branch L_rv1")
            e_real.label("L_rv0")
        issue("V", slot, 78 + slot)
        if RPF and slot == 0:
            e_real.label("L_rv1")

    for slot in range(2):
        e("s_waitcnt vmcnt(24)")
        for u in range(2):
            for i in range(4):
                r = KF + (u * 4 + i) * 4
                e(f"ds_read_b128 v[{r}:{r+3}], v{KA+i} offset:{slot*8192 + u*4096}")
        e_real("ds_write_b32 v19, v20")
        if opt.get("itall"):
            e_real("v_readfirstlane_b32 s90, v20")
            e_real("s_memrealtime s[100:101]")
            e_real("s_waitcnt lgkmcnt(0)")
            e_real("s_nop 3")
            e_real("s_mov_b32 m0, s90")
            e_real("s_nop 3")
            e_real("v_writelane_b32 v245, s100, m0")
        if opt.get("itst"):
            lab = e_real.newlabel("it")
            e_real("v_readfirstlane_b32 s90, v20")
            e_real("s_cmp_eq_u32 s90, 6")
            e_real(f"s_cbranch_scc0 {lab}a")
            e_real("s_memrealtime s[100:101]")
            e_real("s_waitcnt lgkmcnt(0)")
            e_real("s_mov_b32 s98, s100")
            e_real.label(f"{lab}a")
            e_real("s_cmp_eq_u32 s90, 14")
            e_real(f"s_cbranch_scc0 {lab}b")
            e_real("s_memrealtime s[100:101]")
            e_real("s_waitcnt lgkmcnt(0)")
            e_real("s_mov_b32 s99, s100")
            e_real.label(f"{lab}b")
        e_real("s_mov_b32 s90, 0")
        e_real.label(f"L_qq{slot}")
        e_real("ds_read_b32 v21, v18")
        e_real("s_waitcnt lgkmcnt(0)")
        e_real("v_readfirstlane_b32 s75, v21")
        e_real("s_add_u32 s90, s90, 1")
        e_real("s_cmp_lt_u32 s90, 0x1000000")
        e_real("s_cselect_b32 s75, s75, 64")
        e_real("s_cmp_eq_u32 s75, -1")
        e_real(f"s_cbranch_scc1 L_qq{slot}")
        e_real("v_add_u32 v18, 4, v18")
        e_real("v_add_u32 v20, 1, v20")
        e("s_lshl_b32 s75, s75, 15")
        e(f"s_add_u32 s{78+slot}, s75, s97")
        if RPF and slot == 0:
            e_real("s_cmp_eq_u32 s99, 0")
            e_real("s_cbranch_scc1 L_rk0")
            e_real("s_waitcnt vmcnt(0)")
            for k in range(8):
                e_real(f"ds_write_b128 v240, v[{176+4*k}:{179+4*k}] offset:{1024*k}")
            e_real("s_branch L_rk1")
            e_real.label("L_rk0")
        issue("K", slot, 78 + slot)
        if RPF and slot == 0:
            e_real.label("L_rk1")
        if VEARLY:
            vpart(slot)
        for i in range(4):
            for u in range(2):
                r = KF + (u * 4 + i) * 4
                c = "0" if i == 0 else f"v[{S0+4*u}:{S0+4*u+3}]"
                e(f"v_mfma_f32_16x16x32_bf16 v[{S0+4*u}:{S0+4*u+3}], v[{r}:{r+3}], v[{QF+4*i}:{QF+4*i+3}], {c}")
        e("s_nop 7")
        for i in range(4):
            e(f"v_cvt_pk_bf16_f32 v{T0+i}, v{S0+2*i}, v{S0+2*i+1}")
        for i in range(4):
            e(f"v_lshlrev_b32 v{S0+2*i}, 16, v{T0+i}")
            e(f"v_and_b32 v{S0+2*i+1}, 0xffff0000, v{T0+i}")
        for i in range(8):
            e(f"v_mul_f32 v{S0+i}, s80, v{S0+i}")
        for i in range(4):
            e(f"v_cvt_pk_bf16_f32 v{T0+i}, v{S0+2*i}, v{S0+2*i+1}")
        for i in range(4):
            e(f"v_lshlrev_b32 v{S0+2*i}, 16, v{T0+i}")
            e(f"v_and_b32 v{S0+2*i+1}, 0xffff0000, v{T0+i}")
        e(f"v_max3_f32 v{T0}, v{S0}, v{S0+1}, v{S0+2}")
        e(f"v_max3_f32 v{T0+1}, v{S0+3}, v{S0+4}, v{S0+5}")
        e(f"v_max3_f32 v{T0}, v{T0}, v{S0+6}, v{S0+7}")
        e(f"v_max_f32 v{T0}, v{T0}, v{T0+1}")
        e(f"v_cmp_gt_f32 vcc, v{T0}, v{THR}")
        rl, bl = f"L_rare{slot}", f"L_back{slot}"
        e(f"s_cbranch_vccnz {rl}")
        e.label(bl)
        rares.append((rl, bl))
        for i in range(8):
            e(f"v_fma_f32 v{S0+i}, v{S0+i}, s81, v{MNEG}")
        for i in range(8):
            e(f"v_exp_f32 v{S0+i}, v{S0+i}")
        e("s_nop 0")
        for i in range(4):
            e(f"v_cvt_pk_bf16_f32 v{P0+i}, v{S0+2*i}, v{S0+2*i+1}")
        e(f"v_add_f32 v{T0}, v{S0}, v{S0+1}")
        e(f"v_add_f32 v{T0+1}, v{S0+2}, v{S0+3}")
        e(f"v_add_f32 v{T0+2}, v{S0+4}, v{S0+5}")
        e(f"v_add_f32 v{T0+3}, v{S0+6}, v{S0+7}")
        e(f"v_add_f32 v{T0}, v{T0}, v{T0+1}")
        e(f"v_add_f32 v{T0+2}, v{T0+2}, v{T0+3}")
        e(f"v_add_f32 v{T0}, v{T0}, v{T0+2}")
        e(f"v_add_f32 v{LSUM}, v{LSUM}, v{T0}")
        if not VEARLY:
            vpart(slot)
        for j in range(8):
            r = VF + j * 4
            e(f"v_mfma_f32_16x16x32_bf16 v[{OA+4*j}:{OA+4*j+3}], v[{r}:{r+3}], v[{P0}:{P0+3}], v[{OA+4*j}:{OA+4*j+3}]")
        e(f"s_cmp_ge_u32 s{78+(slot^1)}, 0x200000")
        if slot == 0:
            e("s_cbranch_scc1 L_loop_done")
        else:
            e("s_cbranch_scc0 L_loop")
    e = e_real
    e.label("L_loop_done")
    stamp(14, 0)
    if opt.get("itall"):
        e("v_lshlrev_b32 v246, 2, v2")
        e("s_lshl_b32 s96, s2, 2")
        e("s_add_u32 s96, s96, s3")
        e("s_lshl_b32 s96, s96, 8")
        e(f"s_add_u32 s96, s96, {TB_OFF + 0x10000}")
        e("buffer_store_dword v245, v246, s[40:43], s96 offen")
    if opt.get("itst"):
        e("s_cmp_lg_u32 s3, 0")
        e("s_cbranch_scc1 L_itd")
        e("s_mov_b64 exec, 1")
        e("v_mov_b32 v250, s98")
        e("v_mov_b32 v251, s99")
        e("v_mov_b32 v252, 0")
        e("s_lshl_b32 s96, s2, 6")
        e(f"s_add_u32 s96, s96, {ST_OFF + 4*6}")
        e("buffer_store_dwordx2 v[250:251], v252, s[40:43], s96 offen")
        e("s_mov_b64 exec, -1")
        e.label("L_itd")
    e("s_nop 7")
    e("s_nop 7")
    e("s_lshl_b32 s75, s3, 11")
    e(f"s_add_u32 s75, s75, {L_CB}")
    e("v_lshlrev_b32 v40, 9, v22")
    e("v_lshl_add_u32 v40, v3, 4, v40")
    e("v_add_u32 v40, s75, v40")
    e("s_lshl_b32 s76, s3, 2")
    e("v_lshlrev_b32 v41, 4, v22")
    e("v_add_u32 v41, s76, v41")
    e("v_lshlrev_b32 v42, 2, v41")
    e("v_lshl_add_u32 v42, v3, 2, v42")
    e(f"v_add_u32 v41, {L_ST}, v41")
    e(f"v_add_u32 v42, {L_ST+64}, v42")
    e("v_cmp_gt_u32 vcc, 4, v22")
    e("s_and_saveexec_b64 s[82:83], vcc")
    for j in range(8):
        e(f"ds_write_b128 v40, v[{OA+4*j}:{OA+4*j+3}] offset:{64*j}")
    e(f"ds_write_b32 v41, v{MREF}")
    e(f"ds_write_b32 v42, v{LSUM}")
    e("s_mov_b64 exec, s[82:83]")
    e("s_branch L_b3")

    e.label("L_sched")
    e(f"v_mov_b32 v5, {L_FL}")
    e("s_mov_b32 s90, 0")
    e.label("L_sq")
    e("ds_read_b32 v6, v5")
    e("s_waitcnt lgkmcnt(0)")
    e("v_readfirstlane_b32 s75, v6")
    e("s_cmp_lg_u32 s75, 0")
    e("s_cbranch_scc1 L_sq_ok")
    e("s_add_u32 s90, s90, 1")
    e(f"s_cmp_ge_u32 s90, {POLL_LIMIT*20}")
    e("s_cbranch_scc1 L_sq_ok")
    e("s_sleep 2")
    e("s_branch L_sq")
    e.label("L_sq_ok")
    e(f"s_mov_b32 s4, {NST}")
    e("s_mov_b32 s5, 0")
    e(f"v_mov_b32 v5, {L_P}")
    e("s_mov_b64 exec, 1")
    e.label("L_sloop0")
    e("ds_read_b128 v[8:11], v5")
    e("s_waitcnt lgkmcnt(0)")
    e("v_max_u32 v8, v8, v9")
    e("v_max3_u32 v8, v8, v10, v11")
    e("s_nop 0")
    e("v_readfirstlane_b32 s6, v8")
    e(f"s_add_u32 s6, s6, {1 + LA}")
    e("s_cmp_lt_u32 s4, s6")
    e("s_cbranch_scc1 L_sclaim")
    e("s_sleep 2")
    e("s_branch L_sloop0")
    e.label("L_sclaim")
    e("s_add_u32 s7, s73, s5")
    e("s_and_b32 s7, s7, 3")
    e("s_lshl_b32 s8, s72, 8")
    e("s_lshl_b32 s9, s7, 6")
    e("s_add_u32 s8, s8, s9")
    e(f"s_add_u32 s8, s8, {CNT_OFF}")
    e("v_mov_b32 v12, s8")
    e("s_cmp_eq_u32 s5, 0")
    e("s_cselect_b32 s9, 1, 0x10000")
    e("v_mov_b32 v13, s9")
    e("global_atomic_add v14, v12, v13, s[28:29] sc0 sc1")
    e("s_waitcnt vmcnt(0)")
    e("v_readfirstlane_b32 s9, v14")
    e("s_and_b32 s10, s9, 0xffff")
    e("s_lshr_b32 s11, s9, 16")
    e("s_add_u32 s9, s10, s11")
    e(f"s_cmp_lt_u32 s9, {16 - NST}")
    e("s_cbranch_scc1 L_sgot")
    e("s_add_u32 s5, s5, 1")
    e(f"s_cmp_lt_u32 s5, {4 if STEAL else 1}")
    e("s_cbranch_scc1 L_sclaim")
    e("s_mov_b64 exec, 0xff")
    e("s_lshl_b32 s8, s4, 2")
    e(f"s_add_u32 s8, s8, {L_QQ}")
    e("v_lshlrev_b32 v12, 2, v2")
    e("v_add_u32 v12, s8, v12")
    e("v_mov_b32 v13, 64")
    e("ds_write_b32 v12, v13")
    e("s_mov_b64 exec, -1")
    e("s_branch L_b3")
    e.label("L_sgot")
    e(f"s_add_u32 s10, s10, {NST}")
    e("s_sub_u32 s11, 15, s11")
    e("s_cmp_eq_u32 s5, 0")
    e("s_cselect_b32 s10, s10, s11")
    e("s_lshl_b32 s7, s7, 4")
    e("s_add_u32 s10, s10, s7")
    e("s_lshl_b32 s8, s4, 2")
    e(f"s_add_u32 s8, s8, {L_QQ}")
    e("v_mov_b32 v12, s8")
    e("v_mov_b32 v13, s10")
    e("ds_write_b32 v12, v13")
    e("s_add_u32 s4, s4, 1")
    e("s_branch L_sloop0")
    e.label("L_table")
    e("s_cmp_eq_u32 s3, 6")
    e("s_cbranch_scc1 L_sched")
    if opt.get("notable"):
        e("s_branch L_tdone")
    e("v_mov_b32 v6, 0")
    if WLATE:
        load_weights(e)
        e("s_waitcnt vmcnt(0)")
    prep_weights(e)
    e(f"v_mov_b32 v34, {L_FL+4}")
    e("v_mov_b32 v35, 1")
    ACC = 112
    stamp(13, 4)
    e.label("L_tloop")
    e("s_mov_b64 exec, 1")
    e("ds_add_rtn_u32 v33, v34, v35")
    e("s_mov_b64 exec, -1")
    e("s_waitcnt lgkmcnt(0)")
    e("v_readfirstlane_b32 s90, v33")
    e("s_cmp_ge_u32 s90, 11")
    e("s_cbranch_scc1 L_tdone")
    e("s_mul_i32 s75, s90, 3")
    e("s_lshl_b32 s20, s2, 5")
    for k in range(3):
        e(f"s_add_u32 s76, s75, {k}")
        e("s_add_u32 s77, s20, s76")
        e(f"s_mov_b32 s{22+k}, s77")
        e("s_and_b32 s4, s77, 4095")
        e("s_add_u32 s4, s4, 12800")
        e("s_lshr_b32 s5, s77, 12")
        e("s_lshl_b32 s5, s5, 15")
        e("s_or_b32 s77, s4, s5")
        if k == 2:
            e("s_add_u32 s4, s2, 8192")
            e("s_cmp_lt_u32 s76, 32")
            e("s_cselect_b32 s77, s77, 0")
            e(f"s_cselect_b32 s{22+k}, s{22+k}, s4")
        e(f"s_lshl_b32 s{22+k}, s{22+k}, 2")
        e(f"s_add_u32 s{22+k}, s{22+k}, {TB_OFF}")
        e("s_lshl_b32 s4, s77, 16")
        e("s_mov_b32 s5, s4")
        e(f"v_mov_b32 v{ACC+k}, 0")
        eval_F(e, ACC + k)
    finish_F(e, [ACC, ACC + 1, ACC + 2])
    e("s_mov_b32 exec_lo, 0")
    e("s_mov_b32 exec_hi, 0x80000000")
    for k in range(3):
        e(f"buffer_store_dword v{ACC+k}, v6, s[40:43], s{22+k} offen sc1")
    e("s_mov_b64 exec, -1")
    e("s_branch L_tloop")
    e.label("L_tdone")
    stamp(11, 4)
    if DRY:
        e("s_cmp_lg_u32 s3, 5")
        e("s_cbranch_scc1 L_nodry")
        e("s_mov_b32 s98, 1")
        e("s_mov_b32 s101, 0")
        e("s_mov_b64 exec, 0")
        e("s_branch L_tail")
        e.label("L_nodry")
    e("s_cmp_lg_u32 s3, 7")
    e("s_cbranch_scc1 L_b3")
    e("v_lshlrev_b32 v16, 2, v2")
    e("s_mov_b32 s90, 0")
    e("s_mov_b32 s91, 0x01010101")
    e.label("L_gpoll")
    e("global_load_dword v17, v16, s[26:27] sc1")
    e("s_waitcnt vmcnt(0)")
    e("v_cmp_ne_u32 vcc, s91, v17")
    e("s_nop 1")
    e("s_cmp_eq_u64 vcc, 0")
    e("s_cbranch_scc1 L_b3")
    e("s_add_u32 s90, s90, 1")
    e(f"s_cmp_ge_u32 s90, {POLL_LIMIT}")
    e("s_cbranch_scc1 L_b3")
    e("s_sleep 100")
    e("s_branch L_gpoll")
    e.label("L_b3")
    e("s_waitcnt vmcnt(0) lgkmcnt(0)")
    e("s_barrier")
    e.label("L_tail")
    stamp(2)
    e("s_cmp_ge_u32 s101, 2")
    e("s_cbranch_scc1 L_t2")
    e("v_lshrrev_b32 v4, 5, v0")
    e("v_and_b32 v5, 31, v0")
    e("v_lshlrev_b32 v6, 4, v4")
    e(f"v_add_u32 v6, {L_ST}, v6")
    e("ds_read_b128 v[44:47], v6")
    e("v_lshlrev_b32 v6, 6, v4")
    e(f"v_add_u32 v6, {L_ST+64}, v6")
    for w in range(4):
        e(f"ds_read_b128 v[{48+4*w}:{48+4*w+3}], v6 offset:{16*w}")
    e("v_lshlrev_b32 v6, 9, v4")
    e("v_lshl_add_u32 v6, v5, 4, v6")
    e(f"v_add_u32 v6, {L_CB}, v6")
    for w in range(4):
        e(f"ds_read_b128 v[{64+4*w}:{64+4*w+3}], v6 offset:{2048*w}")
    e("s_waitcnt lgkmcnt(0)")
    e("v_max3_f32 v80, v44, v45, v46")
    e("v_max_f32 v80, v80, v47")
    for w in range(4):
        e(f"v_sub_f32 v{44+w}, v{44+w}, v80")
        e(f"v_mul_f32 v{44+w}, s81, v{44+w}")
        e(f"v_exp_f32 v{44+w}, v{44+w}")
    for w in range(4):
        e(f"v_add_f32 v{48+4*w}, v{48+4*w}, v{49+4*w}")
        e(f"v_add_f32 v{50+4*w}, v{50+4*w}, v{51+4*w}")
        e(f"v_add_f32 v{48+4*w}, v{48+4*w}, v{50+4*w}")
    e("v_mul_f32 v81, v44, v48")
    for k in range(4):
        e(f"v_mul_f32 v{84+k}, v44, v{64+k}")
    for w in range(1, 4):
        e(f"v_fmac_f32 v81, v{44+w}, v{48+4*w}")
        for k in range(4):
            e(f"v_fmac_f32 v{84+k}, v{44+w}, v{64+4*w+k}")
    e("v_lshlrev_b32 v6, 11, v4")
    e("v_lshl_add_u32 v6, v5, 4, v6")
    e("s_lshl_b32 s75, s72, 13")
    e("s_lshl_b32 s76, s73, 9")
    e("s_add_u32 s75, s75, s76")
    e(f"s_add_u32 s75, s75, {PO_OFF}")
    e("buffer_store_dwordx4 v[84:87], v6, s[40:43], s75 offen sc1")
    e("v_lshlrev_b32 v6, 5, v4")
    e("s_lshl_b32 s75, s72, 7")
    e("s_lshl_b32 s76, s73, 3")
    e("s_add_u32 s75, s75, s76")
    e(f"s_add_u32 s75, s75, {PML_OFF}")
    e("v_cmp_eq_u32 vcc, 0, v5")
    e("s_and_saveexec_b64 s[82:83], vcc")
    e("buffer_store_dwordx2 v[80:81], v6, s[40:43], s75 offen sc1")
    e("s_mov_b64 exec, s[82:83]")
    e.label("L_t2")
    e("v_lshrrev_b32 v4, 5, v2")
    e("v_and_b32 v5, 31, v2")
    e("s_lshr_b32 s75, s2, 4")
    e("s_lshl_b32 s75, s75, 1")
    e("s_lshl_b32 s76, s3, 5")
    e("s_add_u32 s75, s75, s76")
    e("v_lshlrev_b32 v6, 5, v4")
    e("s_lshl_b32 s76, s75, 5")
    e(f"s_add_u32 s76, s76, {PML_OFF}")
    e("v_lshlrev_b32 v7, 11, v4")
    e("v_lshl_add_u32 v7, v5, 4, v7")
    e("s_lshl_b32 s77, s75, 11")
    e(f"s_add_u32 s77, s77, {PO_OFF}")
    e("s_mov_b32 s90, 0")
    e.label("L_mlpoll")
    e("buffer_load_dwordx4 v[16:19], v6, s[40:43], s76 offen sc1")
    e("buffer_load_dwordx4 v[20:23], v6, s[40:43], s76 offen offset:16 sc1")
    for s in range(4):
        e(f"buffer_load_dwordx4 v[{24+4*s}:{24+4*s+3}], v7, s[40:43], s77 offen offset:{512*s} sc1")
    e("s_waitcnt vmcnt(0)")
    e("v_max_u32 v40, v16, v17")
    for k in range(18, 40, 2):
        e(f"v_max3_u32 v40, v40, v{k}, v{k+1}")
    e("v_cmp_eq_u32 vcc, -1, v40")
    e("s_nop 1")
    e("s_cmp_eq_u64 vcc, 0")
    e("s_cbranch_scc1 L_mlready")
    e("s_add_u32 s90, s90, 1")
    e(f"s_cmp_ge_u32 s90, {POLL_LIMIT}")
    e("s_cbranch_scc1 L_mlready")
    e(f"s_sleep {SLEEP2}")
    e("s_branch L_mlpoll")
    e.label("L_mlready")
    stamp(10, 0)
    e("v_max3_f32 v60, v16, v18, v20")
    e("v_max_f32 v60, v60, v22")
    for s in range(4):
        e(f"v_sub_f32 v{44+s}, v{16+2*s}, v60")
        e(f"v_mul_f32 v{44+s}, s81, v{44+s}")
        e(f"v_exp_f32 v{44+s}, v{44+s}")
    e("s_nop 0")
    e("v_mul_f32 v61, v44, v17")
    for s in range(1, 4):
        e(f"v_fmac_f32 v61, v{44+s}, v{17+2*s}")
    e("v_rcp_f32 v61, v61")
    e("s_nop 0")
    for s in range(4):
        e(f"v_mul_f32 v{44+s}, v{44+s}, v61")
    e.label("L_poready")
    for k in range(4):
        e(f"v_mul_f32 v{48+k}, v44, v{24+k}")
        for s in range(1, 4):
            e(f"v_fmac_f32 v{48+k}, v{44+s}, v{24+4*s+k}")
    e("v_cvt_pk_bf16_f32 v52, v48, v49")
    e("v_cvt_pk_bf16_f32 v53, v50, v51")
    e("v_lshlrev_b32 v6, 3, v0")
    e(f"v_add_u32 v6, {L_OA}, v6")
    e("ds_write_b64 v6, v[52:53]")
    e("s_waitcnt lgkmcnt(0)")
    e("s_cbranch_execz L_skipB4")
    e("s_barrier")
    e.label("L_skipB4")
    stamp(3)
    e("s_cmp_ge_u32 s101, 2")
    e("s_cbranch_scc1 L_t4")
    e("v_and_b32 v22, 15, v2")
    e("v_bfe_u32 v4, v2, 2, 2")
    e("v_and_b32 v5, 3, v2")
    e("v_lshl_add_u32 v6, v3, 3, v4")
    e("v_lshlrev_b32 v6, 6, v6")
    e("v_lshl_add_u32 v6, v5, 3, v6")
    e("s_lshl_b32 s75, s3, 5")
    e(f"s_add_u32 s75, s75, {L_WT}")
    e("v_add_u32 v6, s75, v6")
    e("v_and_b32 v7, 7, v2")
    e("v_lshlrev_b32 v7, 9, v7")
    e("v_lshl_add_u32 v7, v3, 4, v7")
    e(f"v_add_u32 v7, {L_OA}, v7")
    A0, B0 = 32, 64
    for s in range(8):
        e(f"ds_read_b64_tr_b16 v[{A0+4*s}:{A0+4*s+1}], v6 offset:{s*2048}")
        e(f"ds_read_b64_tr_b16 v[{A0+4*s+2}:{A0+4*s+3}], v6 offset:{s*2048 + 256}")
        e(f"ds_read_b128 v[{B0+4*s}:{B0+4*s+3}], v7 offset:{s*64}")
        if s % 4 == 3:
            e("s_waitcnt lgkmcnt(0)")
    for s in range(8):
        c = "0" if s == 0 else "v[8:11]"
        e(f"v_mfma_f32_16x16x32_bf16 v[8:11], v[{A0+4*s}:{A0+4*s+3}], v[{B0+4*s}:{B0+4*s+3}], {c}")
    e("v_lshlrev_b32 v5, 15, v22")
    e("v_lshl_add_u32 v5, v3, 4, v5")
    e("s_lshr_b32 s75, s2, 4")
    e("s_lshl_b32 s75, s75, 11")
    e("s_and_b32 s76, s2, 7")
    e("s_lshl_b32 s76, s76, 8")
    e("s_add_u32 s75, s75, s76")
    e("s_bfe_u32 s76, s2, 0x10003")
    e("s_lshl_b32 s76, s76, 7")
    e("s_add_u32 s75, s75, s76")
    e("s_lshl_b32 s76, s3, 6")
    e("s_add_u32 s75, s75, s76")
    e(f"s_add_u32 s75, s75, {WP_OFF}")
    e("v_cmp_gt_u32 vcc, 8, v22")
    e("s_and_saveexec_b64 s[82:83], vcc")
    e("buffer_store_dwordx4 v[8:11], v5, s[40:43], s75 offen sc1")
    e("s_mov_b64 exec, s[82:83]")
    e.label("L_t4")
    e("s_and_b32 s75, s2, 31")
    e("s_cmp_lg_u32 s75, 0")
    e("s_cbranch_scc1 L_exit")
    e("s_lshr_b32 s77, s2, 5")
    e("s_lshl_b32 s75, s77, 10")
    e("v_lshlrev_b32 v4, 1, v0")
    e("buffer_load_ushort v44, v4, s[44:47], s75 offen")
    e("s_lshl_b32 s75, s77, 15")
    e(f"s_add_u32 s75, s75, {WP_OFF}")
    e("s_mov_b32 s90, 0")
    e("v_lshlrev_b32 v3, 2, v0")
    e.label("L_wppoll")
    for i in range(16):
        e(f"s_add_u32 s76, s75, {2048*i}")
        e(f"buffer_load_dword v{16+i}, v3, s[40:43], s76 offen sc1")
    e("s_waitcnt vmcnt(0)")
    e("v_max_u32 v40, v16, v17")
    for k in range(18, 32, 2):
        e(f"v_max3_u32 v40, v40, v{k}, v{k+1}")
    e("v_cmp_eq_u32 vcc, -1, v40")
    e("s_nop 1")
    e("s_cmp_eq_u64 vcc, 0")
    e("s_cbranch_scc1 L_wpok")
    e("s_add_u32 s90, s90, 1")
    e(f"s_cmp_ge_u32 s90, {POLL_LIMIT}")
    e("s_cbranch_scc1 L_wpok")
    e(f"s_sleep {SLEEP3}")
    e("s_branch L_wppoll")
    e.label("L_wpok")
    for i in range(1, 16):
        e(f"v_add_f32 v16, v16, v{16+i}")
    bf16r(e, 16)
    e("v_lshlrev_b32 v44, 16, v44")
    e("v_add_f32 v16, v16, v44")
    bf16r(e, 16)
    e(f"v_add_u32 v4, {L_H}, v3")
    e("ds_write_b32 v4, v16")
    e("s_waitcnt lgkmcnt(0)")
    e("s_cbranch_execz L_skipB5")
    e("s_barrier")
    e.label("L_skipB5")
    stamp(4)
    e("s_cmp_lg_u32 s101, 0")
    e("s_cbranch_scc1 L_exit")
    e("v_lshlrev_b32 v7, 5, v2")
    e(f"v_add_u32 v7, {L_H}, v7")
    e("ds_read_b128 v[16:19], v7")
    e("ds_read_b128 v[20:23], v7 offset:16")
    e("s_waitcnt lgkmcnt(0)")
    for k in range(8):
        e(f"v_mov_b32 v{200+k}, v{16+k}")
    layernorm8(e, 16, 64, 92)
    layernorm8(e, 16, 64, 92)
    stamp(12, 0)
    e(f"s_mov_b32 s76, {TB_OFF}")
    e("s_mov_b32 s75, 4096")
    e("s_mov_b64 s[20:21], 0")
    e("v_mov_b32 v34, 8192")
    for k in range(8):
        e(f"v_bfe_u32 v24, v{16+k}, 16, 15")
        e(f"v_lshrrev_b32 v32, 31, v{16+k}")
        e("v_subrev_u32 v25, 12800, v24")
        e("v_cmp_eq_u32 vcc, 0, v24")
        e("v_cmp_le_u32 s[82:83], s75, v25")
        if opt.get("tlo"):
            e(f"s_mov_b32 s86, {opt['tlo']}")
            e(f"v_cmp_gt_u32 s[84:85], s86, v24")
            e("s_or_b64 s[82:83], s[82:83], s[84:85]")
        e("v_mad_u32_u24 v33, v32, s75, v25")
        e("s_nop 1")
        e("v_cndmask_b32 v33, v33, v34, s[82:83]")
        e("s_andn2_b64 s[82:83], s[82:83], vcc")
        e("s_or_b64 s[20:21], s[20:21], s[82:83]")
        e("v_lshlrev_b32 v33, 2, v33")
        e(f"buffer_load_dword v{208+k}, v33, s[40:43], s76 offen sc1")
    e("s_waitcnt vmcnt(0)")
    e("s_cmp_eq_u64 s[20:21], 0")
    e("s_cbranch_scc1 L_fast")
    e("v_lshlrev_b32 v7, 5, v2")
    e(f"v_add_u32 v8, {L_CB}, v7")
    e(f"v_add_u32 v9, {L_CB+2048}, v7")
    e("ds_write_b128 v8, v[16:19]")
    e("ds_write_b128 v8, v[20:23] offset:16")
    e("ds_write_b128 v9, v[208:211]")
    e("ds_write_b128 v9, v[212:215] offset:16")
    load_weights(e)
    e("s_waitcnt vmcnt(0) lgkmcnt(0)")
    prep_weights(e)
    e("s_mov_b32 s20, 0")
    e.label("L_sloop")
    e("s_lshl_b32 s21, s20, 2")
    e(f"s_add_u32 s21, s21, {L_CB}")
    e("v_mov_b32 v10, s21")
    e("ds_read_b32 v11, v10")
    e("s_waitcnt lgkmcnt(0)")
    e("v_readfirstlane_b32 s4, v11")
    e("s_bfe_u32 s21, s4, 0xf0010")
    e("s_cmp_eq_u32 s21, 0")
    e("s_cbranch_scc1 L_snext")
    if opt.get("tlo"):
        e(f"s_cmp_ge_u32 s21, {opt['tlo']}")
        e("s_cbranch_scc1 L_snext")
    else:
        e("s_sub_u32 s21, s21, 12800")
        e("s_cmp_lt_u32 s21, 4096")
        e("s_cbranch_scc1 L_snext")
    e("s_mov_b32 s5, s4")
    e("v_mov_b32 v112, 0")
    eval_F(e, 112)
    finish_F(e, [112])
    e("s_mov_b32 exec_lo, 0")
    e("s_mov_b32 exec_hi, 0x80000000")
    e("ds_write_b32 v10, v112 offset:2048")
    e("s_mov_b64 exec, -1")
    e.label("L_snext")
    e("s_add_u32 s20, s20, 1")
    e("s_cmp_lt_u32 s20, 512")
    e("s_cbranch_scc1 L_sloop")
    e("s_waitcnt lgkmcnt(0)")
    e("ds_read_b128 v[208:211], v9")
    e("ds_read_b128 v[212:215], v9 offset:16")
    e("s_waitcnt lgkmcnt(0)")
    e.label("L_fast")
    for k in range(8):
        e(f"v_add_f32 v{208+k}, v{208+k}, v{200+k}")
    for k in range(4):
        e(f"v_cvt_pk_bf16_f32 v{64+k}, v{208+2*k}, v{209+2*k}")
    e("v_lshlrev_b32 v8, 4, v2")
    e("s_lshl_b32 s75, s77, 10")
    e("buffer_store_dwordx4 v[64:67], v8, s[68:71], s75 offen")
    stamp(5)
    if opt.get("dbgst"):
        e("s_cmp_lg_u32 s2, 0")
        e("s_cbranch_scc1 L_exit")
        e("s_waitcnt vmcnt(0)")
        e("s_mov_b64 exec, 0xffff")
        e("v_lshlrev_b32 v250, 2, v2")
        e(f"s_mov_b32 s96, {ST_OFF}")
        e("buffer_load_dword v251, v250, s[40:43], s96 offen sc1")
        e("s_waitcnt vmcnt(0)")
        e("global_store_dword v250, v251, s[26:27]")
    e.label("L_exit")
    if DRY:
        e("s_cmp_eq_u32 s98, 0")
        e("s_cbranch_scc1 L_exit2")
        e("s_mov_b32 s98, 0")
        e("s_mov_b32 s101, s3")
        e("s_mov_b64 exec, -1")
        e("s_branch L_b3")
    e.label("L_exit2")
    e("s_endpgm")
    for rl, bl in rares:
        e.label(rl)
        e(f"ds_bpermute_b32 v{T0+1}, v{BP0}, v{T0}")
        e("s_waitcnt lgkmcnt(0)")
        e(f"v_max_f32 v{T0}, v{T0}, v{T0+1}")
        e(f"ds_bpermute_b32 v{T0+1}, v{BP1}, v{T0}")
        e("s_waitcnt lgkmcnt(0)")
        e(f"v_max3_f32 v{T0}, v{T0}, v{T0+1}, v{MREF}")
        e(f"v_sub_f32 v{T0+1}, v{MREF}, v{T0}")
        e(f"v_mul_f32 v{T0+1}, s81, v{T0+1}")
        e(f"v_exp_f32 v{T0+1}, v{T0+1}")
        e("s_nop 0")
        for i in range(32):
            e(f"v_mul_f32 v{OA+i}, v{OA+i}, v{T0+1}")
        e(f"v_mul_f32 v{LSUM}, v{LSUM}, v{T0+1}")
        e(f"v_mov_b32 v{MREF}, v{T0}")
        e(f"v_mul_f32 v{MNEG}, s81, v{T0}")
        e(f"v_sub_f32 v{MNEG}, 0, v{MNEG}")
        e(f"v_add_f32 v{THR}, 0x40a00000, v{T0}")
        e(f"s_branch {bl}")


def main():
    opt = {}
    for a in sys.argv[2:]:
        k, v = a.split("=")
        opt[k] = {"0": False, "1": True}.get(v, v)
    e = E()
    e.raw(HEADER.rstrip("\n"))
    e.raw(f"; @launch grid=(256,1,1) block=(512,1,1) lds={LDS_TOTAL}")
    e.raw('.amdgcn_target "amdgcn-amd-amdhsa--gfx950"')
    e.raw(".text")
    gen(e, opt)
    e.raw('.section .rodata,"a"')
    e.raw(".p2align 6")
    e.raw(f""".amdhsa_kernel {KNAME}
  .amdhsa_next_free_vgpr 256
  .amdhsa_next_free_sgpr 102
  .amdhsa_accum_offset 256
  .amdhsa_group_segment_fixed_size 0
  .amdhsa_kernarg_size 104
  .amdhsa_user_sgpr_count 2
  .amdhsa_user_sgpr_kernarg_segment_ptr 1
  .amdhsa_system_sgpr_workgroup_id_x 1
.end_amdhsa_kernel""")
    open(sys.argv[1], "w").write(e.text())


main()
```

```python
import sys, struct, math

KNAME = "sequential_preLN__gqa_block_cached__mixer_token_mlp__decode_kernel"
HEADER = open("sequential_preLN__gqa_block_cached__mixer_token_mlp__decode.s.ref").read().split("; Override launch")[0]

Q_OFF = 0x0
PO_OFF = 0x10000
PML_OFF = 0x90000
WP_OFF = 0xA0000
ST_OFF = 0xE0000
CNT_OFF = 0xF0000
QG_OFF = 0x100000
TB_OFF = 0x120000
WS_USED = 0x180000

LOG2E = 0x3FB8AA3B
SCALE = 0x3DB504F3
NEGBIG = 0xF149F2CA

X = 131072
L_LN = X
L_CB = X
L_WT = X + 8192
L_Q = X + 24576
L_ST = X + 25600
L_OA = X + 26624
L_H = X + 30720
L_FL = X + 25600 + 512
L_P = X + 25600 + 528
L_QQ = X + 25600 + 576
LDS_TOTAL = 163840

POLL_LIMIT = 400000


class E:
    def __init__(self):
        self.lines = []
        self.lbl = 0

    def __call__(self, s):
        for ln in s.strip("\n").split("\n"):
            self.lines.append("    " + ln.strip())

    def label(self, name):
        self.lines.append(name + ":")

    def raw(self, s):
        self.lines.append(s)

    def newlabel(self, base):
        self.lbl += 1
        return f"L_{base}_{self.lbl}"

    def text(self):
        return "\n".join(self.lines) + "\n"


def srd(e, d, base_lo, nbytes):
    e(f"s_mov_b32 s{d}, s{base_lo}")
    e(f"s_mov_b32 s{d+1}, s{base_lo+1}")
    e(f"s_mov_b32 s{d+2}, {nbytes}")
    e(f"s_mov_b32 s{d+3}, 0x00020000")


def wave_allreduce_add(e, v, t, s0):
    e(f"s_nop 1")
    e(f"v_add_f32_dpp v{v}, v{v}, v{v} quad_perm:[1,0,3,2] row_mask:0xf bank_mask:0xf")
    e(f"s_nop 1")
    e(f"v_add_f32_dpp v{v}, v{v}, v{v} quad_perm:[2,3,0,1] row_mask:0xf bank_mask:0xf")
    e(f"s_nop 1")
    e(f"v_add_f32_dpp v{v}, v{v}, v{v} row_half_mirror row_mask:0xf bank_mask:0xf")
    e(f"s_nop 1")
    e(f"v_add_f32_dpp v{v}, v{v}, v{v} row_mirror row_mask:0xf bank_mask:0xf")
    e(f"s_nop 1")
    e(f"v_readlane_b32 s{s0}, v{v}, 0")
    e(f"v_readlane_b32 s{s0+1}, v{v}, 16")
    e(f"v_readlane_b32 s{s0+2}, v{v}, 32")
    e(f"v_readlane_b32 s{s0+3}, v{v}, 48")
    e(f"s_nop 1")
    e(f"v_mov_b32 v{t}, s{s0}")
    e(f"v_add_f32 v{t}, s{s0+1}, v{t}")
    e(f"v_add_f32 v{v}, s{s0+2}, v{t}")
    e(f"v_add_f32 v{v}, s{s0+3}, v{v}")


def bf16r(e, v):
    e(f"v_cvt_pk_bf16_f32 v{v}, v{v}, v{v}")
    e(f"v_lshlrev_b32 v{v}, 16, v{v}")


def layernorm8(e, x, t, s0):
    e(f"v_add_f32 v{t}, v{x}, v{x+1}")
    for i in range(2, 8):
        e(f"v_add_f32 v{t}, v{t}, v{x+i}")
    wave_allreduce_add(e, t, t + 1, s0)
    e(f"v_mul_f32 v{t}, 0x3b000000, v{t}")
    for i in range(8):
        e(f"v_sub_f32 v{t+2+i}, v{x+i}, v{t}")
    e(f"v_mul_f32 v{t+10}, v{t+2}, v{t+2}")
    for i in range(1, 8):
        e(f"v_fmac_f32 v{t+10}, v{t+2+i}, v{t+2+i}")
    wave_allreduce_add(e, t + 10, t + 1, s0)
    e(f"v_mul_f32 v{t+10}, 0x3b000000, v{t+10}")
    bf16r(e, t + 10)
    e(f"v_add_f32 v{t+10}, 0x3727c5ac, v{t+10}")
    bf16r(e, t + 10)
    e(f"v_sqrt_f32 v{t+10}, v{t+10}")
    e(f"s_nop 0")
    bf16r(e, t + 10)
    e(f"v_rcp_f32 v{t+11}, v{t+10}")
    bf16r(e, t)
    for i in range(8):
        e(f"v_sub_f32 v{x+i}, v{x+i}, v{t}")
    for i in range(0, 8, 2):
        e(f"v_cvt_pk_bf16_f32 v{t+2}, v{x+i}, v{x+i+1}")
        e(f"v_lshlrev_b32 v{x+i}, 16, v{t+2}")
        e(f"v_and_b32 v{x+i+1}, 0xffff0000, v{t+2}")
    for i in range(8):
        e(f"v_mul_f32 v{t+2}, v{x+i}, v{t+11}")
        e(f"v_fma_f32 v{t+3}, -v{t+2}, v{t+10}, v{x+i}")
        e(f"v_fma_f32 v{x+i}, v{t+3}, v{t+11}, v{t+2}")
    for i in range(0, 8, 2):
        e(f"v_cvt_pk_bf16_f32 v{t+2}, v{x+i}, v{x+i+1}")
        e(f"v_lshlrev_b32 v{x+i}, 16, v{t+2}")
        e(f"v_and_b32 v{x+i+1}, 0xffff0000, v{t+2}")


def unpack8(e, src, dst):
    for i in range(4):
        e(f"v_lshlrev_b32 v{dst+2*i}, 16, v{src+i}")
        e(f"v_and_b32 v{dst+2*i+1}, 0xffff0000, v{src+i}")


W1P, B1P, W2P = 40, 68, 96
TMP = 116


def eval_F(e, acc):
    for half in range(2):
        steps = []
        for jj in range(7):
            j = half * 7 + jj
            a = TMP + 6 * jj
            q = a + 2
            c = a + 4
            steps.append([
                f"v_pk_mul_f32 v[{a}:{a+1}], v[{W1P+2*j}:{W1P+2*j+1}], s[4:5]",
                f"v_cvt_pk_bf16_f32 v{c}, v{a}, v{a+1}",
                f"v_lshlrev_b32 v{a}, 16, v{c}",
                f"v_and_b32 v{a+1}, 0xffff0000, v{c}",
                f"v_pk_add_f32 v[{a}:{a+1}], v[{a}:{a+1}], v[{B1P+2*j}:{B1P+2*j+1}]",
                f"v_cvt_pk_bf16_f32 v{c}, v{a}, v{a+1}",
                f"v_lshlrev_b32 v{a}, 16, v{c}",
                f"v_and_b32 v{a+1}, 0xffff0000, v{c}",
                f"v_pk_mul_f32 v[{q}:{q+1}], v[{a}:{a+1}], v[{a}:{a+1}]",
                f"v_pk_fma_f32 v[{q}:{q+1}], v[{q}:{q+1}], s[14:15], v[38:39]",
                f"v_pk_mul_f32 v[{q}:{q+1}], v[{q}:{q+1}], v[{a}:{a+1}]",
                f"v_exp_f32 v{q}, v{q}",
                f"v_exp_f32 v{q+1}, v{q+1}",
                f"v_pk_add_f32 v[{q}:{q+1}], v[{q}:{q+1}], 1.0 op_sel_hi:[1,0]",
                f"v_rcp_f32 v{q}, v{q}",
                f"v_rcp_f32 v{q+1}, v{q+1}",
                f"v_pk_mul_f32 v[{q}:{q+1}], v[{q}:{q+1}], v[{a}:{a+1}]",
                f"v_cvt_pk_bf16_f32 v{c}, v{q}, v{q+1}",
                f"v_dot2_f32_bf16 v{acc}, v{c}, v{W2P+j}, v{acc}",
            ])
        for i in range(len(steps[0])):
            for jj in range(7):
                e(steps[jj][i])


def load_weights(e):
    e("v_mul_u32_u24 v13, 56, v2")
    for base, sr in ((160, 52), (176, 56), (96, 60)):
        e(f"buffer_load_dwordx4 v[{base}:{base+3}], v13, s[{sr}:{sr+3}], 0 offen")
        e(f"buffer_load_dwordx4 v[{base+4}:{base+7}], v13, s[{sr}:{sr+3}], 0 offen offset:16")
        e(f"buffer_load_dwordx4 v[{base+8}:{base+11}], v13, s[{sr}:{sr+3}], 0 offen offset:32")
        e(f"buffer_load_dwordx2 v[{base+12}:{base+13}], v13, s[{sr}:{sr+3}], 0 offen offset:48")
    e("v_mov_b32 v13, 0")
    e("buffer_load_ushort v192, v13, s[64:67], 0 offen")


def prep_weights(e):
    k0 = -2.0 * math.sqrt(2.0 / math.pi) * math.log2(math.e)
    k1 = k0 * 0.044715
    f2u = lambda f: struct.unpack("<I", struct.pack("<f", f))[0]
    e(f"s_mov_b32 s12, 0x{f2u(k0):08x}")
    e(f"s_mov_b32 s14, 0x{f2u(k1):08x}")
    e(f"s_mov_b32 s15, 0x{f2u(k1):08x}")
    e("v_mov_b32 v38, s12")
    e("v_mov_b32 v39, s12")
    for j in range(14):
        e(f"v_and_b32 v{W1P+2*j+1}, 0xffff0000, v{160+j}")
        e(f"v_lshlrev_b32 v{W1P+2*j}, 16, v{160+j}")
        e(f"v_and_b32 v{B1P+2*j+1}, 0xffff0000, v{176+j}")
        e(f"v_lshlrev_b32 v{B1P+2*j}, 16, v{176+j}")
    e("v_lshlrev_b32 v36, 16, v192")


def finish_F(e, accs):
    e("s_nop 2")
    for mod in ["quad_perm:[1,0,3,2] row_mask:0xf", "quad_perm:[2,3,0,1] row_mask:0xf",
                "row_half_mirror row_mask:0xf", "row_mirror row_mask:0xf",
                "row_bcast:15 row_mask:0xa", "row_bcast:31 row_mask:0xc"]:
        e("s_nop 1")
        for a in accs:
            e(f"v_add_f32_dpp v{a}, v{a}, v{a} {mod} bank_mask:0xf")
    for a in accs:
        bf16r(e, a)
        e(f"v_add_f32 v{a}, v{a}, v36")
        bf16r(e, a)


def gen(e, opt):
    NT = opt.get("nt", "nt")
    STAMP = opt.get("stamp", False)
    SLEEP = int(opt.get("sleep", 1))
    SLEEP2 = int(opt.get("sleep2", 1))
    SLEEP3 = int(opt.get("sleep3", 1))

    def stamp(k, wave=0):
        if not STAMP:
            return
        lab = e.newlabel("st")
        e(f"s_cmp_lg_u32 s3, {wave}")
        e(f"s_cbranch_scc1 {lab}")
        e("s_memrealtime s[92:93]")
        e("s_waitcnt lgkmcnt(0)")
        e("s_mov_b64 s[94:95], exec")
        e("s_mov_b64 exec, 1")
        e("v_mov_b32 v250, s92")
        e("v_mov_b32 v251, 0")
        e("s_lshl_b32 s96, s2, 6")
        e(f"s_add_u32 s96, s96, {ST_OFF + 4*k}")
        e("buffer_store_dword v250, v251, s[40:43], s96 offen")
        e("s_mov_b64 exec, s[94:95]")
        e.label(lab)

    e.raw(f".globl {KNAME}")
    e.raw(".p2align 8")
    e.raw(f".type {KNAME},@function")
    e.label(KNAME)
    DRY = opt.get("dry", True)
    e("s_cmp_ge_u32 s2, 256")
    e("s_cbranch_scc1 L_exit2")
    e("s_load_dwordx8 s[4:11], s[0:1], 0")
    e("s_load_dwordx2 s[12:13], s[0:1], 32")
    e("s_load_dwordx8 s[16:23], s[0:1], 48")
    e("s_load_dwordx4 s[24:27], s[0:1], 80")
    e("s_load_dwordx2 s[28:29], s[0:1], 96")
    e("s_memrealtime s[30:31]")
    e("v_lshrrev_b32 v1, 6, v0")
    e("v_and_b32 v2, 63, v0")
    e("v_lshrrev_b32 v3, 4, v2")
    e("v_readfirstlane_b32 s3, v1")
    for r in range(4, 36):
        e(f"v_mov_b32 v{r}, 0")
    e("s_mov_b32 s88, 0")
    e("s_mov_b32 s89, 0")
    e("s_mov_b32 s74, 0")
    e("s_mov_b32 s78, 0")
    e("s_mov_b32 s79, 0")
    e("v_and_b32 v22, 15, v2")
    if opt.get("xmap", True):
        e("s_and_b32 s75, s2, 7")
        e("s_lshr_b32 s73, s75, 1")
        e("s_xor_b32 s76, s75, s73")
        e("s_and_b32 s76, s76, 1")
        e("s_lshr_b32 s72, s2, 3")
        e("s_lshl_b32 s72, s72, 1")
        e("s_add_u32 s72, s72, s76")
    else:
        e("s_lshr_b32 s72, s2, 2")
        e("s_and_b32 s73, s2, 3")
    e("s_lshr_b32 s75, s2, 5")
    e("s_lshl_b32 s75, s75, 3")
    e("s_and_b32 s76, s2, 7")
    e("s_add_u32 s75, s75, s76")
    e("s_lshl_b32 s75, s75, 2")
    e("s_lshr_b32 s76, s2, 3")
    e("s_and_b32 s76, s76, 3")
    e("s_add_u32 s88, s75, s76")
    e("v_lshrrev_b32 v12, 1, v2")
    e("v_lshlrev_b32 v12, 13, v12")
    e("v_and_b32 v13, 1, v2")
    e("v_lshl_add_u32 v12, v13, 4, v12")
    e("s_sub_u32 s89, s3, 4")
    e("s_lshl_b32 s82, s88, 5")
    e("s_lshl_b32 s76, s89, 18")
    e("s_add_u32 s82, s82, s76")
    e("s_lshl_b32 s83, s89, 10")
    e(f"s_add_u32 s83, s83, {L_WT}")
    e("s_lshl_b32 s77, s3, 10")
    e("v_lshlrev_b32 v5, 4, v2")
    e("s_waitcnt lgkmcnt(0)")
    srd(e, 44, 4, 8192)
    srd(e, 48, 10, 4 << 20)
    e("buffer_load_dwordx4 v[8:11], v5, s[44:47], s77 offen")
    e("s_cmp_lt_u32 s3, 4")
    e("s_cbranch_scc1 L_nowq")
    for i in range(4):
        e("s_mov_b32 m0, s83")
        e("s_nop 0")
        e("buffer_load_dwordx4 v12, s[48:51], s82 offen lds")
        if i < 3:
            e("s_add_u32 s83, s83, 4096")
            e(f"s_add_u32 s82, s82, {128*8192}")
    e.label("L_nowq")
    e("s_lshl_b32 s75, s72, 21")
    e("s_add_u32 s32, s6, s75")
    e("s_addc_u32 s33, s7, 0")
    e("s_mov_b32 s34, 0x200000")
    e("s_mov_b32 s35, 0x00020000")
    e("s_add_u32 s36, s8, s75")
    e("s_addc_u32 s37, s9, 0")
    e("s_mov_b32 s38, 0x200000")
    e("s_mov_b32 s39, 0x00020000")
    srd(e, 40, 28, WS_USED)
    srd(e, 52, 16, 3584)
    srd(e, 56, 18, 3584)
    srd(e, 60, 20, 3584)
    srd(e, 64, 22, 2)
    srd(e, 68, 24, 8192)
    srd(e, 84, 12, 4 << 20)
    e("s_mov_b32 s101, s3")
    e("s_mov_b32 s98, 0")
    e(f"s_mov_b32 s80, 0x{SCALE:08x}")
    e(f"s_mov_b32 s81, 0x{LOG2E:08x}")
    stamp(0)
    e("s_cmp_ge_u32 s3, 4")
    e("s_cbranch_scc1 L_helper_h1")

    e("s_cmp_lg_u32 s3, 3")
    e("s_cbranch_scc1 L_h1_noclear")
    for i in range(4):
        e(f"v_mov_b32 v{16+i}, -1")
    e("v_lshlrev_b32 v12, 11, v3")
    e("v_lshl_add_u32 v12, v22, 5, v12")
    e("s_lshl_b32 s75, s72, 13")
    e("s_lshl_b32 s76, s73, 9")
    e("s_add_u32 s75, s75, s76")
    e(f"s_add_u32 s75, s75, {PO_OFF}")
    e("buffer_store_dwordx4 v[16:19], v12, s[40:43], s75 offen sc1")
    e("buffer_store_dwordx4 v[16:19], v12, s[40:43], s75 offen offset:16 sc1")
    e("v_lshrrev_b32 v12, 3, v2")
    e("v_lshlrev_b32 v12, 15, v12")
    e("v_and_b32 v13, 7, v2")
    e("v_lshl_add_u32 v12, v13, 4, v12")
    e("s_lshr_b32 s75, s2, 4")
    e("s_lshl_b32 s75, s75, 11")
    e("s_and_b32 s76, s2, 7")
    e("s_lshl_b32 s76, s76, 8")
    e("s_add_u32 s75, s75, s76")
    e("s_bfe_u32 s76, s2, 0x10003")
    e("s_lshl_b32 s76, s76, 7")
    e("s_add_u32 s75, s75, s76")
    e(f"s_add_u32 s75, s75, {WP_OFF}")
    e("buffer_store_dwordx4 v[16:19], v12, s[40:43], s75 offen sc1")
    e("v_lshlrev_b32 v12, 5, v2")
    e("s_lshl_b32 s75, s72, 7")
    e("s_lshl_b32 s76, s73, 3")
    e("s_add_u32 s75, s75, s76")
    e(f"s_add_u32 s75, s75, {PML_OFF}")
    e("s_mov_b64 exec, 15")
    e("buffer_store_dwordx2 v[16:17], v12, s[40:43], s75 offen sc1")
    e("s_mov_b64 exec, -1")
    e("s_and_b32 s75, s2, 31")
    e("s_cmp_ge_u32 s75, 8")
    e("s_cbranch_scc1 L_h1_cleared")
    e("s_lshl_b32 s75, s75, 3")
    e("s_lshr_b32 s76, s2, 5")
    e("s_add_u32 s75, s75, s76")
    e("s_lshl_b32 s75, s75, 8")
    e(f"s_add_u32 s75, s75, {CNT_OFF}")
    e("v_mov_b32 v12, 0")
    e("v_lshlrev_b32 v13, 6, v2")
    e("s_mov_b64 exec, 15")
    e("buffer_store_dword v12, v13, s[40:43], s75 offen sc1")
    e("s_mov_b64 exec, -1")
    e.label("L_h1_cleared")
    e("s_nop 1")
    e.label("L_h1_noclear")
    VK, VV = 12, 16
    for i in range(4):
        e(f"v_add_u32 v23, {4*i}, v3")
        e(f"v_xor_b32 v23, v23, v22")
        e(f"v_lshlrev_b32 v23, 4, v23")
        e(f"v_lshl_add_u32 v{VK+i}, v3, 8, v23")
    for i in range(2):
        e(f"v_add_u32 v23, {4*i}, v3")
        e(f"v_lshlrev_b32 v23, 1, v23")
        e(f"v_xor_b32 v23, v23, v22")
        e(f"v_lshlrev_b32 v23, 4, v23")
        e(f"v_lshl_add_u32 v{VV+i}, v3, 8, v23")
    if opt.get("noswz"):
        for r in range(VK, VK + 6):
            e(f"v_lshlrev_b32 v{r}, 4, v2")
    e("s_lshl_b32 s74, s3, 15")
    NST = int(opt.get("nst", 8))
    LA = int(opt.get("la", 3))
    STEAL = opt.get("steal", True)

    def issue(kind, slot, soff):
        srdn = 32 if kind == "K" else 36
        ldsoff = (0 if kind == "K" else 16384) + slot * 8192
        for half in range(2):
            e(f"s_add_u32 s76, s74, {ldsoff + half*4096}")
            e(f"s_mov_b32 m0, s76")
            if half == 1:
                e(f"s_add_u32 s77, s{soff}, 16384")
            else:
                e(f"s_mov_b32 s77, s{soff}")
            for i in range(4):
                vo = (VK + i) if kind == "K" else (VV + (i & 1))
                e(f"buffer_load_dwordx4 v{vo}, s[{srdn}:{srdn+3}], s77 offen offset:{1024*i} {NT} lds")

    e("s_lshl_b32 s97, s3, 12")
    e("s_lshl_b32 s75, s73, 19")
    e("s_add_u32 s78, s75, s97")
    e("s_add_u32 s79, s78, 32768")
    e(f"v_mov_b32 v18, {L_QQ + 8}")
    e("s_lshl_b32 s75, s3, 2")
    e(f"s_add_u32 s75, s75, {L_P}")
    e("v_mov_b32 v19, s75")
    e("v_mov_b32 v20, 2")
    e("v_mov_b32 v23, 0")
    PRE = int(opt.get("pre", 0))
    units = [("K", 0, 78), ("V", 0, 78), ("K", 1, 79), ("V", 1, 79)]

    def issue_units(lo, hi):
        for u in range(lo, hi):
            issue(*units[u])
    PACE = int(opt.get("pace", 4))
    PRE = int(opt.get("pre", 0))
    if opt.get("prex"):
        e("s_waitcnt vmcnt(0)")
        issue_units(0, PRE)
    else:
        issue_units(0, PRE)
        e(f"s_waitcnt vmcnt({PRE*8})")
    e("s_branch L_ln")

    e.label("L_helper_h1")
    WLATE = opt.get("wlate", True)
    if not WLATE:
        load_weights(e)
    e("v_mov_b32 v13, 0")
    e(f"v_mov_b32 v14, {L_FL}")
    e("v_mov_b32 v15, 0")
    e("v_mov_b32 v16, 0")
    e("ds_write_b64 v14, v[15:16]") if False else None
    e("ds_write_b32 v14, v13")
    e("ds_write_b32 v14, v13 offset:4")
    e("ds_write_b32 v14, v13 offset:12")
    e("s_lshl_b32 s75, s73, 4")
    e("v_add_u32 v15, s75, v2")
    e(f"v_cmp_gt_u32 vcc, {NST}, v2")
    e("v_lshlrev_b32 v16, 2, v2")
    e(f"v_add_u32 v16, {L_QQ}, v16")
    e("v_cndmask_b32 v15, -1, v15, vcc")
    e("v_mov_b32 v17, -1")
    e("ds_write_b32 v16, v15")
    e("s_mov_b64 exec, 0xffffffff")
    e("ds_write_b32 v16, v17 offset:256")
    e("s_mov_b64 exec, 15")
    e(f"v_lshlrev_b32 v16, 2, v2")
    e(f"v_add_u32 v16, {L_P}, v16")
    e("ds_write_b32 v16, v13")
    e("s_mov_b64 exec, -1")
    e(f"s_waitcnt vmcnt({4 if WLATE else 17})")
    e.label("L_ln")
    stamp(9, 4)
    unpack8(e, 8, 24)
    layernorm8(e, 24, 40, 92)
    for i in range(4):
        e(f"v_cvt_pk_bf16_f32 v{32+i}, v{24+2*i}, v{24+2*i+1}")
    e("s_lshl_b32 s75, s3, 10")
    e(f"s_add_u32 s75, s75, {L_LN}")
    e("v_add_u32 v6, s75, v5")
    e("ds_write_b128 v6, v[32:35]")
    e("s_cmp_lt_u32 s3, 4")
    e("s_cbranch_scc1 L_b1_s")
    e("s_waitcnt vmcnt(0)")
    e.label("L_b1_s")
    e("s_waitcnt lgkmcnt(0)")
    e("s_barrier")
    e("s_cmp_lt_u32 s3, 4")
    e("s_cbranch_scc1 L_s_pre")
    e("s_cmp_lg_u32 s3, 4")
    e("s_cbranch_scc1 L_table")
    stamp(6, 4)
    e("v_bfe_u32 v4, v2, 2, 2")
    e("v_and_b32 v5, 3, v2")
    e("v_lshl_add_u32 v6, v3, 3, v4")
    e("v_lshlrev_b32 v6, 5, v6")
    e("v_lshl_add_u32 v6, v5, 3, v6")
    e(f"v_add_u32 v6, {L_WT}, v6")
    e("v_and_b32 v7, 7, v2")
    e("v_lshlrev_b32 v7, 10, v7")
    e("v_lshl_add_u32 v7, v3, 4, v7")
    e(f"v_add_u32 v7, {L_LN}, v7")
    A0, B0 = 32, 112
    for hf in range(2):
        for s8 in range(8):
            s = hf * 8 + s8
            e(f"ds_read_b64_tr_b16 v[{A0+4*s}:{A0+4*s+1}], v6 offset:{s*1024}")
            e(f"ds_read_b64_tr_b16 v[{A0+4*s+2}:{A0+4*s+3}], v6 offset:{s*1024 + 128}")
            e(f"ds_read_b128 v[{B0+4*s8}:{B0+4*s8+3}], v7 offset:{s*64}")
            if s8 % 4 == 3:
                e("s_waitcnt lgkmcnt(0)")
        for s8 in range(8):
            s = hf * 8 + s8
            c = "0" if s == 0 else "v[8:11]"
            e(f"v_mfma_f32_16x16x32_bf16 v[8:11], v[{A0+4*s}:{A0+4*s+3}], v[{B0+4*s8}:{B0+4*s8+3}], {c}")
        if hf == 0:
            e("s_nop 7")
    e("s_memrealtime s[76:77]")
    e("v_lshlrev_b32 v5, 6, v22")
    e("v_lshl_add_u32 v5, v3, 4, v5")
    e("s_lshl_b32 s75, s88, 9")
    e(f"s_add_u32 s75, s75, {QG_OFF}")
    e("s_nop 4")
    e("s_waitcnt lgkmcnt(0)")
    e("v_cvt_pk_bf16_f32 v12, v8, v9")
    e("v_cvt_pk_bf16_f32 v13, v10, v11")
    e("v_mov_b32 v14, s76")
    e("v_mov_b32 v15, s77")
    e("v_cmp_gt_u32 vcc, 8, v22")
    e("s_and_saveexec_b64 s[82:83], vcc")
    e("buffer_store_dwordx4 v[12:15], v5, s[40:43], s75 offen sc1")
    e("s_mov_b64 exec, s[82:83]")
    QS = int(opt.get("qs", 0))
    if QS:
        if QS == 2:
            e("s_waitcnt vmcnt(0)")
        e(f"v_mov_b32 v29, {L_FL}")
        e("v_mov_b32 v30, 1")
        e("ds_write_b32 v29, v30 offset:12")
    e("v_lshrrev_b32 v5, 1, v2")
    e("v_lshlrev_b32 v5, 9, v5")
    e("v_and_b32 v6, 1, v2")
    e("v_lshl_add_u32 v5, v6, 5, v5")
    e("s_and_b32 s75, s72, 7")
    e("s_lshl_b32 s75, s75, 14")
    e("s_lshr_b32 s76, s72, 3")
    e("s_lshl_b32 s76, s76, 6")
    e("s_add_u32 s75, s75, s76")
    e(f"s_add_u32 s75, s75, {QG_OFF}")
    e("s_sub_u32 s30, s30, 2000")
    e("s_subb_u32 s31, s31, 0")
    e("v_mov_b32 v20, s31")
    e("v_mov_b32 v24, s88")
    e("v_mov_b32 v25, 1")
    e("s_and_b32 s76, s72, 7")
    e("s_lshl_b32 s76, s76, 5")
    e("v_and_b32 v26, 7, v2")
    e("v_lshlrev_b32 v26, 2, v26")
    e("v_add_u32 v26, s76, v26")
    e("s_mov_b32 s90, 0")
    e("s_mov_b32 s91, 0x01010101")
    e("s_mov_b32 s77, 0")
    e("s_mov_b32 s76, 0x100000")
    e.label("L_qpoll")
    e("buffer_load_dwordx4 v[8:11], v5, s[40:43], s75 offen sc1")
    e("buffer_load_dwordx4 v[16:19], v5, s[40:43], s75 offen offset:16 sc1")
    e("s_waitcnt vmcnt(0)")
    e("s_cmp_lg_u32 s77, 0")
    e("s_cbranch_scc1 L_qflagged")
    stamp(7, 4)
    e("s_mov_b32 s77, 1")
    e("s_mov_b64 exec, 1")
    e("global_store_byte v24, v25, s[26:27] sc1")
    e("s_mov_b64 exec, -1")
    e.label("L_qflagged")
    e("v_subrev_co_u32 v21, vcc, s30, v10")
    e("s_nop 1")
    e("v_subb_co_u32 v23, vcc, v11, v20, vcc")
    e("v_subrev_co_u32 v27, vcc, s30, v18")
    e("s_nop 1")
    e("v_subb_co_u32 v28, vcc, v19, v20, vcc")
    e("v_or_b32 v23, v23, v28")
    e("v_max_u32 v21, v21, v27")
    e("v_cmp_ne_u32 vcc, 0, v23")
    e("v_cmp_le_u32 s[82:83], s76, v21")
    e("s_or_b64 vcc, vcc, s[82:83]")
    e("s_cmp_eq_u64 vcc, 0")
    e("s_cbranch_scc1 L_qready")
    e("s_add_u32 s90, s90, 1")
    e(f"s_cmp_ge_u32 s90, {POLL_LIMIT}")
    e("s_cbranch_scc1 L_qready")
    e("s_and_b32 s82, s90, 63")
    e("s_cmp_lg_u32 s82, 0")
    e("s_cbranch_scc1 L_qsleep")
    e("global_load_dword v21, v26, s[26:27] sc1")
    e("s_waitcnt vmcnt(0)")
    e("v_cmp_ne_u32 vcc, s91, v21")
    e("s_nop 1")
    e("s_cmp_lg_u64 vcc, 0")
    e("s_cbranch_scc1 L_qsleep")
    e("buffer_load_dwordx4 v[8:11], v5, s[40:43], s75 offen sc1")
    e("buffer_load_dwordx4 v[16:19], v5, s[40:43], s75 offen offset:16 sc1")
    e("s_waitcnt vmcnt(0)")
    e("s_branch L_qready")
    e.label("L_qsleep")
    e(f"s_sleep {SLEEP}")
    e("s_branch L_qpoll")
    e.label("L_qready")
    stamp(8, 4)
    e("v_mov_b32 v10, v16")
    e("v_mov_b32 v11, v17")
    e("v_lshlrev_b32 v6, 4, v2")
    e(f"v_add_u32 v6, {L_Q}, v6")
    e("ds_write_b128 v6, v[8:11]")
    e("s_waitcnt lgkmcnt(0)")
    e(f"v_mov_b32 v14, {L_FL}")
    e("v_mov_b32 v15, 1")
    e("ds_write_b32 v14, v15")
    e("v_lshrrev_b32 v12, 2, v2")
    e("v_lshlrev_b32 v12, 10, v12")
    e("v_and_b32 v13, 3, v2")
    e("v_lshl_add_u32 v12, v13, 4, v12")
    e("s_lshr_b32 s75, s2, 4")
    e("s_lshl_b32 s75, s75, 18")
    e("s_and_b32 s76, s2, 7")
    e("s_lshl_b32 s76, s76, 7")
    e("s_add_u32 s75, s75, s76")
    e("s_bfe_u32 s76, s2, 0x10003")
    e("s_lshl_b32 s76, s76, 6")
    e("s_add_u32 s75, s75, s76")
    e(f"s_mov_b32 s76, {L_WT}")
    for it in range(16):
        e("s_mov_b32 m0, s76")
        e("s_nop 0")
        e("buffer_load_dwordx4 v12, s[84:87], s75 offen lds")
        if it < 15:
            e("s_add_u32 s76, s76, 1024")
            e("s_add_u32 s75, s75, 16384")
    e("s_branch L_table")
    e.label("L_s_pre")
    if QS:
        e(f"v_mov_b32 v5, {L_FL}")
        e("s_mov_b32 s90, 0")
        e.label("L_swait")
        e(f"ds_read_b32 v6, v5 offset:{0 if QS == 3 else 12}")
        e("s_waitcnt lgkmcnt(0)")
        e("v_readfirstlane_b32 s75, v6")
        e("s_cmp_lg_u32 s75, 0")
        e("s_cbranch_scc1 L_sgo")
        e("s_add_u32 s90, s90, 1")
        e(f"s_cmp_ge_u32 s90, {POLL_LIMIT*20}")
        e("s_cbranch_scc1 L_sgo")
        e("s_branch L_swait")
        e.label("L_sgo")
    e("v_mov_b32 v23, 0")
    if PRE < 4:
        if PRE > 0:
            e(f"s_waitcnt vmcnt({PACE})")
        issue_units(PRE, PRE + 1)
    KA, VA = 24, 28
    for i in range(4):
        e(f"v_add_u32 v23, {4*i}, v3")
        e(f"v_xor_b32 v23, v23, v22")
        e(f"v_lshlrev_b32 v23, 4, v23")
        e(f"v_lshl_add_u32 v23, v22, 8, v23")
        e(f"v_add_u32 v{KA+i}, s74, v23")
    e("v_bfe_u32 v40, v2, 2, 2")
    e("v_lshl_add_u32 v40, v3, 2, v40")
    e("v_and_b32 v41, 7, v40")
    e("v_lshlrev_b32 v41, 1, v41")
    e("v_bfe_u32 v42, v2, 1, 1")
    e("v_and_b32 v43, 1, v2")
    e("v_lshlrev_b32 v44, 8, v40")
    e("v_lshl_add_u32 v44, v43, 3, v44")
    e("v_add_u32 v44, s74, v44")
    e("v_add_u32 v44, 16384, v44")
    for j in range(8):
        e(f"v_xor_b32 v23, {2*j}, v41")
        e(f"v_add_u32 v23, v23, v42")
        e(f"v_lshl_add_u32 v{VA+j}, v23, 4, v44")
    QF, KF, VF, S0, P0, T0, OA = 36, 52, 84, 116, 124, 128, 144
    MREF, MNEG, THR, LSUM = 136, 137, 138, 139
    BP0, BP1 = 140, 141
    for i in range(32):
        e(f"v_mov_b32 v{OA+i}, 0")
    for i in range(16):
        e(f"v_mov_b32 v{QF+i}, 0")
    e(f"v_mov_b32 v{MREF}, 0x{NEGBIG:08x}")
    e(f"v_mov_b32 v{THR}, 0x{NEGBIG:08x}")
    e(f"v_mov_b32 v{MNEG}, 0")
    e(f"v_mov_b32 v{LSUM}, 0")
    e(f"v_xor_b32 v{BP0}, 16, v2")
    e(f"v_lshlrev_b32 v{BP0}, 2, v{BP0}")
    e(f"v_xor_b32 v{BP1}, 32, v2")
    e(f"v_lshlrev_b32 v{BP1}, 2, v{BP1}")
    e("v_lshlrev_b32 v4, 8, v22")
    e("v_lshl_add_u32 v4, v3, 4, v4")
    e(f"v_add_u32 v4, {L_Q}, v4")
    e("v_mov_b32 v23, 0")
    NSPIN = int(opt.get("nspin", 8))
    e(f"v_mov_b32 v5, {L_FL}")
    for u in range(PRE + 1, 4):
        if NSPIN:
            e("s_mov_b32 s90, 0")
            e.label(f"L_pw{u}")
            e("ds_read_b32 v6, v5")
            e("s_waitcnt lgkmcnt(0)")
            e("v_readfirstlane_b32 s75, v6")
            e("s_cmp_lg_u32 s75, 0")
            e(f"s_cbranch_scc1 L_pg{u}")
            e("s_add_u32 s90, s90, 1")
            e(f"s_cmp_ge_u32 s90, {NSPIN}")
            e(f"s_cbranch_scc1 L_pg{u}")
            e("s_sleep 1")
            e(f"s_branch L_pw{u}")
            e.label(f"L_pg{u}")
        else:
            e(f"s_waitcnt vmcnt({PACE})")
        issue_units(u, u + 1)
    RPF = opt.get("rpf", True)
    if RPF:
        if NSPIN:
            e("s_mov_b32 s90, 0")
            e.label("L_pw9")
            e("ds_read_b32 v6, v5")
            e("s_waitcnt lgkmcnt(0)")
            e("v_readfirstlane_b32 s75, v6")
            e("s_cmp_lg_u32 s75, 0")
            e("s_cbranch_scc1 L_pg9")
            e("s_add_u32 s90, s90, 1")
            e(f"s_cmp_ge_u32 s90, {NSPIN}")
            e("s_cbranch_scc1 L_pg9")
            e("s_sleep 1")
            e("s_branch L_pw9")
            e.label("L_pg9")
        e("s_add_u32 s76, s78, 65536")
        e("s_add_u32 s77, s76, 16384")
        for half in range(2):
            for i in range(4):
                r = 176 + (half * 4 + i) * 4
                e(f"buffer_load_dwordx4 v[{r}:{r+3}], v{VK+i}, s[32:35], s{76+half} offen offset:{1024*i} {NT}")
        for half in range(2):
            for i in range(4):
                r = 208 + (half * 4 + i) * 4
                e(f"buffer_load_dwordx4 v[{r}:{r+3}], v{VV+(i&1)}, s[36:39], s{76+half} offen offset:{1024*i} {NT}")
        e("v_lshlrev_b32 v240, 4, v2")
        e("v_add_u32 v240, s74, v240")
        e("s_mov_b32 s99, 1")
    e(f"v_mov_b32 v5, {L_FL}")
    e("s_mov_b32 s90, 0")
    if opt.get("nowait"):
        e("s_branch L_qhere")
    e.label("L_qwait")
    e("ds_read_b32 v6, v5")
    e("s_waitcnt lgkmcnt(0)")
    e("v_readfirstlane_b32 s75, v6")
    e("s_cmp_lg_u32 s75, 0")
    e("s_cbranch_scc1 L_qhere")
    e("s_add_u32 s90, s90, 1")
    e(f"s_cmp_ge_u32 s90, {POLL_LIMIT*20}")
    e("s_cbranch_scc1 L_qhere")
    e("s_sleep 1")
    e("s_branch L_qwait")
    e.label("L_qhere")
    stamp(1)
    e("v_cmp_gt_u32 vcc, 4, v22")
    e("s_and_saveexec_b64 s[82:83], vcc")
    for i in range(4):
        e(f"ds_read_b128 v[{QF+4*i}:{QF+4*i+3}], v4 offset:{64*i}")
    e("s_mov_b64 exec, s[82:83]")
    e("s_waitcnt lgkmcnt(0)")
    if STAMP:
        e("s_waitcnt vmcnt(0)")
    if opt.get("itall"):
        e("v_mov_b32 v245, 0")
        e("s_memrealtime s[100:101]")
        e("s_waitcnt lgkmcnt(0)")
        e("s_nop 3")
        e("v_writelane_b32 v245, s100, 1")
        e("v_writelane_b32 v245, s30, 0")
    e(f"s_setprio {int(opt.get('prio', 2))}")
    e.label("L_loop")
    rares = []
    NOC = int(opt.get("noc", 0))
    e_real = e
    class F:
        def __call__(self, x):
            op = x.split()[0]
            if NOC >= 1 and (op.startswith("v_mfma") or op.startswith("v_exp") or op.startswith("v_cvt") or op.startswith("v_fma") or op.startswith("v_mul") or op.startswith("v_max") or op.startswith("v_add_f32") or op.startswith("v_lshlrev") or op.startswith("v_and") or op.startswith("v_cmp") or op == "s_cbranch_vccnz"):
                return
            if NOC >= 2 and op.startswith("ds_read"):
                return
            e_real(x)
        def label(self, n): e_real.label(n)
        def newlabel(self, b): return e_real.newlabel(b)
    e = F()
    VEARLY = opt.get("vearly", False)

    def vpart(slot):
        e("s_waitcnt vmcnt(24)")
        for j in range(8):
            for hb in range(2):
                r = VF + j * 4 + hb * 2
                e(f"ds_read_b64_tr_b16 v[{r}:{r+1}], v{VA+j} offset:{slot*8192 + hb*4096}")
        e("s_waitcnt lgkmcnt(0)")
        if RPF and slot == 0:
            e_real("s_cmp_eq_u32 s99, 0")
            e_real("s_cbranch_scc1 L_rv0")
            for k in range(8):
                e_real(f"ds_write_b128 v240, v[{208+4*k}:{211+4*k}] offset:{16384 + 1024*k}")
            e_real("s_mov_b32 s99, 0")
            e_real("s_branch L_rv1")
            e_real.label("L_rv0")
        issue("V", slot, 78 + slot)
        if RPF and slot == 0:
            e_real.label("L_rv1")

    for slot in range(2):
        e("s_waitcnt vmcnt(24)")
        for u in range(2):
            for i in range(4):
                r = KF + (u * 4 + i) * 4
                e(f"ds_read_b128 v[{r}:{r+3}], v{KA+i} offset:{slot*8192 + u*4096}")
        e_real("ds_write_b32 v19, v20")
        if opt.get("itall"):
            e_real("v_readfirstlane_b32 s90, v20")
            e_real("s_memrealtime s[100:101]")
            e_real("s_waitcnt lgkmcnt(0)")
            e_real("s_nop 3")
            e_real("s_mov_b32 m0, s90")
            e_real("s_nop 3")
            e_real("v_writelane_b32 v245, s100, m0")
        if opt.get("itst"):
            lab = e_real.newlabel("it")
            e_real("v_readfirstlane_b32 s90, v20")
            e_real("s_cmp_eq_u32 s90, 6")
            e_real(f"s_cbranch_scc0 {lab}a")
            e_real("s_memrealtime s[100:101]")
            e_real("s_waitcnt lgkmcnt(0)")
            e_real("s_mov_b32 s98, s100")
            e_real.label(f"{lab}a")
            e_real("s_cmp_eq_u32 s90, 14")
            e_real(f"s_cbranch_scc0 {lab}b")
            e_real("s_memrealtime s[100:101]")
            e_real("s_waitcnt lgkmcnt(0)")
            e_real("s_mov_b32 s99, s100")
            e_real.label(f"{lab}b")
        e_real("s_mov_b32 s90, 0")
        e_real.label(f"L_qq{slot}")
        e_real("ds_read_b32 v21, v18")
        e_real("s_waitcnt lgkmcnt(0)")
        e_real("v_readfirstlane_b32 s75, v21")
        e_real("s_add_u32 s90, s90, 1")
        e_real("s_cmp_lt_u32 s90, 0x1000000")
        e_real("s_cselect_b32 s75, s75, 64")
        e_real("s_cmp_eq_u32 s75, -1")
        e_real(f"s_cbranch_scc1 L_qq{slot}")
        e_real("v_add_u32 v18, 4, v18")
        e_real("v_add_u32 v20, 1, v20")
        e("s_lshl_b32 s75, s75, 15")
        e(f"s_add_u32 s{78+slot}, s75, s97")
        if RPF and slot == 0:
            e_real("s_cmp_eq_u32 s99, 0")
            e_real("s_cbranch_scc1 L_rk0")
            e_real("s_waitcnt vmcnt(0)")
            for k in range(8):
                e_real(f"ds_write_b128 v240, v[{176+4*k}:{179+4*k}] offset:{1024*k}")
            e_real("s_branch L_rk1")
            e_real.label("L_rk0")
        issue("K", slot, 78 + slot)
        if RPF and slot == 0:
            e_real.label("L_rk1")
        if VEARLY:
            vpart(slot)
        for i in range(4):
            for u in range(2):
                r = KF + (u * 4 + i) * 4
                c = "0" if i == 0 else f"v[{S0+4*u}:{S0+4*u+3}]"
                e(f"v_mfma_f32_16x16x32_bf16 v[{S0+4*u}:{S0+4*u+3}], v[{r}:{r+3}], v[{QF+4*i}:{QF+4*i+3}], {c}")
        e("s_nop 7")
        for i in range(4):
            e(f"v_cvt_pk_bf16_f32 v{T0+i}, v{S0+2*i}, v{S0+2*i+1}")
        for i in range(4):
            e(f"v_lshlrev_b32 v{S0+2*i}, 16, v{T0+i}")
            e(f"v_and_b32 v{S0+2*i+1}, 0xffff0000, v{T0+i}")
        for i in range(8):
            e(f"v_mul_f32 v{S0+i}, s80, v{S0+i}")
        for i in range(4):
            e(f"v_cvt_pk_bf16_f32 v{T0+i}, v{S0+2*i}, v{S0+2*i+1}")
        for i in range(4):
            e(f"v_lshlrev_b32 v{S0+2*i}, 16, v{T0+i}")
            e(f"v_and_b32 v{S0+2*i+1}, 0xffff0000, v{T0+i}")
        e(f"v_max3_f32 v{T0}, v{S0}, v{S0+1}, v{S0+2}")
        e(f"v_max3_f32 v{T0+1}, v{S0+3}, v{S0+4}, v{S0+5}")
        e(f"v_max3_f32 v{T0}, v{T0}, v{S0+6}, v{S0+7}")
        e(f"v_max_f32 v{T0}, v{T0}, v{T0+1}")
        e(f"v_cmp_gt_f32 vcc, v{T0}, v{THR}")
        rl, bl = f"L_rare{slot}", f"L_back{slot}"
        e(f"s_cbranch_vccnz {rl}")
        e.label(bl)
        rares.append((rl, bl))
        for i in range(8):
            e(f"v_fma_f32 v{S0+i}, v{S0+i}, s81, v{MNEG}")
        for i in range(8):
            e(f"v_exp_f32 v{S0+i}, v{S0+i}")
        e("s_nop 0")
        for i in range(4):
            e(f"v_cvt_pk_bf16_f32 v{P0+i}, v{S0+2*i}, v{S0+2*i+1}")
        e(f"v_add_f32 v{T0}, v{S0}, v{S0+1}")
        e(f"v_add_f32 v{T0+1}, v{S0+2}, v{S0+3}")
        e(f"v_add_f32 v{T0+2}, v{S0+4}, v{S0+5}")
        e(f"v_add_f32 v{T0+3}, v{S0+6}, v{S0+7}")
        e(f"v_add_f32 v{T0}, v{T0}, v{T0+1}")
        e(f"v_add_f32 v{T0+2}, v{T0+2}, v{T0+3}")
        e(f"v_add_f32 v{T0}, v{T0}, v{T0+2}")
        e(f"v_add_f32 v{LSUM}, v{LSUM}, v{T0}")
        if not VEARLY:
            vpart(slot)
        for j in range(8):
            r = VF + j * 4
            e(f"v_mfma_f32_16x16x32_bf16 v[{OA+4*j}:{OA+4*j+3}], v[{r}:{r+3}], v[{P0}:{P0+3}], v[{OA+4*j}:{OA+4*j+3}]")
        e(f"s_cmp_ge_u32 s{78+(slot^1)}, 0x200000")
        if slot == 0:
            e("s_cbranch_scc1 L_loop_done")
        else:
            e("s_cbranch_scc0 L_loop")
    e = e_real
    e.label("L_loop_done")
    stamp(14, 0)
    if opt.get("itall"):
        e("v_lshlrev_b32 v246, 2, v2")
        e("s_lshl_b32 s96, s2, 2")
        e("s_add_u32 s96, s96, s3")
        e("s_lshl_b32 s96, s96, 8")
        e(f"s_add_u32 s96, s96, {TB_OFF + 0x10000}")
        e("buffer_store_dword v245, v246, s[40:43], s96 offen")
    if opt.get("itst"):
        e("s_cmp_lg_u32 s3, 0")
        e("s_cbranch_scc1 L_itd")
        e("s_mov_b64 exec, 1")
        e("v_mov_b32 v250, s98")
        e("v_mov_b32 v251, s99")
        e("v_mov_b32 v252, 0")
        e("s_lshl_b32 s96, s2, 6")
        e(f"s_add_u32 s96, s96, {ST_OFF + 4*6}")
        e("buffer_store_dwordx2 v[250:251], v252, s[40:43], s96 offen")
        e("s_mov_b64 exec, -1")
        e.label("L_itd")
    e("s_nop 7")
    e("s_nop 7")
    e("s_lshl_b32 s75, s3, 11")
    e(f"s_add_u32 s75, s75, {L_CB}")
    e("v_lshlrev_b32 v40, 9, v22")
    e("v_lshl_add_u32 v40, v3, 4, v40")
    e("v_add_u32 v40, s75, v40")
    e("s_lshl_b32 s76, s3, 2")
    e("v_lshlrev_b32 v41, 4, v22")
    e("v_add_u32 v41, s76, v41")
    e("v_lshlrev_b32 v42, 2, v41")
    e("v_lshl_add_u32 v42, v3, 2, v42")
    e(f"v_add_u32 v41, {L_ST}, v41")
    e(f"v_add_u32 v42, {L_ST+64}, v42")
    e("v_cmp_gt_u32 vcc, 4, v22")
    e("s_and_saveexec_b64 s[82:83], vcc")
    for j in range(8):
        e(f"ds_write_b128 v40, v[{OA+4*j}:{OA+4*j+3}] offset:{64*j}")
    e(f"ds_write_b32 v41, v{MREF}")
    e(f"ds_write_b32 v42, v{LSUM}")
    e("s_mov_b64 exec, s[82:83]")
    e("s_branch L_b3")

    e.label("L_sched")
    e(f"v_mov_b32 v5, {L_FL}")
    e("s_mov_b32 s90, 0")
    e.label("L_sq")
    e("ds_read_b32 v6, v5")
    e("s_waitcnt lgkmcnt(0)")
    e("v_readfirstlane_b32 s75, v6")
    e("s_cmp_lg_u32 s75, 0")
    e("s_cbranch_scc1 L_sq_ok")
    e("s_add_u32 s90, s90, 1")
    e(f"s_cmp_ge_u32 s90, {POLL_LIMIT*20}")
    e("s_cbranch_scc1 L_sq_ok")
    e("s_sleep 2")
    e("s_branch L_sq")
    e.label("L_sq_ok")
    e(f"s_mov_b32 s4, {NST}")
    e("s_mov_b32 s5, 0")
    e(f"v_mov_b32 v5, {L_P}")
    e("s_mov_b64 exec, 1")
    e.label("L_sloop0")
    e("ds_read_b128 v[8:11], v5")
    e("s_waitcnt lgkmcnt(0)")
    e("v_max_u32 v8, v8, v9")
    e("v_max3_u32 v8, v8, v10, v11")
    e("s_nop 0")
    e("v_readfirstlane_b32 s6, v8")
    e(f"s_add_u32 s6, s6, {1 + LA}")
    e("s_cmp_lt_u32 s4, s6")
    e("s_cbranch_scc1 L_sclaim")
    e("s_sleep 2")
    e("s_branch L_sloop0")
    e.label("L_sclaim")
    e("s_add_u32 s7, s73, s5")
    e("s_and_b32 s7, s7, 3")
    e("s_lshl_b32 s8, s72, 8")
    e("s_lshl_b32 s9, s7, 6")
    e("s_add_u32 s8, s8, s9")
    e(f"s_add_u32 s8, s8, {CNT_OFF}")
    e("v_mov_b32 v12, s8")
    e("s_cmp_eq_u32 s5, 0")
    e("s_cselect_b32 s9, 1, 0x10000")
    e("v_mov_b32 v13, s9")
    e("global_atomic_add v14, v12, v13, s[28:29] sc0 sc1")
    e("s_waitcnt vmcnt(0)")
    e("v_readfirstlane_b32 s9, v14")
    e("s_and_b32 s10, s9, 0xffff")
    e("s_lshr_b32 s11, s9, 16")
    e("s_add_u32 s9, s10, s11")
    e(f"s_cmp_lt_u32 s9, {16 - NST}")
    e("s_cbranch_scc1 L_sgot")
    e("s_add_u32 s5, s5, 1")
    e(f"s_cmp_lt_u32 s5, {4 if STEAL else 1}")
    e("s_cbranch_scc1 L_sclaim")
    e("s_mov_b64 exec, 0xff")
    e("s_lshl_b32 s8, s4, 2")
    e(f"s_add_u32 s8, s8, {L_QQ}")
    e("v_lshlrev_b32 v12, 2, v2")
    e("v_add_u32 v12, s8, v12")
    e("v_mov_b32 v13, 64")
    e("ds_write_b32 v12, v13")
    e("s_mov_b64 exec, -1")
    e("s_branch L_b3")
    e.label("L_sgot")
    e(f"s_add_u32 s10, s10, {NST}")
    e("s_sub_u32 s11, 15, s11")
    e("s_cmp_eq_u32 s5, 0")
    e("s_cselect_b32 s10, s10, s11")
    e("s_lshl_b32 s7, s7, 4")
    e("s_add_u32 s10, s10, s7")
    e("s_lshl_b32 s8, s4, 2")
    e(f"s_add_u32 s8, s8, {L_QQ}")
    e("v_mov_b32 v12, s8")
    e("v_mov_b32 v13, s10")
    e("ds_write_b32 v12, v13")
    e("s_add_u32 s4, s4, 1")
    e("s_branch L_sloop0")
    e.label("L_table")
    e("s_cmp_eq_u32 s3, 6")
    e("s_cbranch_scc1 L_sched")
    if opt.get("notable"):
        e("s_branch L_tdone")
    e("v_mov_b32 v6, 0")
    if WLATE:
        load_weights(e)
        e("s_waitcnt vmcnt(0)")
    prep_weights(e)
    e(f"v_mov_b32 v34, {L_FL+4}")
    e("v_mov_b32 v35, 1")
    ACC = 112
    stamp(13, 4)
    e.label("L_tloop")
    e("s_mov_b64 exec, 1")
    e("ds_add_rtn_u32 v33, v34, v35")
    e("s_mov_b64 exec, -1")
    e("s_waitcnt lgkmcnt(0)")
    e("v_readfirstlane_b32 s90, v33")
    e("s_cmp_ge_u32 s90, 11")
    e("s_cbranch_scc1 L_tdone")
    e("s_mul_i32 s75, s90, 3")
    e("s_lshl_b32 s20, s2, 5")
    for k in range(3):
        e(f"s_add_u32 s76, s75, {k}")
        e("s_add_u32 s77, s20, s76")
        e(f"s_mov_b32 s{22+k}, s77")
        e("s_and_b32 s4, s77, 4095")
        e("s_add_u32 s4, s4, 12800")
        e("s_lshr_b32 s5, s77, 12")
        e("s_lshl_b32 s5, s5, 15")
        e("s_or_b32 s77, s4, s5")
        if k == 2:
            e("s_add_u32 s4, s2, 8192")
            e("s_cmp_lt_u32 s76, 32")
            e("s_cselect_b32 s77, s77, 0")
            e(f"s_cselect_b32 s{22+k}, s{22+k}, s4")
        e(f"s_lshl_b32 s{22+k}, s{22+k}, 2")
        e(f"s_add_u32 s{22+k}, s{22+k}, {TB_OFF}")
        e("s_lshl_b32 s4, s77, 16")
        e("s_mov_b32 s5, s4")
        e(f"v_mov_b32 v{ACC+k}, 0")
        eval_F(e, ACC + k)
    finish_F(e, [ACC, ACC + 1, ACC + 2])
    e("s_mov_b32 exec_lo, 0")
    e("s_mov_b32 exec_hi, 0x80000000")
    for k in range(3):
        e(f"buffer_store_dword v{ACC+k}, v6, s[40:43], s{22+k} offen sc1")
    e("s_mov_b64 exec, -1")
    e("s_branch L_tloop")
    e.label("L_tdone")
    stamp(11, 4)
    if DRY:
        e("s_cmp_lg_u32 s3, 5")
        e("s_cbranch_scc1 L_nodry")
        e("s_mov_b32 s98, 1")
        e("s_mov_b32 s101, 0")
        e("s_mov_b64 exec, 0")
        e("s_branch L_tail")
        e.label("L_nodry")
    e("s_cmp_lg_u32 s3, 7")
    e("s_cbranch_scc1 L_b3")
    e("v_lshlrev_b32 v16, 2, v2")
    e("s_mov_b32 s90, 0")
    e("s_mov_b32 s91, 0x01010101")
    e.label("L_gpoll")
    e("global_load_dword v17, v16, s[26:27] sc1")
    e("s_waitcnt vmcnt(0)")
    e("v_cmp_ne_u32 vcc, s91, v17")
    e("s_nop 1")
    e("s_cmp_eq_u64 vcc, 0")
    e("s_cbranch_scc1 L_b3")
    e("s_add_u32 s90, s90, 1")
    e(f"s_cmp_ge_u32 s90, {POLL_LIMIT}")
    e("s_cbranch_scc1 L_b3")
    e("s_sleep 100")
    e("s_branch L_gpoll")
    e.label("L_b3")
    e("s_waitcnt vmcnt(0) lgkmcnt(0)")
    e("s_barrier")
    e.label("L_tail")
    stamp(2)
    e("s_cmp_ge_u32 s101, 2")
    e("s_cbranch_scc1 L_t2")
    e("v_lshrrev_b32 v4, 5, v0")
    e("v_and_b32 v5, 31, v0")
    e("v_lshlrev_b32 v6, 4, v4")
    e(f"v_add_u32 v6, {L_ST}, v6")
    e("ds_read_b128 v[44:47], v6")
    e("v_lshlrev_b32 v6, 6, v4")
    e(f"v_add_u32 v6, {L_ST+64}, v6")
    for w in range(4):
        e(f"ds_read_b128 v[{48+4*w}:{48+4*w+3}], v6 offset:{16*w}")
    e("v_lshlrev_b32 v6, 9, v4")
    e("v_lshl_add_u32 v6, v5, 4, v6")
    e(f"v_add_u32 v6, {L_CB}, v6")
    for w in range(4):
        e(f"ds_read_b128 v[{64+4*w}:{64+4*w+3}], v6 offset:{2048*w}")
    e("s_waitcnt lgkmcnt(0)")
    e("v_max3_f32 v80, v44, v45, v46")
    e("v_max_f32 v80, v80, v47")
    for w in range(4):
        e(f"v_sub_f32 v{44+w}, v{44+w}, v80")
        e(f"v_mul_f32 v{44+w}, s81, v{44+w}")
        e(f"v_exp_f32 v{44+w}, v{44+w}")
    for w in range(4):
        e(f"v_add_f32 v{48+4*w}, v{48+4*w}, v{49+4*w}")
        e(f"v_add_f32 v{50+4*w}, v{50+4*w}, v{51+4*w}")
        e(f"v_add_f32 v{48+4*w}, v{48+4*w}, v{50+4*w}")
    e("v_mul_f32 v81, v44, v48")
    for k in range(4):
        e(f"v_mul_f32 v{84+k}, v44, v{64+k}")
    for w in range(1, 4):
        e(f"v_fmac_f32 v81, v{44+w}, v{48+4*w}")
        for k in range(4):
            e(f"v_fmac_f32 v{84+k}, v{44+w}, v{64+4*w+k}")
    e("v_lshlrev_b32 v6, 11, v4")
    e("v_lshl_add_u32 v6, v5, 4, v6")
    e("s_lshl_b32 s75, s72, 13")
    e("s_lshl_b32 s76, s73, 9")
    e("s_add_u32 s75, s75, s76")
    e(f"s_add_u32 s75, s75, {PO_OFF}")
    e("buffer_store_dwordx4 v[84:87], v6, s[40:43], s75 offen sc1")
    e("v_lshlrev_b32 v6, 5, v4")
    e("s_lshl_b32 s75, s72, 7")
    e("s_lshl_b32 s76, s73, 3")
    e("s_add_u32 s75, s75, s76")
    e(f"s_add_u32 s75, s75, {PML_OFF}")
    e("v_cmp_eq_u32 vcc, 0, v5")
    e("s_and_saveexec_b64 s[82:83], vcc")
    e("buffer_store_dwordx2 v[80:81], v6, s[40:43], s75 offen sc1")
    e("s_mov_b64 exec, s[82:83]")
    e.label("L_t2")
    e("v_lshrrev_b32 v4, 5, v2")
    e("v_and_b32 v5, 31, v2")
    e("s_lshr_b32 s75, s2, 4")
    e("s_lshl_b32 s75, s75, 1")
    e("s_lshl_b32 s76, s3, 5")
    e("s_add_u32 s75, s75, s76")
    e("v_lshlrev_b32 v6, 5, v4")
    e("s_lshl_b32 s76, s75, 5")
    e(f"s_add_u32 s76, s76, {PML_OFF}")
    e("v_lshlrev_b32 v7, 11, v4")
    e("v_lshl_add_u32 v7, v5, 4, v7")
    e("s_lshl_b32 s77, s75, 11")
    e(f"s_add_u32 s77, s77, {PO_OFF}")
    e("s_mov_b32 s90, 0")
    e.label("L_mlpoll")
    e("buffer_load_dwordx4 v[16:19], v6, s[40:43], s76 offen sc1")
    e("buffer_load_dwordx4 v[20:23], v6, s[40:43], s76 offen offset:16 sc1")
    for s in range(4):
        e(f"buffer_load_dwordx4 v[{24+4*s}:{24+4*s+3}], v7, s[40:43], s77 offen offset:{512*s} sc1")
    e("s_waitcnt vmcnt(0)")
    e("v_max_u32 v40, v16, v17")
    for k in range(18, 40, 2):
        e(f"v_max3_u32 v40, v40, v{k}, v{k+1}")
    e("v_cmp_eq_u32 vcc, -1, v40")
    e("s_nop 1")
    e("s_cmp_eq_u64 vcc, 0")
    e("s_cbranch_scc1 L_mlready")
    e("s_add_u32 s90, s90, 1")
    e(f"s_cmp_ge_u32 s90, {POLL_LIMIT}")
    e("s_cbranch_scc1 L_mlready")
    e(f"s_sleep {SLEEP2}")
    e("s_branch L_mlpoll")
    e.label("L_mlready")
    stamp(10, 0)
    e("v_max3_f32 v60, v16, v18, v20")
    e("v_max_f32 v60, v60, v22")
    for s in range(4):
        e(f"v_sub_f32 v{44+s}, v{16+2*s}, v60")
        e(f"v_mul_f32 v{44+s}, s81, v{44+s}")
        e(f"v_exp_f32 v{44+s}, v{44+s}")
    e("s_nop 0")
    e("v_mul_f32 v61, v44, v17")
    for s in range(1, 4):
        e(f"v_fmac_f32 v61, v{44+s}, v{17+2*s}")
    e("v_rcp_f32 v61, v61")
    e("s_nop 0")
    for s in range(4):
        e(f"v_mul_f32 v{44+s}, v{44+s}, v61")
    e.label("L_poready")
    for k in range(4):
        e(f"v_mul_f32 v{48+k}, v44, v{24+k}")
        for s in range(1, 4):
            e(f"v_fmac_f32 v{48+k}, v{44+s}, v{24+4*s+k}")
    e("v_cvt_pk_bf16_f32 v52, v48, v49")
    e("v_cvt_pk_bf16_f32 v53, v50, v51")
    e("v_lshlrev_b32 v6, 3, v0")
    e(f"v_add_u32 v6, {L_OA}, v6")
    e("ds_write_b64 v6, v[52:53]")
    e("s_waitcnt lgkmcnt(0)")
    e("s_cbranch_execz L_skipB4")
    e("s_barrier")
    e.label("L_skipB4")
    stamp(3)
    e("s_cmp_ge_u32 s101, 2")
    e("s_cbranch_scc1 L_t4")
    e("v_and_b32 v22, 15, v2")
    e("v_bfe_u32 v4, v2, 2, 2")
    e("v_and_b32 v5, 3, v2")
    e("v_lshl_add_u32 v6, v3, 3, v4")
    e("v_lshlrev_b32 v6, 6, v6")
    e("v_lshl_add_u32 v6, v5, 3, v6")
    e("s_lshl_b32 s75, s3, 5")
    e(f"s_add_u32 s75, s75, {L_WT}")
    e("v_add_u32 v6, s75, v6")
    e("v_and_b32 v7, 7, v2")
    e("v_lshlrev_b32 v7, 9, v7")
    e("v_lshl_add_u32 v7, v3, 4, v7")
    e(f"v_add_u32 v7, {L_OA}, v7")
    A0, B0 = 32, 64
    for s in range(8):
        e(f"ds_read_b64_tr_b16 v[{A0+4*s}:{A0+4*s+1}], v6 offset:{s*2048}")
        e(f"ds_read_b64_tr_b16 v[{A0+4*s+2}:{A0+4*s+3}], v6 offset:{s*2048 + 256}")
        e(f"ds_read_b128 v[{B0+4*s}:{B0+4*s+3}], v7 offset:{s*64}")
        if s % 4 == 3:
            e("s_waitcnt lgkmcnt(0)")
    for s in range(8):
        c = "0" if s == 0 else "v[8:11]"
        e(f"v_mfma_f32_16x16x32_bf16 v[8:11], v[{A0+4*s}:{A0+4*s+3}], v[{B0+4*s}:{B0+4*s+3}], {c}")
    e("v_lshlrev_b32 v5, 15, v22")
    e("v_lshl_add_u32 v5, v3, 4, v5")
    e("s_lshr_b32 s75, s2, 4")
    e("s_lshl_b32 s75, s75, 11")
    e("s_and_b32 s76, s2, 7")
    e("s_lshl_b32 s76, s76, 8")
    e("s_add_u32 s75, s75, s76")
    e("s_bfe_u32 s76, s2, 0x10003")
    e("s_lshl_b32 s76, s76, 7")
    e("s_add_u32 s75, s75, s76")
    e("s_lshl_b32 s76, s3, 6")
    e("s_add_u32 s75, s75, s76")
    e(f"s_add_u32 s75, s75, {WP_OFF}")
    e("v_cmp_gt_u32 vcc, 8, v22")
    e("s_and_saveexec_b64 s[82:83], vcc")
    e("buffer_store_dwordx4 v[8:11], v5, s[40:43], s75 offen sc1")
    e("s_mov_b64 exec, s[82:83]")
    e.label("L_t4")
    e("s_and_b32 s75, s2, 31")
    e("s_cmp_lg_u32 s75, 0")
    e("s_cbranch_scc1 L_exit")
    e("s_lshr_b32 s77, s2, 5")
    e("s_lshl_b32 s75, s77, 10")
    e("v_lshlrev_b32 v4, 1, v0")
    e("buffer_load_ushort v44, v4, s[44:47], s75 offen")
    e("s_lshl_b32 s75, s77, 15")
    e(f"s_add_u32 s75, s75, {WP_OFF}")
    e("s_mov_b32 s90, 0")
    e("v_lshlrev_b32 v3, 2, v0")
    e.label("L_wppoll")
    for i in range(16):
        e(f"s_add_u32 s76, s75, {2048*i}")
        e(f"buffer_load_dword v{16+i}, v3, s[40:43], s76 offen sc1")
    e("s_waitcnt vmcnt(0)")
    e("v_max_u32 v40, v16, v17")
    for k in range(18, 32, 2):
        e(f"v_max3_u32 v40, v40, v{k}, v{k+1}")
    e("v_cmp_eq_u32 vcc, -1, v40")
    e("s_nop 1")
    e("s_cmp_eq_u64 vcc, 0")
    e("s_cbranch_scc1 L_wpok")
    e("s_add_u32 s90, s90, 1")
    e(f"s_cmp_ge_u32 s90, {POLL_LIMIT}")
    e("s_cbranch_scc1 L_wpok")
    e(f"s_sleep {SLEEP3}")
    e("s_branch L_wppoll")
    e.label("L_wpok")
    for i in range(1, 16):
        e(f"v_add_f32 v16, v16, v{16+i}")
    bf16r(e, 16)
    e("v_lshlrev_b32 v44, 16, v44")
    e("v_add_f32 v16, v16, v44")
    bf16r(e, 16)
    e(f"v_add_u32 v4, {L_H}, v3")
    e("ds_write_b32 v4, v16")
    e("s_waitcnt lgkmcnt(0)")
    e("s_cbranch_execz L_skipB5")
    e("s_barrier")
    e.label("L_skipB5")
    stamp(4)
    e("s_cmp_lg_u32 s101, 0")
    e("s_cbranch_scc1 L_exit")
    e("v_lshlrev_b32 v7, 5, v2")
    e(f"v_add_u32 v7, {L_H}, v7")
    e("ds_read_b128 v[16:19], v7")
    e("ds_read_b128 v[20:23], v7 offset:16")
    e("s_waitcnt lgkmcnt(0)")
    for k in range(8):
        e(f"v_mov_b32 v{200+k}, v{16+k}")
    layernorm8(e, 16, 64, 92)
    layernorm8(e, 16, 64, 92)
    stamp(12, 0)
    e(f"s_mov_b32 s76, {TB_OFF}")
    e("s_mov_b32 s75, 4096")
    e("s_mov_b64 s[20:21], 0")
    e("v_mov_b32 v34, 8192")
    for k in range(8):
        e(f"v_bfe_u32 v24, v{16+k}, 16, 15")
        e(f"v_lshrrev_b32 v32, 31, v{16+k}")
        e("v_subrev_u32 v25, 12800, v24")
        e("v_cmp_eq_u32 vcc, 0, v24")
        e("v_cmp_le_u32 s[82:83], s75, v25")
        if opt.get("tlo"):
            e(f"s_mov_b32 s86, {opt['tlo']}")
            e(f"v_cmp_gt_u32 s[84:85], s86, v24")
            e("s_or_b64 s[82:83], s[82:83], s[84:85]")
        e("v_mad_u32_u24 v33, v32, s75, v25")
        e("s_nop 1")
        e("v_cndmask_b32 v33, v33, v34, s[82:83]")
        e("s_andn2_b64 s[82:83], s[82:83], vcc")
        e("s_or_b64 s[20:21], s[20:21], s[82:83]")
        e("v_lshlrev_b32 v33, 2, v33")
        e(f"buffer_load_dword v{208+k}, v33, s[40:43], s76 offen sc1")
    e("s_waitcnt vmcnt(0)")
    e("s_cmp_eq_u64 s[20:21], 0")
    e("s_cbranch_scc1 L_fast")
    e("v_lshlrev_b32 v7, 5, v2")
    e(f"v_add_u32 v8, {L_CB}, v7")
    e(f"v_add_u32 v9, {L_CB+2048}, v7")
    e("ds_write_b128 v8, v[16:19]")
    e("ds_write_b128 v8, v[20:23] offset:16")
    e("ds_write_b128 v9, v[208:211]")
    e("ds_write_b128 v9, v[212:215] offset:16")
    load_weights(e)
    e("s_waitcnt vmcnt(0) lgkmcnt(0)")
    prep_weights(e)
    e("s_mov_b32 s20, 0")
    e.label("L_sloop")
    e("s_lshl_b32 s21, s20, 2")
    e(f"s_add_u32 s21, s21, {L_CB}")
    e("v_mov_b32 v10, s21")
    e("ds_read_b32 v11, v10")
    e("s_waitcnt lgkmcnt(0)")
    e("v_readfirstlane_b32 s4, v11")
    e("s_bfe_u32 s21, s4, 0xf0010")
    e("s_cmp_eq_u32 s21, 0")
    e("s_cbranch_scc1 L_snext")
    if opt.get("tlo"):
        e(f"s_cmp_ge_u32 s21, {opt['tlo']}")
        e("s_cbranch_scc1 L_snext")
    else:
        e("s_sub_u32 s21, s21, 12800")
        e("s_cmp_lt_u32 s21, 4096")
        e("s_cbranch_scc1 L_snext")
    e("s_mov_b32 s5, s4")
    e("v_mov_b32 v112, 0")
    eval_F(e, 112)
    finish_F(e, [112])
    e("s_mov_b32 exec_lo, 0")
    e("s_mov_b32 exec_hi, 0x80000000")
    e("ds_write_b32 v10, v112 offset:2048")
    e("s_mov_b64 exec, -1")
    e.label("L_snext")
    e("s_add_u32 s20, s20, 1")
    e("s_cmp_lt_u32 s20, 512")
    e("s_cbranch_scc1 L_sloop")
    e("s_waitcnt lgkmcnt(0)")
    e("ds_read_b128 v[208:211], v9")
    e("ds_read_b128 v[212:215], v9 offset:16")
    e("s_waitcnt lgkmcnt(0)")
    e.label("L_fast")
    for k in range(8):
        e(f"v_add_f32 v{208+k}, v{208+k}, v{200+k}")
    for k in range(4):
        e(f"v_cvt_pk_bf16_f32 v{64+k}, v{208+2*k}, v{209+2*k}")
    e("v_lshlrev_b32 v8, 4, v2")
    e("s_lshl_b32 s75, s77, 10")
    e("buffer_store_dwordx4 v[64:67], v8, s[68:71], s75 offen")
    stamp(5)
    if opt.get("dbgst"):
        e("s_cmp_lg_u32 s2, 0")
        e("s_cbranch_scc1 L_exit")
        e("s_waitcnt vmcnt(0)")
        e("s_mov_b64 exec, 0xffff")
        e("v_lshlrev_b32 v250, 2, v2")
        e(f"s_mov_b32 s96, {ST_OFF}")
        e("buffer_load_dword v251, v250, s[40:43], s96 offen sc1")
        e("s_waitcnt vmcnt(0)")
        e("global_store_dword v250, v251, s[26:27]")
    e.label("L_exit")
    if DRY:
        e("s_cmp_eq_u32 s98, 0")
        e("s_cbranch_scc1 L_exit2")
        e("s_mov_b32 s98, 0")
        e("s_mov_b32 s101, s3")
        e("s_mov_b64 exec, -1")
        e("s_branch L_b3")
    e.label("L_exit2")
    e("s_endpgm")
    for rl, bl in rares:
        e.label(rl)
        e(f"ds_bpermute_b32 v{T0+1}, v{BP0}, v{T0}")
        e("s_waitcnt lgkmcnt(0)")
        e(f"v_max_f32 v{T0}, v{T0}, v{T0+1}")
        e(f"ds_bpermute_b32 v{T0+1}, v{BP1}, v{T0}")
        e("s_waitcnt lgkmcnt(0)")
        e(f"v_max3_f32 v{T0}, v{T0}, v{T0+1}, v{MREF}")
        e(f"v_sub_f32 v{T0+1}, v{MREF}, v{T0}")
        e(f"v_mul_f32 v{T0+1}, s81, v{T0+1}")
        e(f"v_exp_f32 v{T0+1}, v{T0+1}")
        e("s_nop 0")
        for i in range(32):
            e(f"v_mul_f32 v{OA+i}, v{OA+i}, v{T0+1}")
        e(f"v_mul_f32 v{LSUM}, v{LSUM}, v{T0+1}")
        e(f"v_mov_b32 v{MREF}, v{T0}")
        e(f"v_mul_f32 v{MNEG}, s81, v{T0}")
        e(f"v_sub_f32 v{MNEG}, 0, v{MNEG}")
        e(f"v_add_f32 v{THR}, 0x40a00000, v{T0}")
        e(f"s_branch {bl}")


def main():
    opt = {}
    for a in sys.argv[2:]:
        k, v = a.split("=")
        opt[k] = {"0": False, "1": True}.get(v, v)
    e = E()
    e.raw(HEADER.rstrip("\n"))
    e.raw(f"; @launch grid=(256,1,1) block=(512,1,1) lds={LDS_TOTAL}")
    e.raw('.amdgcn_target "amdgcn-amd-amdhsa--gfx950"')
    e.raw(".text")
    gen(e, opt)
    e.raw('.section .rodata,"a"')
    e.raw(".p2align 6")
    e.raw(f""".amdhsa_kernel {KNAME}
  .amdhsa_next_free_vgpr 256
  .amdhsa_next_free_sgpr 102
  .amdhsa_accum_offset 256
  .amdhsa_group_segment_fixed_size 0
  .amdhsa_kernarg_size 104
  .amdhsa_user_sgpr_count 2
  .amdhsa_user_sgpr_kernarg_segment_ptr 1
  .amdhsa_system_sgpr_workgroup_id_x 1
.end_amdhsa_kernel""")
    open(sys.argv[1], "w").write(e.text())


main()
```
